```python
import torch

def _softmax(x, axis=-1):
    return torch.softmax(x, dim=axis)
def _gelu(x):
    return torch.nn.functional.gelu(x, approximate="tanh")
def _silu(x):
    return torch.nn.functional.silu(x)
def _sigmoid(x):
    return torch.sigmoid(x)
def _layernorm(x, axis=-1, eps=1e-5):
    m = x.mean(dim=axis, keepdim=True)
    v = x.var(dim=axis, keepdim=True, unbiased=False)
    return (x - m) / torch.sqrt(v + eps)
def _scatter_add(tgt, idx, src, axis=0):
    return tgt.clone().index_add_(axis, idx, src)
def _segment_sum(src, seg, n):
    out = torch.zeros((n,) + src.shape[1:], dtype=src.dtype)
    return out.index_add_(0, seg, src)
def _pad(x, pw):
    flat = tuple(v for pair in reversed(pw) for v in pair)
    return torch.nn.functional.pad(x, flat)

kernel_name = 'parallel_sum__ssm_conv_s4d__dense_activation_relu__prompt'

def setup_inputs():

    _w = (lambda a: (lambda t: t.to(torch.bfloat16) if t.is_floating_point() else t)(torch.as_tensor(a)))
    def _A_setup():
        Bsz, L, D, N = 1, 2048, 512, 128
        return {
            "u": _w((lambda *s: torch.randn(*s, dtype=torch.bfloat16) * 0.05)(Bsz, L, D)),
            "log_A_real": _w((lambda *s: torch.randn(*s, dtype=torch.bfloat16) * 3.2)(D, N) * 0.5),
            "A_imag": _w((lambda *s: torch.randn(*s, dtype=torch.bfloat16) * 0.1)(D, N) * 3.14),
            "C_real": _w((lambda *s: torch.randn(*s, dtype=torch.bfloat16) * 1.6)(D, N) / N ** 0.5),
            "C_imag": _w((lambda *s: torch.randn(*s, dtype=torch.bfloat16) * 1.6)(D, N) / N ** 0.5),
            "log_dt": _w((lambda *s: torch.randn(*s, dtype=torch.bfloat16) * 0.1)(D) * 0.5 - 4.0),
            "D_skip": _w((lambda *s: torch.randn(*s, dtype=torch.bfloat16) * 0.2)(D)),
        }
    _A_in = _A_setup()

    def _B_setup():
        B, S, D, Dff = 1, 2048, 512, 1792
        return {
            "x": _w((lambda *s: torch.randn(*s, dtype=torch.bfloat16) * 0.05)(B, S, D)),
            "w1": _w((lambda *s: torch.randn(*s, dtype=torch.bfloat16) * 0.05)(D, Dff)),
            "w2": _w((lambda *s: torch.randn(*s, dtype=torch.bfloat16) * 0.05)(Dff, D)),
        }
    _B_in = _B_setup()

    return {
        "A_u": _A_in["u"],
        "A_log_A_real": _A_in["log_A_real"],
        "A_A_imag": _A_in["A_imag"],
        "A_C_real": _A_in["C_real"],
        "A_C_imag": _A_in["C_imag"],
        "A_log_dt": _A_in["log_dt"],
        "A_D_skip": _A_in["D_skip"],
        "B_x": _B_in["x"],
        "B_w1": _B_in["w1"],
        "B_w2": _B_in["w2"],
    }

def reference(A_u, A_log_A_real, A_A_imag, A_C_real, A_C_imag, A_log_dt, A_D_skip, B_x, B_w1, B_w2):
    def _A_ref(u, log_A_real, A_imag, C_real, C_imag, log_dt, D_skip):
        L = u.shape[1]
        dt = torch.exp(log_dt)
        A = -torch.exp(log_A_real) + 1j * A_imag
        C = (C_real + 1j * C_imag) * dt[:, None]
        pos = (lambda x, dt: x.to(dt))(torch.arange(L), log_dt.dtype)
        P = torch.exp((A * dt[:, None])[:, :, None] * pos[None, None, :])
        K = 2.0 * torch.einsum("dn,dnl->dl", C, P).real
        L2 = 2 * L
        u_t = (lambda x, *d: x.permute(*d))(u, 0, 2, 1)
        Kf = (lambda x, *a, **k: torch.fft.rfft(x.float(), *a, **k))(K, L2)
        Uf = (lambda x, *a, **k: torch.fft.rfft(x.float(), *a, **k))(u_t, L2)
        y = (lambda x, *a, **k: torch.fft.irfft(x, *a, **k).to(torch.bfloat16))(Uf * Kf[None, :, :], L2)[:, :, :L]
        y = (lambda x, *d: x.permute(*d))(y, 0, 2, 1)
        return y + u * D_skip[None, None, :]

    def _B_ref(x, w1, w2):
        h = torch.einsum("bsd,df->bsf", x, w1)
        zero = torch.zeros_like(h)
        h = torch.maximum(h, zero)
        return torch.einsum("bsf,fd->bsd", h, w2)

    x = A_u
    xn = _layernorm(x, axis=-1)
    return x + _A_ref(xn, A_log_A_real, A_A_imag, A_C_real, A_C_imag, A_log_dt, A_D_skip) + _B_ref(xn, B_w1, B_w2)
```

```python
NAME = "parallel_sum__ssm_conv_s4d__dense_activation_relu__prompt"

def v(n, c=1):
    return f"v{n}" if c == 1 else f"v[{n}:{n+c-1}]"
def a(n, c=1):
    return f"a{n}" if c == 1 else f"a[{n}:{n+c-1}]"
def s(n, c=1):
    return f"s{n}" if c == 1 else f"s[{n}:{n+c-1}]"

class Asm:
    def __init__(self):
        self.lines = []
        self.kernels = []
        self.launches = []
        self.uid = 0
    def __call__(self, txt):
        for ln in txt.strip("\n").split("\n"):
            ln = ln.strip()
            if ln:
                self.lines.append(("" if ln.endswith(":") else "    ") + ln)
    def label(self, name):
        self.lines.append(name + ":")
    def newlabel(self, base="L"):
        self.uid += 1
        return f"{base}_{self.uid}"
    def begin_kernel(self, name):
        self.lines.append(f".globl {name}")
        self.lines.append(".p2align 8")
        self.lines.append(f".type {name},@function")
        self.lines.append(f"{name}:")
    def end_kernel(self, name, vgpr=256, sgpr=102, accum=None, wg_y=False, ieee=True):
        if accum is None:
            accum = min(256, (vgpr + 3) // 4 * 4)
        self.kernels.append((name, vgpr, sgpr, accum, wg_y, ieee))
    def launch(self, name, grid, block, lds=0):
        self.launches.append((name, grid, block, lds))
    def text(self, header=""):
        out = []
        out.append(header.rstrip("\n")) if header else None
        for (name, g, b, lds) in self.launches:
            out.append(f"; @launch kernel={name} grid=({g[0]},{g[1]},{g[2]}) block=({b[0]},{b[1]},{b[2]}) lds={lds}")
        out.append('.amdgcn_target "amdgcn-amd-amdhsa--gfx950"')
        out.append(".text")
        out += self.lines
        out.append('.section .rodata,"a"')
        for (name, vgpr, sgpr, accum, wg_y, ieee) in self.kernels:
            out.append(".p2align 6")
            out.append(f".amdhsa_kernel {name}")
            out.append(f"  .amdhsa_next_free_vgpr {vgpr}")
            out.append(f"  .amdhsa_next_free_sgpr {sgpr}")
            out.append(f"  .amdhsa_accum_offset {accum}")
            out.append("  .amdhsa_group_segment_fixed_size 0")
            out.append("  .amdhsa_kernarg_size 104")
            out.append("  .amdhsa_user_sgpr_count 2")
            out.append("  .amdhsa_user_sgpr_kernarg_segment_ptr 1")
            out.append("  .amdhsa_system_sgpr_workgroup_id_x 1")
            if wg_y:
                out.append("  .amdhsa_system_sgpr_workgroup_id_y 1")
            if not ieee:
                out.append("  .amdhsa_ieee_mode 0")
            out.append(".end_amdhsa_kernel")
        return "\n".join(out) + "\n"
```

```python
import re

TRANS = ("v_exp_f32","v_log_f32","v_rcp_f32","v_rsq_f32","v_sqrt_f32","v_sin_f32","v_cos_f32","v_rcp_iflag_f32")
REG = re.compile(r"\b([vas])(\d+)\b|\b([vas])\[(\d+):(\d+)\]|\b(vcc|exec|m0|vcc_lo|vcc_hi|exec_lo|exec_hi|scc)\b")

def regs_of(op):
    out = set()
    for m in REG.finditer(op):
        if m.group(1):
            out.add((m.group(1), int(m.group(2))))
        elif m.group(3):
            for i in range(int(m.group(4)), int(m.group(5)) + 1):
                out.add((m.group(3), i))
        else:
            n = m.group(6)
            if n.startswith("vcc"): out.add(("vcc", 0))
            elif n.startswith("exec"): out.add(("exec", 0))
            else: out.add((n, 0))
    return out

def split_ops(rest):
    ops, cur, depth = [], "", 0
    for ch in rest:
        if ch == "[": depth += 1
        if ch == "]": depth -= 1
        if ch == "," and depth == 0:
            ops.append(cur.strip()); cur = ""
        else:
            cur += ch
    if cur.strip(): ops.append(cur.strip())
    return ops

class Ins:
    pass

def parse(line):
    t = line.split(";")[0].strip()
    if not t or t.endswith(":") or t.startswith("."):
        return None
    parts = t.split(None, 1)
    op = parts[0]
    rest = parts[1] if len(parts) > 1 else ""
    ops = split_ops(rest)
    I = Ins(); I.op = op; I.text = t
    I.w = set(); I.r = set(); I.kind = "other"; I.passes = 0
    I.srcC = set(); I.srcAB = set(); I.dpp = ("row_" in t or "quad_perm" in t or "wave_" in t or "_dpp" in op)
    I.store_wide = False; I.storedata = set(); I.ldsdma = False
    base = re.sub(r"_(e32|e64|dpp|sdwa)$", "", op)
    I.base = base
    def R(i):
        return regs_of(ops[i].split(" ")[0] if i == len(ops) - 1 and not ops[i].startswith(("-","|","abs","neg")) else ops[i]) if i < len(ops) else set()
    if op.startswith("v_mfma"):
        I.kind = "mfma"
        I.w = R(0); I.srcAB = R(1) | R(2); I.srcC = R(3); I.r = I.srcAB | I.srcC
        if "32x32x16" in op or "32x32x8" in op: I.passes = 8
        elif "16x16x32" in op or "16x16x16" in op: I.passes = 4
        elif "32x32x2_f32" in op: I.passes = 16
        elif "16x16x4_f32" in op: I.passes = 8
        else: I.passes = 16
    elif op.startswith("v_"):
        I.kind = "valu"
        if base.startswith("v_cmpx"):
            I.w = R(0) | {("exec", 0)}; I.r = set().union(*[R(i) for i in range(1, len(ops))])
        elif base.startswith("v_cmp"):
            I.w = R(0); I.r = set().union(*[R(i) for i in range(1, len(ops))])
        elif base in ("v_add_co_u32","v_sub_co_u32","v_subrev_co_u32","v_addc_co_u32","v_subb_co_u32","v_div_scale_f32","v_mad_u64_u32"):
            I.w = R(0) | R(1); I.r = set().union(*[R(i) for i in range(2, len(ops))])
        elif base.startswith("v_permlane") and "swap" in base:
            I.w = R(0) | R(1); I.r = R(0) | R(1)
        elif base == "v_swap_b32":
            I.w = R(0) | R(1); I.r = R(0) | R(1)
        elif base == "v_nop":
            pass
        else:
            I.w = R(0); I.r = set().union(*[R(i) for i in range(1, len(ops))]) if len(ops) > 1 else set()
            if base in ("v_fmac_f32","v_dot2c_f32_bf16","v_pk_fmac_f16","v_writelane_b32") or I.dpp:
                I.r |= R(0)
            if base == "v_cndmask_b32" and len(ops) == 3:
                I.r.add(("vcc", 0))
    elif op.startswith(("buffer_", "global_", "flat_", "scratch_")):
        I.kind = "vmem"
        allr = set().union(*[regs_of(o) for o in ops])
        lds = (" lds" in t) or ("_lds_" in op)
        I.ldsdma = lds
        if "load" in op and not lds:
            I.w = R(0); I.r = set().union(*[regs_of(o) for o in ops[1:]])
            if "d16" in op: I.r |= R(0)
        elif "atomic" in op:
            I.r = allr
            if " sc0" in t:
                I.w = R(0)
        else:
            I.r = allr
            if lds: I.r.add(("m0", 0))
            if "store" in op and ("x4" in op or "x3" in op):
                I.store_wide = True
                I.storedata = R(0) if op.startswith("buffer_") else R(1)
    elif op.startswith("ds_"):
        I.kind = "ds"
        if op.startswith(("ds_read", "ds_bpermute", "ds_permute", "ds_swizzle")) or "_rtn" in op:
            I.w = R(0); I.r = set().union(*[regs_of(o.split(" ")[0]) for o in ops[1:]])
            if "d16" in op: I.r |= R(0)
        else:
            I.r = set().union(*[regs_of(o.split(" ")[0]) for o in ops])
    elif op.startswith("s_"):
        I.kind = "salu"
        if op in ("s_nop",):
            I.kind = "nop"; I.n = int(ops[0], 0) + 1
        elif op.startswith(("s_cbranch", "s_branch", "s_endpgm", "s_setpc", "s_swappc")):
            I.kind = "branch"
        elif op.startswith(("s_waitcnt", "s_barrier", "s_setprio", "s_sleep", "s_cmp", "s_bitcmp")):
            I.r = set().union(*[regs_of(o) for o in ops]) if ops else set()
        elif op.startswith(("s_load", "s_buffer_load", "s_memtime", "s_memrealtime")):
            I.kind = "smem"; I.w = R(0); I.r = set().union(*[regs_of(o) for o in ops[1:]]) if len(ops) > 1 else set()
        else:
            I.w = R(0); I.r = set().union(*[regs_of(o) for o in ops[1:]]) if len(ops) > 1 else set()
            if "saveexec" in op: I.w.add(("exec", 0)); I.r.add(("exec", 0))
    return I

XDL_VALU = {2: 5, 4: 8, 8: 12, 16: 20}
XDL_AB = {2: 5, 4: 8, 8: 12, 16: 20}
XDL_COV = {2: 4, 4: 6, 8: 10, 16: 18}
XDL_WAR = {2: 1, 4: 3, 8: 7, 16: 15}

def isv(r): return r[0] in ("v", "a")
def iss(r): return r[0] in ("s", "vcc")

def need(P, C):
    n = 0
    pv = {r for r in P.w if isv(r)}
    ps = {r for r in P.w if iss(r)}
    if P.kind == "valu":
        if C.kind == "mfma" and pv & C.r: n = max(n, 2)
        if C.kind == "valu":
            if P.base in TRANS and C.base not in TRANS and pv & C.r: n = max(n, 1)
            if P.base in TRANS and C.base in TRANS and pv & C.r: n = max(n, 1)
            if C.dpp and pv & C.r: n = max(n, 2)
            if C.base.startswith("v_permlane") and pv & C.r: n = max(n, 2)
            if C.base in ("v_readlane_b32", "v_readfirstlane_b32") and pv & C.r: n = max(n, 1)
            if ps & C.r:
                n = max(n, 4 if C.base in ("v_readlane_b32", "v_writelane_b32", "v_div_fmas_f32") else 2)
            if ("exec", 0) in P.w:
                if C.dpp: n = max(n, 5)
                if C.base in ("v_readlane_b32", "v_readfirstlane_b32", "v_writelane_b32") or C.base.startswith("v_permlane"): n = max(n, 4)
            if ("op_sel" in P.text and not P.op.startswith("v_pk")) or "sdwa" in P.text:
                if pv & (C.r | C.w): n = max(n, 1)
        if C.kind == "mfma" and ("exec", 0) in P.w: n = max(n, 4)
        if C.kind == "vmem" and ps & C.r: n = max(n, 5)
        if C.kind in ("salu", "smem") and ps & C.r: n = max(n, 2)
    if P.kind == "mfma":
        if C.kind == "mfma":
            if pv & C.srcAB: n = max(n, XDL_AB[P.passes])
            if pv & C.srcC:
                if not (C.srcC == P.w and C.passes == P.passes): n = max(n, XDL_COV[P.passes])
                elif P.passes == 2: n = max(n, 2)
            if (pv & C.w) and not (pv & C.srcC): n = max(n, XDL_COV[P.passes])
        elif C.kind in ("valu", "vmem", "ds"):
            if pv & (C.r | C.w): n = max(n, XDL_VALU[P.passes])
        if C.kind == "valu" and P.srcC & C.w: n = max(n, XDL_WAR[P.passes])
    if P.kind == "salu" and ("m0", 0) in P.w and C.kind == "vmem" and C.ldsdma: n = max(n, 1)
    if P.kind == "vmem" and P.store_wide and (P.storedata & C.w):
        n = max(n, 2 if C.kind == "valu" else 1)
    return n

def fix(lines, warn=True):
    out = []
    hist = []
    inserted = 0
    for ln in lines:
        I = parse(ln)
        if I is None:
            t = ln.strip()
            if t.endswith(":") and hist:
                pass
            out.append(ln); continue
        if I.kind == "nop":
            hist = [(p, d + I.n) for p, d in hist if d + I.n < 24]
            out.append(ln); continue
        req = 0
        for p, d in hist:
            k = need(p, I)
            if k > d: req = max(req, k - d)
        if I.kind == "branch" and not I.op.startswith("s_endpgm"):
            for p, d in hist:
                k = 0
                if p.kind == "mfma": k = XDL_VALU[p.passes]
                elif p.kind == "valu": k = 5 if any(iss(r) or r[0] == "exec" for r in p.w) else 2
                elif p.kind == "vmem" and p.store_wide: k = 2
                if k - 1 > d: req = max(req, k - 1 - d)
        while req > 0:
            k = min(req, 16)
            out.append(f"    s_nop {k-1}")
            hist = [(p, d + k) for p, d in hist]
            req -= k; inserted += k
        out.append(ln)
        hist = [(p, d + 1) for p, d in hist if d + 1 < 24]
        hist.append((I, 0))
    return out, inserted
```

```python
from gen import *
import hazard

WS_XN = 0x000000
WS_XNT = 0x200000
XNT_STRIDE = 4160
WS_KIMG = 0x500000
KIMG_STRIDE = 9216
KCOPY = 4640
WS_ZP = 0xA00000
WS_H = 0xC00000
WS_STATS = 0x1400000
WS_BYTES = 0x10000000

ARG = dict(u=0, lar=8, aim=16, cre=24, cim=32, ldt=40, dsk=48, bx=56, w1=64, w2=72, out=80, dbg=88, ws=96)
LOG2E = 0x3fb8aa3b
INV2PI = 0x3e22f983

def srd(A, d, p, nbytes):
    A(f"s_mov_b32 s{d}, s{p}")
    A(f"s_mov_b32 s{d+1}, s{p+1}")
    A(f"s_mov_b32 s{d+2}, {nbytes}")
    A(f"s_mov_b32 s{d+3}, 0x00020000")

def dpp_sum(A, regs):
    for ctl in ("row_shr:1 row_mask:0xf", "row_shr:2 row_mask:0xf", "row_shr:4 row_mask:0xf", "row_shr:8 row_mask:0xf",
                "row_bcast:15 row_mask:0xa", "row_bcast:31 row_mask:0xc"):
        for r in regs:
            bc = " bound_ctrl:0" if "shr" in ctl else ""
            A(f"v_add_f32_dpp v{r}, v{r}, v{r} {ctl} bank_mask:0xf{bc}")

def bf16_round(A, dst, src, tmp=None):
    A(f"v_cvt_pk_bf16_f32 v{dst}, v{src}, v{src}")
    A(f"v_lshlrev_b32 v{dst}, 16, v{dst}")

def gen_ln(A):
    k = "ln_kernel"
    A.begin_kernel(k)
    A(f"""
s_cmp_ge_u32 s2, 256
s_cbranch_scc1 {k}_done
s_load_dwordx2 s[4:5], s[0:1], {ARG['u']}
s_load_dwordx2 s[6:7], s[0:1], {ARG['ws']}
s_and_b32 s16, s2, 7
s_lshl_b32 s16, s16, 8
s_lshr_b32 s17, s2, 3
s_lshl_b32 s17, s17, 3
s_add_u32 s16, s16, s17          ; r0
v_lshrrev_b32 v1, 6, v0          ; wave
v_and_b32 v2, 63, v0             ; lane
v_lshlrev_b32 v3, 11, v1
v_lshlrev_b32 v4, 4, v2
v_add_u32 v3, v3, v4
s_lshl_b32 s18, s16, 10          ; r0*1024
s_waitcnt lgkmcnt(0)
""")
    srd(A, 8, 4, 2048 * 1024)
    srd(A, 12, 6, WS_BYTES)
    A("buffer_load_dwordx4 v[8:11], v3, s[8:11], s18 offen")
    A("buffer_load_dwordx4 v[12:15], v3, s[8:11], s18 offen offset:1024")
    A("v_mul_u32_u24 v5, 2176, v1")
    A("v_add_u32 v5, v5, v4")
    A("s_mov_b32 s19, 0xffff0000")
    A("s_waitcnt vmcnt(0)")
    X = [16, 24]
    for r in range(2):
        for i in range(4):
            A(f"v_lshlrev_b32 v{X[r]+2*i}, 16, v{8+4*r+i}")
            A(f"v_and_b32 v{X[r]+2*i+1}, s19, v{8+4*r+i}")
    S = [32, 33]
    for r in range(2):
        A(f"v_add_f32 v{S[r]}, v{X[r]}, v{X[r]+1}")
    for i in range(2, 8):
        for r in range(2):
            A(f"v_add_f32 v{S[r]}, v{S[r]}, v{X[r]+i}")
    dpp_sum(A, S)
    for r in range(2):
        A(f"v_readlane_b32 s{20+r}, v{S[r]}, 63")
    M = [34, 35]
    A("v_mov_b32 v40, 0x3b000000")
    for r in range(2):
        A(f"v_mul_f32 v{M[r]}, s{20+r}, v40")
    D = [44, 52]
    for i in range(8):
        for r in range(2):
            A(f"v_sub_f32 v{D[r]+i}, v{X[r]+i}, v{M[r]}")
    for r in range(2):
        A(f"v_mul_f32 v{S[r]}, v{D[r]}, v{D[r]}")
    for i in range(1, 8):
        for r in range(2):
            A(f"v_fmac_f32 v{S[r]}, v{D[r]+i}, v{D[r]+i}")
    dpp_sum(A, S)
    for r in range(2):
        A(f"v_readlane_b32 s{22+r}, v{S[r]}, 63")
    V = [36, 37]
    for r in range(2):
        A(f"v_mul_f32 v{V[r]}, s{22+r}, v40")
    for r in range(2):
        bf16_round(A, V[r], V[r])
        bf16_round(A, M[r], M[r])
    for r in range(2):
        A(f"v_add_f32 v{V[r]}, 0x3727c5ac, v{V[r]}")
    for r in range(2):
        bf16_round(A, V[r], V[r])
    for r in range(2):
        A(f"v_sqrt_f32 v{V[r]}, v{V[r]}")
    for r in range(2):
        bf16_round(A, V[r], V[r])
    for r in range(2):
        A(f"v_rcp_f32 v{V[r]}, v{V[r]}")
    for i in range(8):
        for r in range(2):
            A(f"v_sub_f32 v{D[r]+i}, v{X[r]+i}, v{M[r]}")
    for r in range(2):
        for i in range(4):
            A(f"v_cvt_pk_bf16_f32 v{8+4*r+i}, v{D[r]+2*i}, v{D[r]+2*i+1}")
    for r in range(2):
        for i in range(4):
            A(f"v_lshlrev_b32 v{D[r]+2*i}, 16, v{8+4*r+i}")
            A(f"v_and_b32 v{D[r]+2*i+1}, s19, v{8+4*r+i}")
    for r in range(2):
        for i in range(8):
            A(f"v_mul_f32 v{D[r]+i}, v{D[r]+i}, v{V[r]}")
    for r in range(2):
        for i in range(4):
            A(f"v_cvt_pk_bf16_f32 v{8+4*r+i}, v{D[r]+2*i}, v{D[r]+2*i+1}")
    A(f"s_add_u32 s24, s18, {WS_XN}")
    A("buffer_store_dwordx4 v[8:11], v3, s[12:15], s24 offen")
    A("buffer_store_dwordx4 v[12:15], v3, s[12:15], s24 offen offset:1024")
    A(f"v_mov_b32 v60, v{M[0]}")
    A(f"v_mov_b32 v61, v{V[0]}")
    A(f"v_mov_b32 v62, v{M[1]}")
    A(f"v_mov_b32 v63, v{V[1]}")
    A("v_lshlrev_b32 v59, 4, v1")
    A("s_lshl_b32 s25, s16, 3")
    A(f"s_add_u32 s25, s25, {WS_STATS}")
    A("buffer_store_dwordx4 v[60:63], v59, s[12:15], s25 offen")
    A("ds_write_b128 v5, v[8:11]")
    A("ds_write_b128 v5, v[12:15] offset:1088")
    A("s_waitcnt lgkmcnt(0)")
    A("s_barrier")
    A("v_and_b32 v6, 3, v0")
    A("v_lshrrev_b32 v7, 2, v0")
    A("v_and_b32 v7, 3, v7")
    A("v_lshrrev_b32 v41, 4, v0")
    A("v_mul_u32_u24 v7, 1088, v7")
    A("v_lshlrev_b32 v6, 3, v6")
    A("v_add_u32 v7, v7, v6")
    A("v_lshlrev_b32 v41, 5, v41")
    A("v_add_u32 v7, v7, v41")
    A("ds_read_b64_tr_b16 v[16:17], v7")
    A(f"ds_read_b64_tr_b16 v[18:19], v7 offset:{4*1088}")
    A("ds_read_b64_tr_b16 v[20:21], v7 offset:512")
    A(f"ds_read_b64_tr_b16 v[22:23], v7 offset:{4*1088+512}")
    A(f"v_mul_u32_u24 v6, {XNT_STRIDE}, v0")
    A("s_lshl_b32 s26, s16, 1")
    A(f"s_add_u32 s26, s26, {WS_XNT + 64}")
    A(f"s_add_u32 s27, s26, {256*XNT_STRIDE}")
    A("s_waitcnt lgkmcnt(0)")
    A("buffer_store_dwordx4 v[16:19], v6, s[12:15], s26 offen")
    A("buffer_store_dwordx4 v[20:23], v6, s[12:15], s27 offen")
    A("v_cmp_gt_u32 vcc, 8, v0")
    A("s_and_saveexec_b64 s[28:29], vcc")
    A(f"s_cbranch_execz {k}_done")
    A("v_mov_b32 v24, 0\nv_mov_b32 v25, 0\nv_mov_b32 v26, 0\nv_mov_b32 v27, 0")
    A("v_lshrrev_b32 v6, 2, v0")
    A(f"v_mul_u32_u24 v6, {XNT_STRIDE}, v6")
    A("v_and_b32 v7, 3, v0")
    A("v_lshlrev_b32 v7, 4, v7")
    A("v_add_u32 v6, v6, v7")
    A(f"s_mul_i32 s26, s2, {2*XNT_STRIDE}")
    A(f"s_add_u32 s26, s26, {WS_XNT}")
    A("buffer_store_dwordx4 v[24:27], v6, s[12:15], s26 offen")
    A(f"{k}_done:")
    A("s_endpgm")
    A.end_kernel(k, vgpr=64, sgpr=32)
    A.launch(k, (256,1,1), (256,1,1), 8*1088)


def gen_kgen(A):
    k = "kgen_kernel"
    A.begin_kernel(k)
    PAR = 0
    XCH = 4352
    TBL = XCH + 8192 + 64
    LDS = TBL + 2 * 1344
    A(f"""
s_cmp_ge_u32 s2, 256
s_cbranch_scc1 {k}_done
s_load_dwordx4 s[4:7], s[0:1], {ARG['lar']}
s_load_dwordx4 s[8:11], s[0:1], {ARG['cre']}
s_load_dwordx2 s[12:13], s[0:1], {ARG['ldt']}
s_load_dwordx2 s[14:15], s[0:1], {ARG['ws']}
v_lshrrev_b32 v1, 6, v0          ; wave
v_and_b32 v2, 63, v0             ; lane
v_readfirstlane_b32 s20, v1
s_lshr_b32 s21, s20, 1           ; ch
s_and_b32 s22, s20, 1            ; mh
s_lshl_b32 s23, s2, 1
s_add_u32 s23, s23, s21          ; d
s_lshl_b32 s24, s23, 8
s_lshl_b32 s25, s22, 7
s_add_u32 s24, s24, s25          ; d*256 + mh*128
v_lshlrev_b32 v3, 1, v2
v_add_u32 v3, s24, v3
s_lshl_b32 s25, s23, 1
v_mov_b32 v4, s25
s_waitcnt lgkmcnt(0)
global_load_ushort v8, v3, s[4:5]
global_load_ushort v9, v3, s[6:7]
global_load_ushort v10, v3, s[8:9]
global_load_ushort v11, v3, s[10:11]
global_load_ushort v12, v4, s[12:13]
""")
    srd(A, 16, 14, WS_BYTES)
    A(f"""
s_mov_b32 s26, {LOG2E}
s_mov_b32 s27, {INV2PI}
s_mul_i32 s28, s20, 1088
v_lshrrev_b32 v5, 4, v2           ; kq
v_and_b32 v6, 15, v2              ; i
v_lshlrev_b32 v7, 4, v2
v_lshl_add_u32 v7, v5, 4, v7
v_add_u32 v7, s28, v7
v_mul_u32_u24 v13, 272, v5
v_add_u32 v13, s28, v13
v_add_u32 v14, 1, v6
v_cvt_f32_u32 v15, v14            ; N = i+1
v_cmp_eq_u32 s[30:31], 15, v6     ; lanes i==15
s_waitcnt vmcnt(0)
v_lshlrev_b32 v8, 16, v8
v_lshlrev_b32 v9, 16, v9
v_lshlrev_b32 v10, 16, v10
v_lshlrev_b32 v11, 16, v11
v_lshlrev_b32 v12, 16, v12
v_mul_f32 v8, s26, v8
v_mul_f32 v12, s26, v12
v_exp_f32 v8, v8
v_exp_f32 v12, v12
""")
    bf16_round(A, 8, 8)
    bf16_round(A, 12, 12)
    A("""
v_mul_f32 v16, v8, v12
v_mul_f32 v17, v9, v12
v_mul_f32 v18, v10, v12
v_mul_f32 v19, v11, v12
v_mul_f32 v16, s26, v16
v_sub_f32 v16, 0, v16
v_mul_f32 v17, s27, v17
v_add_f32 v18, v18, v18
v_add_f32 v19, v19, v19
ds_write_b128 v7, v[16:19]
v_mov_b32 v20, v18
""")
    dpp_sum(A, [20])
    A("v_readlane_b32 s29, v20, 63")
    A("s_waitcnt lgkmcnt(0)")
    P = 32
    for m in range(16):
        A(f"ds_read_b128 v[{P+4*m}:{P+4*m+3}], v13 offset:{16*m}")
        if m == 7: A("s_waitcnt lgkmcnt(4)")
    Dacc = 96
    for r in range(16):
        A(f"v_mov_b32 v{Dacc+r}, 0")
    T = 112
    L = 120
    H = 136
    t_ = 144
    A("s_waitcnt lgkmcnt(0)")
    def sq():
        for j in range(4): A(f"v_mul_f32 v{t_+j}, v{T+4+j}, v{T+4+j}")
        for j in range(4): A(f"v_mul_f32_e64 v{T+4+j}, v{T+j}, v{T+4+j} mul:2")
        for j in range(4): A(f"v_fma_f32 v{T+j}, v{T+j}, v{T+j}, -v{t_+j}")
    for g in range(4):
        pj = [P + 4 * (4 * g + j) for j in range(4)]
        for j in range(4): A(f"v_mul_f32 v{t_+j}, v{pj[j]}, v15")
        for j in range(4): A(f"v_mul_f32 v{t_+4+j}, v{pj[j]+1}, v15")
        for j in range(4): A(f"v_exp_f32 v{t_+j}, v{t_+j}")
        for j in range(4): A(f"v_fract_f32 v{t_+4+j}, v{t_+4+j}")
        for j in range(4): A(f"v_cos_f32 v{T+j}, v{t_+4+j}")
        for j in range(4): A(f"v_sin_f32 v{T+4+j}, v{t_+4+j}")
        for j in range(4): A(f"v_mul_f32 v{T+j}, v{T+j}, v{t_+j}")
        for j in range(4): A(f"v_mul_f32 v{T+4+j}, v{T+4+j}, v{t_+j}")
        for sgm in range(4):
            for j in range(4): A(f"v_cvt_pk_bf16_f32 v{L+4*sgm+j}, v{T+j}, v{T+4+j}")
            sq()
        for j in range(4):
            A(f"v_cndmask_b32_e64 v{T+j}, v{T+j}, 1.0, s[30:31]")
            A(f"v_cndmask_b32_e64 v{T+4+j}, v{T+4+j}, 0, s[30:31]")
        for sgm in range(4):
            Hh = H + 4 * (sgm & 1)
            for j in range(4): A(f"v_mul_f32 v{t_+j}, v{pj[j]+3}, v{T+4+j}")
            for j in range(4): A(f"v_mul_f32 v{t_+4+j}, v{pj[j]+3}, v{T+j}")
            for j in range(4): A(f"v_fma_f32 v{t_+j}, v{pj[j]+2}, v{T+j}, -v{t_+j}")
            for j in range(4): A(f"v_fma_f32 v{t_+4+j}, -v{pj[j]+2}, v{T+4+j}, -v{t_+4+j}")
            for j in range(4): A(f"v_cvt_pk_bf16_f32 v{Hh+j}, v{t_+j}, v{t_+4+j}")
            if sgm < 3: sq()
            A(f"v_mfma_f32_16x16x32_bf16 v[{Dacc+4*sgm}:{Dacc+4*sgm+3}], v[{L+4*sgm}:{L+4*sgm+3}], v[{Hh}:{Hh+3}], v[{Dacc+4*sgm}:{Dacc+4*sgm+3}]")
    A(f"""
s_lshl_b32 s28, s20, 11
s_add_u32 s28, s28, {XCH}
v_lshlrev_b32 v7, 4, v2
v_add_u32 v8, s28, v7
s_xor_b32 s28, s20, 1
s_lshl_b32 s28, s28, 11
s_add_u32 s28, s28, {XCH}
v_add_u32 v9, s28, v7
s_lshl_b32 s28, s20, 2
s_add_u32 s28, s28, {XCH+8192}
v_mov_b32 v10, s28
v_mov_b32 v11, s29
ds_write_b32 v10, v11
v_and_b32 v14, 15, v14
v_lshlrev_b32 v14, 5, v14
v_lshl_add_u32 v14, v5, 3, v14
s_mul_i32 s32, s21, 1344
s_add_u32 s32, s32, {TBL}
v_add_u32 v14, s32, v14
s_cmp_eq_u32 s22, 0
s_cbranch_scc0 {k}_mh1
""")
    for mh in range(2):
        if mh == 1: A(f"{k}_mh1:")
        keep = [2*mh, 2*mh+1]; send = [2-2*mh, 3-2*mh]
        for j in range(2):
            A(f"ds_write_b128 v8, v[{Dacc+4*send[j]}:{Dacc+4*send[j]+3}] offset:{1024*j}")
        A("s_waitcnt lgkmcnt(0)")
        A("s_barrier")
        for j in range(2):
            A(f"ds_read_b128 v[{32+4*j}:{32+4*j+3}], v9 offset:{1024*j}")
        if mh == 0:
            A("ds_read_b32 v40, v10 offset:4")
        A("s_waitcnt lgkmcnt(0)")
        for j in range(2):
            for r in range(4):
                A(f"v_add_f32 v{32+4*j+r}, v{32+4*j+r}, v{Dacc+4*keep[j]+r}")
            A(f"v_cvt_pk_bf16_f32 v{44+2*j}, v{32+4*j}, v{32+4*j+1}")
            A(f"v_cvt_pk_bf16_f32 v{44+2*j+1}, v{32+4*j+2}, v{32+4*j+3}")
        if mh == 0:
            A("v_add_f32 v40, s29, v40")
            A("v_cvt_pk_bf16_f32 v40, v40, v40")
            A("v_mov_b32 v41, s32")
            A("ds_write_b16 v41, v40 offset:6")
            A("ds_write_b64 v14, v[44:45] offset:8")
            A("s_mov_b32 exec_lo, 0x7f807f80\ns_mov_b32 exec_hi, 0x7f807f80")
            A("ds_write_b64 v14, v[46:47] offset:264")
        else:
            A("s_mov_b32 exec_lo, 0x7f807f80\ns_mov_b32 exec_hi, 0x7f807f80")
            A("ds_write_b64 v14, v[44:45] offset:520")
            A("ds_write_b64 v14, v[46:47] offset:776")
        A("s_mov_b64 exec, -1")
        if mh == 0: A(f"s_branch {k}_join")
    A(f"{k}_join:")
    A("v_and_b32 v3, 127, v0")
    A("v_lshlrev_b32 v4, 2, v3")
    A(f"s_sub_u32 s33, s32, {2*(0x4280-3)}")
    A("s_mov_b32 s34, 0xffff")
    AD = 48
    for jj in range(4):
        for e in range(4):
            A(f"v_add_u32 v{AD+4*jj+e}, {512*jj+e}, v4")
    for jj in range(4):
        for e in range(4):
            A(f"v_cvt_f32_u32 v{64+4*jj+e}, v{AD+4*jj+e}")
    for jj in range(4):
        for e in range(0, 4, 2):
            A(f"v_cvt_pk_bf16_f32 v{64+4*jj+e}, v{64+4*jj+e}, v{64+4*jj+e+1}")
    for jj in range(4):
        for e in range(0, 4, 2):
            A(f"v_lshrrev_b32 v{64+4*jj+e+1}, 16, v{64+4*jj+e}")
            A(f"v_and_b32 v{64+4*jj+e}, s34, v{64+4*jj+e}")
    for e in range(4):
        A(f"v_min_u32 v{AD+e}, 128, v{AD+e}")
        A(f"v_add_u32 v{AD+e}, 0x4280, v{AD+e}")
        A(f"v_max_u32 v{64+e}, v{64+e}, v{AD+e}")
    for i in range(16):
        A(f"v_lshl_add_u32 v{64+i}, v{64+i}, 1, s33")
    A("s_waitcnt lgkmcnt(0)")
    A("s_barrier")
    for i in range(16):
        A(f"ds_read_u16 v{80+i}, v{64+i}")
        if i == 11: A("s_waitcnt lgkmcnt(4)")
    A("v_lshlrev_b32 v5, 3, v3")
    A("v_sub_u32 v5, 1016, v5")
    A(f"s_mul_i32 s35, s23, {KIMG_STRIDE}")
    A(f"s_add_u32 s35, s35, {WS_KIMG - 8}")
    A(f"s_add_u32 s36, s35, {KCOPY + 8}")
    A("s_waitcnt lgkmcnt(0)")
    for jj in range(4):
        b = 80 + 4 * jj
        A(f"v_lshl_or_b32 v{96+2*jj}, v{b+2}, 16, v{b+3}")
        A(f"v_lshl_or_b32 v{96+2*jj+1}, v{b}, 16, v{b+1}")
        A(f"buffer_store_dwordx2 v[{96+2*jj}:{96+2*jj+1}], v5, s[16:19], s35 offen offset:{1024*(3-jj)}")
        A(f"buffer_store_dwordx2 v[{96+2*jj}:{96+2*jj+1}], v5, s[16:19], s36 offen offset:{1024*(3-jj)}")
    A("v_mov_b32 v6, 0\nv_mov_b32 v7, 0")
    A("v_lshlrev_b32 v5, 3, v3")
    A(f"s_add_u32 s35, s35, {8+4088}")
    A(f"s_add_u32 s36, s35, {8736-4088}")
    A("v_cmp_gt_u32 vcc, 69, v3")
    A("s_and_saveexec_b64 s[38:39], vcc")
    A(f"s_cbranch_execz {k}_done")
    A("buffer_store_dwordx2 v[6:7], v5, s[16:19], s35 offen")
    A("v_cmp_gt_u32 vcc, 56, v3")
    A("s_and_saveexec_b64 s[38:39], vcc")
    A(f"s_cbranch_execz {k}_done")
    A("buffer_store_dwordx2 v[6:7], v5, s[16:19], s36 offen")
    A(f"{k}_done:")
    A("s_endpgm")
    A.end_kernel(k, vgpr=152, sgpr=48, ieee=False)
    A.launch(k, (256,1,1), (256,1,1), LDS)

def gen_conv(A):
    k = "conv_kernel"
    A.begin_kernel(k)
    UB = 0; USZ = 17408
    KB = 2 * USZ
    XB = KB + 2 * KIMG_STRIDE
    LDS = XB + 32768
    A(f"""
s_cmp_ge_u32 s2, 256
s_cbranch_scc1 {k}_done
s_load_dwordx2 s[4:5], s[0:1], {ARG['dsk']}
s_load_dwordx2 s[6:7], s[0:1], {ARG['ws']}
v_lshrrev_b32 v1, 6, v0
v_and_b32 v2, 63, v0
v_readfirstlane_b32 s20, v1
s_lshr_b32 s21, s20, 1            ; ch
s_and_b32 s22, s20, 1             ; half
s_lshl_b32 s23, s2, 1
s_add_u32 s23, s23, s21           ; d
v_lshlrev_b32 v3, 4, v2           ; lane*16
v_mov_b32 v4, v3
v_mov_b32 v5, v3
v_mov_b32 v6, v3
v_add_u32 v7, 4158, v3
v_cmp_gt_u32 vcc, 4, v2
v_cndmask_b32 v4, v3, v7, vcc
v_cmp_gt_u32 vcc, 8, v2
v_cndmask_b32 v5, v3, v7, vcc
v_cmp_gt_u32 vcc, 12, v2
v_cndmask_b32 v6, v3, v7, vcc
v_cmp_gt_u32 vcc, 16, v2
v_cndmask_b32 v7, v3, v7, vcc
s_mul_i32 s24, s23, {XNT_STRIDE}
s_add_u32 s24, s24, {WS_XNT + 10}
s_mul_i32 s25, s23, {KIMG_STRIDE}
s_add_u32 s25, s25, {WS_KIMG}
s_mul_i32 s26, s21, {USZ}
s_mul_i32 s27, s21, {KIMG_STRIDE}
s_add_u32 s27, s27, {KB}
s_lshl_b32 s28, s2, 2
s_waitcnt lgkmcnt(0)
s_load_dword s30, s[4:5], s28
""")
    srd(A, 8, 6, WS_BYTES)
    def dmaU(j):
        sig = j // 4
        vo = {4: 4, 8: 5, 12: 6, 16: 7}.get(j, 3)
        off = 1024 * j - 4158 * sig
        A(f"s_add_u32 m0, s26, {1024*j}")
        if off >= 0: A(f"s_add_u32 s29, s24, {off}")
        else: A(f"s_sub_u32 s29, s24, {-off}")
        A(f"buffer_load_dwordx4 v{vo}, s[8:11], s29 offen lds")
    def dmaK(j):
        A(f"s_add_u32 m0, s27, {1024*j}")
        A(f"s_add_u32 s29, s25, {1024*j}")
        A(f"buffer_load_dwordx4 v3, s[8:11], s29 offen lds")
    A("s_cmp_eq_u32 s22, 0")
    A(f"s_cbranch_scc0 {k}_h1")
    for j in range(0, 9): dmaU(j)
    for j in range(0, 4): dmaK(j)
    A(f"s_branch {k}_ld")
    A(f"{k}_h1:")
    for j in range(9, 17): dmaU(j)
    for j in range(4, 9): dmaK(j)
    A(f"{k}_ld:")
    A(f"""
v_and_b32 v8, 3, v2               ; b0
v_bfe_u32 v9, v2, 2, 2            ; b1
v_lshrrev_b32 v10, 4, v2          ; kq
v_mul_u32_u24 v8, {XNT_STRIDE}, v8
v_add_u32 v9, v9, v10
v_lshl_add_u32 v8, v9, 4, v8
s_lshl_b32 s31, s22, 8
s_add_u32 s32, s26, s31
v_add_u32 v8, s32, v8             ; vF
v_and_b32 v11, 1, v2              ; a0
v_bfe_u32 v12, v2, 1, 3           ; a1
v_mul_u32_u24 v9, {KCOPY}, v11
v_lshl_add_u32 v9, v10, 4, v9
v_lshlrev_b32 v13, 6, v12
v_sub_u32 v9, v9, v13
s_add_u32 s32, s27, s31
s_add_u32 s32, s32, 448
v_add_u32 v9, s32, v9             ; vG
v_lshlrev_b32 v13, 5, v12
v_lshl_add_u32 v13, v11, 2, v13
v_lshl_add_u32 v13, v10, 3, v13
""")
    ACC = 32
    for r in range(32): A(f"v_mov_b32 v{ACC+r}, 0")
    FR = [64, 128]
    def rd(buf, ph, i):
        m = i >> 1
        if i & 1 == 0:
            A(f"ds_read_b128 v[{FR[buf]+4*m}:{FR[buf]+4*m+3}], v8 offset:{512*m+64*ph}")
        else:
            A(f"ds_read_b128 v[{FR[buf]+32+4*m}:{FR[buf]+32+4*m+3}], v9 offset:{3584-512*m+64*ph}")
    A("s_waitcnt vmcnt(0)")
    A("s_barrier")
    prods = sorted([(m, e) for m in range(8) for e in range(8) if m + e <= 7], key=lambda p: (max(p), p))
    for i in range(14): rd(0, 0, i)
    for ph in range(4):
        buf = ph & 1
        nxt = list(range(16)) if ph < 3 else []
        pend0 = [14, 15] if ph == 0 else []
        if ph > 0: A("s_waitcnt lgkmcnt(0)")
        lasts = -1
        issued0 = 14
        for n, (m, e) in enumerate(prods):
            sidx = max(m, e)
            if ph == 0 and sidx != lasts:
                if sidx == 1:
                    for i in pend0: rd(0, 0, i)
                    issued0 = 16
                if sidx <= 4:
                    A(f"s_waitcnt lgkmcnt({issued0 - (2*sidx+2)})")
                elif sidx == 5:
                    A("s_waitcnt lgkmcnt(0)")
                lasts = sidx
            c = m + e
            A(f"v_mfma_f32_16x16x32_bf16 v[{ACC+4*c}:{ACC+4*c+3}], v[{FR[buf]+4*m}:{FR[buf]+4*m+3}], v[{FR[buf]+32+4*e}:{FR[buf]+32+4*e+3}], v[{ACC+4*c}:{ACC+4*c+3}]")
            if nxt and (ph > 0 or sidx >= 5):
                cnt = 1 if ph > 0 else 2
                if ph > 0 and n % 2 == 1: cnt = 0
                for _ in range(cnt):
                    if nxt and (16 - len(nxt)) < 15: rd(buf ^ 1, ph + 1, nxt.pop(0))
        if nxt:
            A("s_waitcnt lgkmcnt(4)")
            while nxt: rd(buf ^ 1, ph + 1, nxt.pop(0))
    A(f"s_lshl_b32 s33, s20, 13")
    A(f"s_add_u32 s33, s33, {XB}")
    A("v_add_u32 v14, s33, v3")
    A("s_lshl_b32 s33, s20, 11")
    A(f"s_add_u32 s33, s33, {XB}")
    A("v_add_u32 v15, s33, v3")
    for c in range(8):
        A(f"ds_write_b128 v14, v[{ACC+4*c}:{ACC+4*c+3}] offset:{1024*c}")
    A("s_lshl_b32 s33, s20, 10")
    A(f"s_add_u32 s33, s33, {3*XNT_STRIDE + 48}")
    A("v_lshl_add_u32 v16, v13, 1, s33")
    A("s_waitcnt lgkmcnt(0)")
    A("s_barrier")
    for src in range(4):
        for j in range(2):
            A(f"ds_read_b128 v[{64+8*src+4*j}:{64+8*src+4*j+3}], v15 offset:{8192*src+1024*j}")
    for ch in range(2):
        for j in range(2):
            A(f"ds_read_b64 v[{96+4*ch+2*j}:{96+4*ch+2*j+1}], v16 offset:{USZ*ch+512*j}")
    A("s_lshl_b32 s34, s30, 16")
    A("s_and_b32 s35, s30, 0xffff0000")
    A("s_mov_b32 s36, 0xffff0000")
    A("s_lshl_b32 s37, s2, 13")
    A("s_lshl_b32 s33, s20, 11")
    A("s_add_u32 s37, s37, s33")
    A(f"s_add_u32 s37, s37, {WS_ZP}")
    A("v_lshlrev_b32 v17, 2, v13")
    A("s_waitcnt lgkmcnt(0)")
    for i in range(8):
        A(f"v_add_f32 v{64+i}, v{64+i}, v{72+i}")
        A(f"v_add_f32 v{80+i}, v{80+i}, v{88+i}")
    for i in range(8):
        A(f"v_cvt_pk_bf16_f32 v{104+i}, v{64+i}, v{80+i}")
    for ch in range(2):
        for i in range(4):
            A(f"v_lshlrev_b32 v{64+16*ch+2*i}, 16, v{96+4*ch+i}")
            A(f"v_and_b32 v{64+16*ch+2*i+1}, s36, v{96+4*ch+i}")
    for ch in range(2):
        for i in range(8):
            A(f"v_mul_f32 v{64+16*ch+i}, s{34+ch}, v{64+16*ch+i}")
    for i in range(8):
        A(f"v_cvt_pk_bf16_f32 v{112+i}, v{64+i}, v{80+i}")
    for i in range(8):
        A(f"v_lshlrev_b32 v{64+i}, 16, v{104+i}")
        A(f"v_and_b32 v{80+i}, s36, v{104+i}")
        A(f"v_lshlrev_b32 v{72+i}, 16, v{112+i}")
        A(f"v_and_b32 v{88+i}, s36, v{112+i}")
    for i in range(8):
        A(f"v_add_f32 v{64+i}, v{64+i}, v{72+i}")
        A(f"v_add_f32 v{80+i}, v{80+i}, v{88+i}")
    for i in range(8):
        A(f"v_cvt_pk_bf16_f32 v{104+i}, v{64+i}, v{80+i}")
    A("buffer_store_dwordx4 v[104:107], v17, s[8:11], s37 offen")
    A("buffer_store_dwordx4 v[108:111], v17, s[8:11], s37 offen offset:1024")
    A(f"{k}_done:")
    A("s_endpgm")
    A.end_kernel(k, vgpr=192, sgpr=48)
    A.launch(k, (256,1,1), (256,1,1), LDS)

def gen_g1(A):
    k = "g1_kernel"
    A.begin_kernel(k)
    A(f"""
s_cmp_ge_u32 s2, 224
s_cbranch_scc1 {k}_done
s_load_dwordx2 s[4:5], s[0:1], {ARG['w1']}
s_load_dwordx2 s[6:7], s[0:1], {ARG['ws']}
v_lshrrev_b32 v1, 6, v0
v_and_b32 v2, 63, v0
v_readfirstlane_b32 s20, v1       ; w
s_and_b32 s21, s2, 7              ; xcd
s_lshr_b32 s22, s2, 3             ; idx 0..27
s_lshr_b32 s23, s21, 1
s_lshl_b32 s23, s23, 2
s_and_b32 s24, s22, 3
s_add_u32 s23, s23, s24           ; rb
s_and_b32 s24, s21, 1
s_mul_i32 s24, s24, 7
s_lshr_b32 s25, s22, 2
s_add_u32 s24, s24, s25           ; ct
v_lshrrev_b32 v3, 3, v2
v_and_b32 v4, 7, v2
v_lshrrev_b32 v5, 1, v3
v_xor_b32 v4, v4, v5
v_lshlrev_b32 v4, 4, v4
v_lshl_add_u32 v4, v3, 10, v4     ; even j
v_xor_b32 v5, 64, v4              ; odd j
v_lshrrev_b32 v3, 4, v2
v_and_b32 v6, 15, v2
v_lshlrev_b32 v7, 2, v3
v_xor_b32 v6, v6, v7
v_lshlrev_b32 v6, 4, v6
v_mul_u32_u24 v7, 3584, v3
v_add_u32 v6, v6, v7
s_lshl_b32 s26, s23, 17           ; rb*128*1024
s_lshl_b32 s27, s20, 15           ; w*32*1024
s_add_u32 s26, s26, s27
s_add_u32 s26, s26, {WS_XN}
s_mul_i32 s27, s20, {16*3584}
s_lshl_b32 s28, s24, 8
s_add_u32 s27, s27, s28
s_lshl_b32 s28, s20, 12
s_waitcnt lgkmcnt(0)
""")
    srd(A, 8, 4, 512 * 3584)
    srd(A, 12, 6, WS_BYTES)
    def issue(st):
        slot = (st & 3) * 32768
        for j in range(4):
            A(f"s_add_u32 m0, s28, {slot + 1024*j}")
            A(f"s_add_u32 s29, s26, {8192*j + 128*st}")
            A(f"buffer_load_dwordx4 v{4 + (j&1)}, s[12:15], s29 offen lds")
        for j in range(4):
            A(f"s_add_u32 m0, s28, {slot + 16384 + 1024*j}")
            A(f"s_add_u32 s29, s27, {(64*st + 4*j)*3584}")
            A(f"buffer_load_dwordx4 v6, s[8:11], s29 offen lds")
    for st in range(4): issue(st)
    A(f"""
s_and_b32 s30, s20, 1             ; wl
s_lshr_b32 s31, s20, 1            ; wf
v_and_b32 v3, 31, v2              ; lr
v_lshrrev_b32 v7, 5, v2           ; h
v_bfe_u32 v8, v2, 1, 3            ; sw
s_lshl_b32 s32, s30, 13           ; wl*64*128
v_lshlrev_b32 v9, 7, v3
v_add_u32 v9, s32, v9
""")
    VB = 10
    for ks in range(4):
        A(f"v_add_u32 v{VB+ks}, {2*ks}, v7")
        A(f"v_xor_b32 v{VB+ks}, v{VB+ks}, v8")
        A(f"v_lshl_add_u32 v{VB+ks}, v{VB+ks}, 4, v9")
        A(f"v_add_u32 v{VB+4+ks}, 0x10000, v{VB+ks}")
    VA = 18
    A(f"""
v_bfe_u32 v22, v2, 2, 2           ; r
v_and_b32 v23, 3, v2              ; c
v_bfe_u32 v24, v2, 4, 1           ; g16
v_lshl_add_u32 v25, v7, 3, v22    ; 8h + r
v_lshlrev_b32 v25, 8, v25
v_lshl_add_u32 v25, v24, 5, v25
v_lshl_add_u32 v25, v23, 3, v25
v_add_u32 v25, 16384, v25
s_lshl_b32 s33, s31, 1
""")
    for u in range(2):
        A(f"s_add_u32 s34, s33, {u}")
        A(f"v_xor_b32 v{VA+u}, s34, v22")
        A(f"v_lshl_add_u32 v{VA+u}, v{VA+u}, 6, v25")
        A(f"v_add_u32 v{VA+2+u}, 0x10000, v{VA+u}")
    ACC = 64
    for r in range(64): A(f"v_mov_b32 v{ACC+r}, 0")
    FB = [32, 48]
    def rdfr(st, ks, buf):
        hi = (st & 3) >= 2
        so = (st & 1) * 32768
        b = FB[buf]
        for t in range(2):
            A(f"ds_read_b128 v[{b+4*t}:{b+4*t+3}], v{VB+(4 if hi else 0)+ks} offset:{so+4096*t}")
        for u in range(2):
            for rd in range(2):
                A(f"ds_read_b64_tr_b16 v[{b+8+4*u+2*rd}:{b+8+4*u+2*rd+1}], v{VA+(2 if hi else 0)+u} offset:{so+4096*ks+1024*rd}")
    for st in range(8):
        vm = 24 if st == 0 else (16 if st <= 5 else (8 if st == 6 else 0))
        A(f"s_waitcnt vmcnt({vm})")
        A("s_barrier")
        rdfr(st, 0, 0)
        if 1 <= st <= 4: issue(st + 3)
        for ks in range(4):
            buf = ks & 1
            if ks < 3:
                rdfr(st, ks + 1, buf ^ 1)
                A("s_waitcnt lgkmcnt(6)")
            else:
                A("s_waitcnt lgkmcnt(0)")
            b = FB[buf]
            for u in range(2):
                for t in range(2):
                    d = ACC + 16 * (2 * u + t)
                    A(f"v_mfma_f32_32x32x16_bf16 v[{d}:{d+15}], v[{b+8+4*u}:{b+8+4*u+3}], v[{b+4*t}:{b+4*t+3}], v[{d}:{d+15}]")
    A(f"""
s_lshl_b32 s34, s23, 2
s_lshl_b32 s35, s30, 1
s_add_u32 s34, s34, s35
s_mul_i32 s34, s34, 112
s_lshl_b32 s35, s24, 3
s_add_u32 s34, s34, s35
s_lshl_b32 s35, s31, 2
s_add_u32 s34, s34, s35
s_lshl_b32 s34, s34, 10
s_add_u32 s34, s34, {WS_H}
s_add_u32 s35, s34, {112*1024}
v_lshlrev_b32 v3, 4, v2
""")
    for u in range(2):
        for t in range(2):
            d = ACC + 16 * (2 * u + t)
            for r in range(16): A(f"v_max_f32 v{d+r}, 0, v{d+r}")
            o = 32 + 8 * ((2*u+t) & 1)
            for i in range(8): A(f"v_cvt_pk_bf16_f32 v{o+i}, v{d+2*i}, v{d+2*i+1}")
            for e in range(2):
                A(f"buffer_store_dwordx4 v[{o+4*e}:{o+4*e+3}], v3, s[12:15], s{34+t} offen offset:{1024*(2*u+e)}")
    A(f"{k}_done:")
    A("s_endpgm")
    A.end_kernel(k, vgpr=128, sgpr=48)
    A.launch(k, (224,1,1), (256,1,1), 131072)

def gen_g2(A, PD=12):
    k = "g2_kernel"
    A.begin_kernel(k)
    RING = PD * 2048
    A(f"""
s_cmp_ge_u32 s2, 256
s_cbranch_scc1 {k}_done
s_load_dwordx2 s[4:5], s[0:1], {ARG['w2']}
s_load_dwordx2 s[6:7], s[0:1], {ARG['ws']}
s_load_dwordx2 s[40:41], s[0:1], {ARG['u']}
s_load_dwordx2 s[42:43], s[0:1], {ARG['out']}
v_lshrrev_b32 v1, 6, v0
v_and_b32 v2, 63, v0
v_readfirstlane_b32 s20, v1       ; w
s_and_b32 s21, s2, 7
s_lshr_b32 s22, s2, 3
s_lshr_b32 s23, s21, 1
s_lshl_b32 s23, s23, 3
s_and_b32 s24, s22, 7
s_add_u32 s23, s23, s24
s_and_b32 s24, s21, 1
s_lshl_b32 s24, s24, 2
s_lshr_b32 s25, s22, 3
s_add_u32 s24, s24, s25           ; dtb
v_lshlrev_b32 v3, 4, v2           ; lane*16
v_lshrrev_b32 v4, 3, v2           ; row
v_and_b32 v5, 7, v2
v_bfe_u32 v6, v2, 4, 1            ; (row>>1)&1
v_lshlrev_b32 v6, 2, v6
v_xor_b32 v5, v5, v6
v_lshlrev_b32 v5, 4, v5
v_lshl_add_u32 v4, v4, 10, v5
; h base
s_mul_i32 s26, s23, 224
s_mul_i32 s27, s20, 28
s_add_u32 s26, s26, s27
s_lshl_b32 s26, s26, 10
s_add_u32 s26, s26, {WS_H}        ; t=0
s_add_u32 s27, s26, {112*1024}    ; t=1
; w2 base
s_mul_i32 s28, s20, {28*16*1024}
s_lshl_b32 s29, s24, 7
s_add_u32 s28, s28, s29
s_mul_i32 s30, s20, {RING}
s_and_b32 s31, s20, 1
s_lshr_b32 s32, s20, 1
v_and_b32 v6, 31, v2              ; l
v_lshrrev_b32 v7, 5, v2           ; h
s_lshl_b32 s33, s23, 6
s_lshl_b32 s34, s32, 5
s_add_u32 s33, s33, s34
s_lshl_b32 s34, s24, 6
s_lshl_b32 s35, s31, 5
s_add_u32 s34, s34, s35           ; d base
s_lshl_b32 s35, s33, 10
s_lshl_b32 s36, s34, 1
s_add_u32 s35, s35, s36
v_lshlrev_b32 v8, 10, v6
v_lshl_add_u32 v8, v7, 3, v8      ; l*1024 + h*8
s_lshl_b32 s36, s34, 12           ; (d/2)*8192
s_lshl_b32 s37, s33, 2
s_add_u32 s36, s36, s37
s_add_u32 s36, s36, {WS_ZP}
v_lshlrev_b32 v9, 2, v6
v_lshl_add_u32 v9, v7, 14, v9     ; l*4 + h*2*8192
s_waitcnt lgkmcnt(0)
""")
    srd(A, 8, 4, 1792 * 1024)
    srd(A, 12, 6, WS_BYTES)
    srd(A, 44, 40, 2048 * 1024)
    srd(A, 48, 42, 2048 * 1024)
    XR = 16; ZR = 24
    for g in range(4):
        A(f"buffer_load_dwordx2 v[{XR+2*g}:{XR+2*g+1}], v8, s[44:47], s35 offen offset:{16*g}")
    for g in range(4):
        for j in range(2):
            A(f"s_add_u32 s38, s36, {(4*g+j)*8192}")
            A(f"buffer_load_dword v{ZR+2*g+j}, v9, s[12:15], s38 offen")
    HR = 128
    def issue(st):
        sl = st % PD
        for j in range(2):
            A(f"s_add_u32 m0, s30, {sl*2048 + 1024*j}")
            A(f"s_add_u32 s38, s28, {(16*st + 8*j)*1024}")
            A(f"buffer_load_dwordx4 v4, s[8:11], s38 offen lds")
        for t in range(2):
            if st % 4 == 0 and st > 0:
                A(f"s_add_u32 s{26+t}, s{26+t}, 4096")
            A(f"buffer_load_dwordx4 v[{HR+8*sl+4*t}:{HR+8*sl+4*t+3}], v3, s[12:15], s{26+t} offen offset:{1024*(st%4)}")
    for st in range(PD): issue(st)
    A(f"""
v_bfe_u32 v10, v2, 2, 2           ; r
v_and_b32 v11, 3, v2              ; c
v_bfe_u32 v12, v2, 4, 1           ; g16
v_lshl_add_u32 v13, v7, 2, v10    ; 4h + r
v_lshlrev_b32 v13, 7, v13
v_lshl_add_u32 v13, v12, 5, v13
v_lshl_add_u32 v13, v11, 3, v13
v_add_u32 v13, s30, v13
v_lshrrev_b32 v10, 1, v10         ; r>>1
v_lshl_add_u32 v14, v10, 6, v13   ; u=0: unit = r>>1
v_xor_b32 v10, 1, v10
v_lshl_add_u32 v15, v10, 6, v13   ; u=1
""")
    ACC = 64
    for r in range(64): A(f"v_mov_b32 v{ACC+r}, 0")
    AF = [32, 40]
    def rdA(st, buf):
        sl = st % PD
        for u in range(2):
            for rd in range(2):
                A(f"ds_read_b64_tr_b16 v[{AF[buf]+4*u+2*rd}:{AF[buf]+4*u+2*rd+1}], v{14+u} offset:{sl*2048+1024*rd}")
    NS = 28
    def outstanding_after(issued_upto, need):
        return 4 * (issued_upto - need)
    A(f"s_waitcnt vmcnt({outstanding_after(PD-1, 0)})")
    rdA(0, 0)
    for st in range(NS):
        buf = st & 1
        issued = min(NS - 1, st + PD - 1)
        if st + 1 < NS:
            A(f"s_waitcnt vmcnt({outstanding_after(issued, st+1)})")
            rdA(st + 1, buf ^ 1)
            A("s_waitcnt lgkmcnt(4)")
        else:
            A("s_waitcnt lgkmcnt(0)")
        sl = st % PD
        for u in range(2):
            for t in range(2):
                d = ACC + 16 * (2 * t + u)
                A(f"v_mfma_f32_32x32x16_bf16 v[{d}:{d+15}], v[{AF[buf]+4*u}:{AF[buf]+4*u+3}], v[{HR+8*sl+4*t}:{HR+8*sl+4*t+3}], v[{d}:{d+15}]")
        if st + PD < NS: issue(st + PD)
    A("v_add_u32 v10, s30, v3")
    for q in range(4):
        for i in range(4):
            d = ACC + 16 * q + 4 * i
            A(f"ds_write_b128 v10, v[{d}:{d+3}] offset:{4096*q + 1024*i}")
    A("s_lshl_b32 s38, s20, 12")
    A("v_add_u32 v11, s38, v3")
    A(f"v_add_u32 v12, {2*RING}, v11")
    A("s_waitcnt lgkmcnt(0)")
    A("s_barrier")
    for src in range(4):
        for i in range(4):
            d = ACC + 16 * src + 4 * i
            A(f"ds_read_b128 v[{d}:{d+3}], v{11 + (src>>1)} offset:{(src&1)*RING + 1024*i}")
        if src == 2: A("s_waitcnt lgkmcnt(4)")
    A("s_mov_b32 s39, 0xffff0000")
    for i in range(8):
        A(f"v_lshlrev_b32 v{32+2*i}, 16, v{XR+i}")
        A(f"v_and_b32 v{32+2*i+1}, s39, v{XR+i}")
        A(f"v_lshlrev_b32 v{48+2*i}, 16, v{ZR+i}")
        A(f"v_and_b32 v{48+2*i+1}, s39, v{ZR+i}")
    for i in range(16): A(f"v_add_f32 v{32+i}, v{32+i}, v{48+i}")
    for i in range(8): A(f"v_cvt_pk_bf16_f32 v{XR+i}, v{32+2*i}, v{32+2*i+1}")
    for i in range(8):
        A(f"v_lshlrev_b32 v{32+2*i}, 16, v{XR+i}")
        A(f"v_and_b32 v{32+2*i+1}, s39, v{XR+i}")
    A("s_waitcnt lgkmcnt(0)")
    for i in range(16):
        A(f"v_add_f32 v{ACC+i}, v{ACC+i}, v{ACC+16+i}")
        A(f"v_add_f32 v{ACC+32+i}, v{ACC+32+i}, v{ACC+48+i}")
    for i in range(16): A(f"v_add_f32 v{ACC+i}, v{ACC+i}, v{ACC+32+i}")
    for i in range(8): A(f"v_cvt_pk_bf16_f32 v{ZR+i}, v{ACC+2*i}, v{ACC+2*i+1}")
    for i in range(8):
        A(f"v_lshlrev_b32 v{48+2*i}, 16, v{ZR+i}")
        A(f"v_and_b32 v{48+2*i+1}, s39, v{ZR+i}")
    for i in range(16): A(f"v_add_f32 v{32+i}, v{32+i}, v{48+i}")
    for i in range(8): A(f"v_cvt_pk_bf16_f32 v{XR+i}, v{32+2*i}, v{32+2*i+1}")
    for g in range(4):
        A(f"buffer_store_dwordx2 v[{XR+2*g}:{XR+2*g+1}], v8, s[48:51], s35 offen offset:{16*g}")
    A(f"{k}_done:")
    A("s_endpgm")
    A.end_kernel(k, vgpr=HR + 8 * PD, sgpr=56)
    A.launch(k, (256,1,1), (256,1,1), 4 * RING)

def build(parts, path):
    A = Asm()
    for p in parts:
        p(A)
    A.lines, n = hazard.fix(A.lines)
    hdr = open("cdna_kernels/" + NAME + ".s.ref").read().split("; Override launch")[0]
    open(path, "w").write(A.text(hdr))
    return n

if __name__ == "__main__":
    import sys
    n = build([gen_ln, gen_kgen, gen_conv, gen_g1, gen_g2], "base.s")
    print("nops inserted", n)
```

```python
from gen import *
import hazard, sys

WS_XNT = 0x200000
XNT_STRIDE = 4160
KIMG_STRIDE = 9216
KCOPY = 4640
WS_ZP = 0xA00000
WS_H = 0xC00000
WS_STAT = 0x0
WS_FLG = 0x10000
FX, FH, FZ, FS, EPOCH = WS_FLG, WS_FLG + 0x1000, WS_FLG + 0x2000, WS_FLG + 0x3000, WS_FLG + 0x4000
WS_BYTES = 0x10000000
WS_STAMP = 0x2000000
LOG2E = 0x3fb8aa3b
INV2PI = 0x3e22f983
SPIN_MAX = 200000
K = NAME + "_kernel"

P_U, P_LAR, P_AIM, P_CRE, P_CIM, P_LDT, P_DSK = 36, 38, 40, 42, 44, 46, 48
P_W1, P_W2, P_OUT, P_DBG, P_WS = 52, 54, 56, 58, 60
TOK = 62
WSRD = 4

class Opt:
    stamps = False
    x_fl = ""
    w1_fl = ""
    w2_fl = ""
    rot1 = True
    rot2 = True
    warm_w2 = False
O = Opt()

def stamp(A, i, real=False):
    if O.stamps:
        A(f"{'s_memrealtime' if real else 's_memtime'} s[{64+2*i}:{65+2*i}]")
def stampw(A, i):
    if O.stamps:
        A("s_waitcnt lgkmcnt(0)"); stamp(A, i); A("s_waitcnt lgkmcnt(0)")
def stamp_out(A, n):
    if not O.stamps: return
    A("s_mov_b64 exec, -1")
    A("s_waitcnt vmcnt(0) lgkmcnt(0)")
    stamp(A, n); stamp(A, n + 1, real=True)
    A("s_waitcnt lgkmcnt(0)")
    A("v_lshrrev_b32 v1, 6, v0")
    A(f"s_mul_i32 s100, s2, 256")
    A(f"s_add_u32 s100, s100, {WS_STAMP}")
    A("v_lshlrev_b32 v1, 6, v1")
    A("v_add_u32 v1, s100, v1")
    for i in range(n + 2):
        A(f"v_mov_b32 v2, s{64+2*i}")
        A(f"global_store_dword v1, v2, s[{P_WS}:{P_WS+1}] offset:{4*i}")
    A("s_waitcnt vmcnt(0)")

def srd(A, d, p, nbytes):
    A(f"s_mov_b32 s{d}, s{p}")
    A(f"s_mov_b32 s{d+1}, s{p+1}")
    A(f"s_mov_b32 s{d+2}, {nbytes}")
    A(f"s_mov_b32 s{d+3}, 0x00020000")

def dpp_sum(A, regs):
    for ctl in ("row_shr:1 row_mask:0xf", "row_shr:2 row_mask:0xf", "row_shr:4 row_mask:0xf", "row_shr:8 row_mask:0xf",
                "row_bcast:15 row_mask:0xa", "row_bcast:31 row_mask:0xc"):
        for r in regs:
            bc = " bound_ctrl:0" if "shr" in ctl else ""
            A(f"v_add_f32_dpp v{r}, v{r}, v{r} {ctl} bank_mask:0xf{bc}")

def bf16_round(A, dst, src):
    A(f"v_cvt_pk_bf16_f32 v{dst}, v{src}, v{src}")
    A(f"v_lshlrev_b32 v{dst}, 16, v{dst}")

class VM:
    def __init__(self, A): self.A = A; self.ops = []
    def op(self, txt, tag): self.A(txt); self.ops.append(tag)
    def wait(self, *tags):
        idx = max((i for i, t in enumerate(self.ops) if t in tags), default=-1)
        if idx < 0: return
        n = len(self.ops) - 1 - idx
        assert n <= 63, n
        self.A(f"s_waitcnt vmcnt({n})")
        self.ops = self.ops[idx + 1:]
    def drain(self):
        self.A("s_waitcnt vmcnt(0)"); self.ops = []

def poll_loop(A, name, load, cmp_regs, tokv, cnt):
    A(f"s_mov_b32 s{cnt}, 0")
    A(f"{name}_poll:")
    A(load)
    A(f"s_add_u32 s{cnt}, s{cnt}, 1")
    A("s_waitcnt vmcnt(0)")
    check(A, cmp_regs, tokv)
    A(f"s_cbranch_vccz {name}_ok")
    A(f"s_cmp_gt_u32 s{cnt}, {SPIN_MAX}")
    A(f"s_cbranch_scc1 {name}_ok")
    A("s_sleep 2")
    A(f"s_branch {name}_poll")
    A(f"{name}_ok:")

def check(A, regs, tokv, tmp=None):
    if len(regs) == 1:
        A(f"v_cmp_ne_u32 vcc, v{regs[0]}, v{tokv}")
        return
    t = tmp if tmp is not None else 255
    A(f"v_xor_b32 v{t}, v{regs[0]}, v{tokv}")
    for r in regs[1:]:
        A(f"v_xor_b32 v{t-1}, v{r}, v{tokv}")
        A(f"v_or_b32 v{t}, v{t}, v{t-1}")
    A(f"v_cmp_ne_u32 vcc, 0, v{t}")

def gen_S(A):
    UB = 0; USZ = 17408
    KB = 2 * USZ + 64
    PAR = KB + 2 * KIMG_STRIDE
    XCH = PAR + 4352
    TBL = XCH + 8192 + 64
    XSL = TBL + 2 * 1344
    assert XSL + 8192 <= 81920
    XB = 0
    vm = VM(A)
    A("S_role:")
    A(f"""
s_sub_u32 s3, s2, 256            ; b
v_lshrrev_b32 v1, 6, v0          ; wave
v_and_b32 v2, 63, v0             ; lane
v_readfirstlane_b32 s20, v1
s_lshr_b32 s21, s20, 1           ; ch
s_and_b32 s22, s20, 1
s_lshl_b32 s23, s3, 1
s_add_u32 s23, s23, s21          ; d
s_and_b32 s24, s3, 7             ; xcd
s_lshr_b32 s25, s3, 3            ; j
s_lshl_b32 s16, s24, 8
s_lshl_b32 s17, s25, 3
s_add_u32 s16, s16, s17          ; LN r0
s_lshl_b32 s17, s20, 1
s_add_u32 s16, s16, s17
s_lshl_b32 s18, s16, 10
s_lshl_b32 s26, s24, 1
s_lshr_b32 s27, s25, 4
s_add_u32 s26, s26, s27
s_and_b32 s27, s25, 15           ; sl
v_lshlrev_b32 v3, 4, v2          ; lane*16
v_lshrrev_b32 v4, 2, v2
v_and_b32 v5, 3, v2
v_lshlrev_b32 v5, 4, v5
v_lshl_add_u32 v4, v4, 10, v5
s_lshl_b32 s28, s26, 17
s_lshl_b32 s29, s20, 15
s_add_u32 s28, s28, s29
s_lshl_b32 s29, s27, 6
s_add_u32 s28, s28, s29
s_lshl_b32 s29, s20, 11
s_add_u32 s29, s29, {XSL}
s_lshl_b32 s30, s23, 8
s_lshl_b32 s31, s22, 7
s_add_u32 s30, s30, s31
v_lshlrev_b32 v6, 1, v2
v_add_u32 v6, s30, v6
s_lshl_b32 s31, s23, 1
v_mov_b32 v7, s31
s_lshl_b32 s19, s3, 2
s_waitcnt lgkmcnt(0)
s_load_dword s{TOK}, s[{P_WS}:{P_WS+1}], {EPOCH}
s_load_dword s63, s[{P_DSK}:{P_DSK+1}], s19
""")
    srd(A, 8, P_U, 2048 * 1024)
    srd(A, WSRD, P_WS, WS_BYTES)
    vm.op("buffer_load_dwordx4 v[8:11], v3, s[8:11], s18 offen", "x8")
    vm.op("buffer_load_dwordx4 v[12:15], v3, s[8:11], s18 offen offset:1024", "x8")
    for i, p in enumerate((P_LAR, P_AIM, P_CRE, P_CIM)):
        vm.op(f"global_load_ushort v{60+i}, v6, s[{p}:{p+1}]", "par")
    vm.op(f"global_load_ushort v64, v7, s[{P_LDT}:{P_LDT+1}]", "par")
    for j in range(2):
        A(f"s_add_u32 m0, s29, {1024*j}")
        A(f"s_add_u32 s31, s28, {16384*j}")
        vm.op("buffer_load_dwordx4 v4, s[8:11], s31 offen lds", "xsl")
    A("s_mov_b32 s19, 0xffff0000")
    A("v_mov_b32 v40, 0x3b000000")
    vm.wait("x8")
    stamp(A, 2)
    X = [16, 24]
    for r in range(2):
        for i in range(4):
            A(f"v_lshlrev_b32 v{X[r]+2*i}, 16, v{8+4*r+i}")
            A(f"v_and_b32 v{X[r]+2*i+1}, s19, v{8+4*r+i}")
    S = [32, 33]
    for r in range(2): A(f"v_add_f32 v{S[r]}, v{X[r]}, v{X[r]+1}")
    for i in range(2, 8):
        for r in range(2): A(f"v_add_f32 v{S[r]}, v{S[r]}, v{X[r]+i}")
    dpp_sum(A, S)
    for r in range(2): A(f"v_readlane_b32 s{12+r}, v{S[r]}, 63")
    M = [34, 35]
    for r in range(2): A(f"v_mul_f32 v{M[r]}, s{12+r}, v40")
    for i in range(8):
        for r in range(2): A(f"v_sub_f32 v{X[r]+i}, v{X[r]+i}, v{M[r]}")
    for r in range(2): A(f"v_mul_f32 v{S[r]}, v{X[r]}, v{X[r]}")
    for i in range(1, 8):
        for r in range(2): A(f"v_fmac_f32 v{S[r]}, v{X[r]+i}, v{X[r]+i}")
    dpp_sum(A, S)
    for r in range(2): A(f"v_readlane_b32 s{14+r}, v{S[r]}, 63")
    V = [36, 37]
    for r in range(2): A(f"v_mul_f32 v{V[r]}, s{14+r}, v40")
    for r in range(2): bf16_round(A, V[r], V[r])
    for r in range(2): A(f"v_add_f32 v{V[r]}, 0x3727c5ac, v{V[r]}")
    for r in range(2): bf16_round(A, V[r], V[r])
    for r in range(2): A(f"v_sqrt_f32 v{V[r]}, v{V[r]}")
    A("s_waitcnt lgkmcnt(0)")
    A(f"s_mul_i32 s{TOK}, s{TOK}, 0x9e3779b1")
    A(f"s_add_u32 s{TOK}, s{TOK}, 0x7f4a7c15")
    A(f"v_cvt_pk_bf16_f32 v44, v{V[0]}, v{M[0]}")
    A(f"v_mov_b32 v45, s{TOK}")
    A(f"v_cvt_pk_bf16_f32 v46, v{V[1]}, v{M[1]}")
    A(f"v_mov_b32 v47, s{TOK}")
    A("s_lshl_b32 s17, s16, 3")
    A(f"s_add_u32 s17, s17, {WS_STAT}")
    A("v_mov_b32 v48, 0")
    A("s_mov_b64 exec, 1")
    vm.op(f"buffer_store_dwordx4 v[44:47], v48, s[{WSRD}:{WSRD+3}], s17 offen sc1", "stat")
    A("s_mov_b64 exec, -1")
    stamp(A, 3)
    A(f"""
s_mov_b32 s12, {LOG2E}
s_mov_b32 s13, {INV2PI}
s_mul_i32 s14, s20, 1088
s_add_u32 s14, s14, {PAR}
v_lshrrev_b32 v5, 4, v2           ; kq
v_and_b32 v6, 15, v2              ; i
v_lshl_add_u32 v7, v5, 4, v3
v_add_u32 v7, s14, v7
v_mul_u32_u24 v13, 272, v5
v_add_u32 v13, s14, v13
v_add_u32 v14, 1, v6
v_cvt_f32_u32 v15, v14
v_cmp_eq_u32 s[30:31], 15, v6
""")
    vm.wait("par")
    for i in range(5): A(f"v_lshlrev_b32 v{60+i}, 16, v{60+i}")
    A("v_mul_f32 v60, s12, v60\nv_mul_f32 v64, s12, v64\nv_exp_f32 v60, v60\nv_exp_f32 v64, v64")
    bf16_round(A, 60, 60); bf16_round(A, 64, 64)
    A("""
v_mul_f32 v16, v60, v64
v_mul_f32 v17, v61, v64
v_mul_f32 v18, v62, v64
v_mul_f32 v19, v63, v64
v_mul_f32 v16, s12, v16
v_sub_f32 v16, 0, v16
v_mul_f32 v17, s13, v17
v_add_f32 v18, v18, v18
v_add_f32 v19, v19, v19
ds_write_b128 v7, v[16:19]
v_mov_b32 v20, v18
""")
    dpp_sum(A, [20])
    A("v_readlane_b32 s15, v20, 63")
    A("s_waitcnt lgkmcnt(0)")
    P = 32
    for m in range(16):
        A(f"ds_read_b128 v[{P+4*m}:{P+4*m+3}], v13 offset:{16*m}")
        if m == 7: A("s_waitcnt lgkmcnt(4)")
    Dacc = 96
    for r in range(16): A(f"v_mov_b32 v{Dacc+r}, 0")
    T = 112; L = 120; H = 136; t_ = 144
    A(f"v_mov_b32 v16, s{TOK}")
    A("s_waitcnt lgkmcnt(0)")
    def sq():
        for j in range(4): A(f"v_mul_f32 v{t_+j}, v{T+4+j}, v{T+4+j}")
        for j in range(4): A(f"v_mul_f32_e64 v{T+4+j}, v{T+j}, v{T+4+j} mul:2")
        for j in range(4): A(f"v_fma_f32 v{T+j}, v{T+j}, v{T+j}, -v{t_+j}")
    def group(g):
        pj = [P + 4 * (4 * g + j) for j in range(4)]
        for j in range(4): A(f"v_mul_f32 v{t_+j}, v{pj[j]}, v15")
        for j in range(4): A(f"v_mul_f32 v{t_+4+j}, v{pj[j]+1}, v15")
        for j in range(4): A(f"v_exp_f32 v{t_+j}, v{t_+j}")
        for j in range(4): A(f"v_fract_f32 v{t_+4+j}, v{t_+4+j}")
        for j in range(4): A(f"v_cos_f32 v{T+j}, v{t_+4+j}")
        for j in range(4): A(f"v_sin_f32 v{T+4+j}, v{t_+4+j}")
        for j in range(4): A(f"v_mul_f32 v{T+j}, v{T+j}, v{t_+j}")
        for j in range(4): A(f"v_mul_f32 v{T+4+j}, v{T+4+j}, v{t_+j}")
        for sgm in range(4):
            for j in range(4): A(f"v_cvt_pk_bf16_f32 v{L+4*sgm+j}, v{T+j}, v{T+4+j}")
            sq()
        for j in range(4):
            A(f"v_cndmask_b32_e64 v{T+j}, v{T+j}, 1.0, s[30:31]")
            A(f"v_cndmask_b32_e64 v{T+4+j}, v{T+4+j}, 0, s[30:31]")
        for sgm in range(4):
            Hh = H + 4 * (sgm & 1)
            for j in range(4): A(f"v_mul_f32 v{t_+j}, v{pj[j]+3}, v{T+4+j}")
            for j in range(4): A(f"v_mul_f32 v{t_+4+j}, v{pj[j]+3}, v{T+j}")
            for j in range(4): A(f"v_fma_f32 v{t_+j}, v{pj[j]+2}, v{T+j}, -v{t_+j}")
            for j in range(4): A(f"v_fma_f32 v{t_+4+j}, -v{pj[j]+2}, v{T+4+j}, -v{t_+4+j}")
            for j in range(4): A(f"v_cvt_pk_bf16_f32 v{Hh+j}, v{t_+j}, v{t_+4+j}")
            if sgm < 3: sq()
            A(f"v_mfma_f32_16x16x32_bf16 v[{Dacc+4*sgm}:{Dacc+4*sgm+3}], v[{L+4*sgm}:{L+4*sgm+3}], v[{Hh}:{Hh+3}], v[{Dacc+4*sgm}:{Dacc+4*sgm+3}]")
    G = 160
    A("s_lshl_b32 s17, s26, 10")
    A("s_lshl_b32 s18, s20, 8")
    A("s_add_u32 s17, s17, s18")
    A(f"s_add_u32 s17, s17, {WS_STAT}")
    A("v_lshlrev_b32 v17, 6, v5")
    gload = "\n".join(f"buffer_load_dwordx4 v[{G+4*i}:{G+4*i+3}], v17, s[{WSRD}:{WSRD+3}], s17 offen offset:{16*i} sc1" for i in range(4))
    group(0)
    stamp(A, 4)
    vm.drain()
    poll_loop(A, "S_st", gload, [G + 1 + 2 * i for i in range(8)], 16, 12)
    stamp(A, 5)
    A("v_bfe_u32 v18, v2, 2, 2")
    A("v_lshl_add_u32 v18, v5, 3, v18")
    A("v_lshlrev_b32 v18, 6, v18")
    A("v_and_b32 v19, 3, v2")
    A("v_lshl_add_u32 v18, v19, 3, v18")
    A("v_add_u32 v18, s29, v18")
    XS = 176
    for c2 in range(2):
        for rd in range(2):
            A(f"ds_read_b64_tr_b16 v[{XS+4*c2+2*rd}:{XS+4*c2+2*rd+1}], v18 offset:{32*c2+256*rd}")
    MM = 184; RS = 192
    for i in range(8):
        A(f"v_and_b32 v{MM+i}, s19, v{G+2*i}")
        A(f"v_lshlrev_b32 v{RS+i}, 16, v{G+2*i}")
    for i in range(8): A(f"v_rcp_f32 v{RS+i}, v{RS+i}")
    A(f"v_mul_u32_u24 v19, {XNT_STRIDE}, v6")
    A("v_lshl_add_u32 v19, v5, 4, v19")
    A(f"s_mul_i32 s17, s27, {32*XNT_STRIDE}")
    A("s_lshl_b32 s18, s26, 8")
    A("s_add_u32 s17, s17, s18")
    A("s_lshl_b32 s18, s20, 6")
    A("s_add_u32 s17, s17, s18")
    A(f"s_add_u32 s17, s17, {WS_XNT + 64}")
    A(f"s_add_u32 s18, s17, {16*XNT_STRIDE}")
    A("s_waitcnt lgkmcnt(0)")
    E = 200
    for c2 in range(2):
        for i in range(4):
            A(f"v_lshlrev_b32 v{E+8*c2+2*i}, 16, v{XS+4*c2+i}")
            A(f"v_and_b32 v{E+8*c2+2*i+1}, s19, v{XS+4*c2+i}")
    for c2 in range(2):
        for i in range(8): A(f"v_sub_f32 v{E+8*c2+i}, v{E+8*c2+i}, v{MM+i}")
    for c2 in range(2):
        for i in range(4): A(f"v_cvt_pk_bf16_f32 v{XS+4*c2+i}, v{E+8*c2+2*i}, v{E+8*c2+2*i+1}")
    for c2 in range(2):
        for i in range(4):
            A(f"v_lshlrev_b32 v{E+8*c2+2*i}, 16, v{XS+4*c2+i}")
            A(f"v_and_b32 v{E+8*c2+2*i+1}, s19, v{XS+4*c2+i}")
    for c2 in range(2):
        for i in range(8): A(f"v_mul_f32 v{E+8*c2+i}, v{E+8*c2+i}, v{RS+i}")
    for c2 in range(2):
        for i in range(4): A(f"v_cvt_pk_bf16_f32 v{XS+4*c2+i}, v{E+8*c2+2*i}, v{E+8*c2+2*i+1}")
    for c2 in range(2):
        A(f"buffer_store_dwordx4 v[{XS+4*c2}:{XS+4*c2+3}], v19, s[{WSRD}:{WSRD+3}], s{17+c2} offen sc1")
    A("s_cmp_lg_u32 s26, 0")
    A("s_cbranch_scc1 S_nopad")
    A("s_cmp_gt_u32 s20, 1")
    A("s_cbranch_scc1 S_nopad")
    A("v_lshrrev_b32 v19, 2, v2")
    A(f"v_mul_u32_u24 v19, {XNT_STRIDE}, v19")
    A("v_and_b32 v18, 3, v2")
    A("v_lshl_add_u32 v19, v18, 4, v19")
    A("s_lshl_b32 s17, s27, 1")
    A("s_add_u32 s17, s17, s20")
    A(f"s_mul_i32 s17, s17, {16*XNT_STRIDE}")
    A(f"s_add_u32 s17, s17, {WS_XNT}")
    for i in range(4): A(f"v_mov_b32 v{E+i}, 0")
    A(f"buffer_store_dwordx4 v[{E}:{E+3}], v19, s[{WSRD}:{WSRD+3}], s17 offen sc1")
    A("S_nopad:")
    group(1)
    A("s_waitcnt vmcnt(0)")
    A("s_barrier")
    A("s_cmp_lg_u32 s20, 0")
    A("s_cbranch_scc1 S_nofx")
    A("s_lshl_b32 s17, s27, 7")
    A("s_lshl_b32 s18, s26, 2")
    A("s_add_u32 s17, s17, s18")
    A(f"s_add_u32 s17, s17, {FX}")
    A("v_mov_b32 v18, 0")
    A("s_mov_b64 exec, 1")
    A(f"buffer_store_dword v16, v18, s[{WSRD}:{WSRD+3}], s17 offen sc1")
    A("s_mov_b64 exec, -1")
    A("S_nofx:")
    stamp(A, 6)
    group(2)
    group(3)
    stamp(A, 7)
    A("s_lshr_b32 s17, s3, 4")
    A("s_lshl_b32 s17, s17, 7")
    A(f"s_add_u32 s17, s17, {FX}")
    A("v_lshlrev_b32 v18, 2, v6")
    poll_loop(A, "S_fx", f"buffer_load_dword v19, v18, s[{WSRD}:{WSRD+3}], s17 offen sc1", [19], 16, 12)
    stamp(A, 8)
    A(f"""
v_add_u32 v21, 4158, v3
v_cmp_gt_u32 vcc, 4, v2
v_cndmask_b32 v22, v3, v21, vcc
v_cmp_gt_u32 vcc, 8, v2
v_cndmask_b32 v23, v3, v21, vcc
v_cmp_gt_u32 vcc, 12, v2
v_cndmask_b32 v24, v3, v21, vcc
v_cmp_gt_u32 vcc, 16, v2
v_cndmask_b32 v25, v3, v21, vcc
s_mul_i32 s24, s23, {XNT_STRIDE}
s_add_u32 s24, s24, {WS_XNT + 10}
s_mul_i32 s26, s21, {USZ}
s_mul_i32 s27, s21, {KIMG_STRIDE}
s_add_u32 s27, s27, {KB}
s_mul_i32 s25, s22, 9216
s_add_u32 s25, s25, s26
v_add_u32 v26, s25, v3
""")
    UR = 160
    def ldU(j, slot):
        sig = j // 4
        vo = {4: 22, 8: 23, 12: 24, 16: 25}.get(j, 3)
        off = 1024 * j - 4158 * sig
        if off >= 0: A(f"s_add_u32 s17, s24, {off}")
        else: A(f"s_sub_u32 s17, s24, {-off}")
        A(f"buffer_load_dwordx4 v[{UR+4*slot}:{UR+4*slot+3}], v{vo}, s[{WSRD}:{WSRD+3}], s17 offen sc1")
    A("s_cmp_eq_u32 s22, 0")
    A("s_cbranch_scc0 S_u1")
    for j in range(0, 9): ldU(j, j)
    A("s_branch S_uld")
    A("S_u1:")
    for j in range(9, 17): ldU(j, j - 9)
    ldU(16, 8)
    A("S_uld:")
    A(f"""
s_lshl_b32 s28, s20, 11
s_add_u32 s28, s28, {XCH}
v_add_u32 v8, s28, v3
s_xor_b32 s28, s20, 1
s_lshl_b32 s28, s28, 11
s_add_u32 s28, s28, {XCH}
v_add_u32 v9, s28, v3
s_lshl_b32 s28, s20, 2
s_add_u32 s28, s28, {XCH+8192}
v_mov_b32 v10, s28
v_mov_b32 v11, s15
ds_write_b32 v10, v11
v_and_b32 v14, 15, v14
v_lshlrev_b32 v14, 5, v14
v_lshl_add_u32 v14, v5, 3, v14
s_mul_i32 s32, s21, 1344
s_add_u32 s32, s32, {TBL}
v_add_u32 v14, s32, v14
s_cmp_eq_u32 s22, 0
s_cbranch_scc0 S_mh1
""")
    for mh in range(2):
        if mh == 1: A("S_mh1:")
        keep = [2*mh, 2*mh+1]; send = [2-2*mh, 3-2*mh]
        for j in range(2):
            A(f"ds_write_b128 v8, v[{Dacc+4*send[j]}:{Dacc+4*send[j]+3}] offset:{1024*j}")
        A("s_waitcnt lgkmcnt(0)")
        A("s_barrier")
        for j in range(2): A(f"ds_read_b128 v[{32+4*j}:{32+4*j+3}], v9 offset:{1024*j}")
        if mh == 0: A("ds_read_b32 v40, v10 offset:4")
        A("s_waitcnt lgkmcnt(0)")
        for j in range(2):
            for r in range(4): A(f"v_add_f32 v{32+4*j+r}, v{32+4*j+r}, v{Dacc+4*keep[j]+r}")
            A(f"v_cvt_pk_bf16_f32 v{44+2*j}, v{32+4*j}, v{32+4*j+1}")
            A(f"v_cvt_pk_bf16_f32 v{44+2*j+1}, v{32+4*j+2}, v{32+4*j+3}")
        if mh == 0:
            A("v_add_f32 v40, s15, v40")
            A("v_cvt_pk_bf16_f32 v40, v40, v40")
            A("v_mov_b32 v41, s32")
            A("ds_write_b16 v41, v40 offset:6")
            A("ds_write_b64 v14, v[44:45] offset:8")
            A("s_mov_b32 exec_lo, 0x7f807f80\ns_mov_b32 exec_hi, 0x7f807f80")
            A("ds_write_b64 v14, v[46:47] offset:264")
        else:
            A("s_mov_b32 exec_lo, 0x7f807f80\ns_mov_b32 exec_hi, 0x7f807f80")
            A("ds_write_b64 v14, v[44:45] offset:520")
            A("ds_write_b64 v14, v[46:47] offset:776")
        A("s_mov_b64 exec, -1")
        if mh == 0: A("s_branch S_join")
    A("S_join:")
    A("v_and_b32 v27, 127, v0")
    A("v_lshlrev_b32 v4, 2, v27")
    A(f"s_sub_u32 s33, s32, {2*(0x4280-3)}")
    A("s_mov_b32 s34, 0xffff")
    AD = 48
    for jj in range(4):
        for e in range(4): A(f"v_add_u32 v{AD+4*jj+e}, {512*jj+e}, v4")
    for i in range(16): A(f"v_cvt_f32_u32 v{64+i}, v{AD+i}")
    for i in range(0, 16, 2): A(f"v_cvt_pk_bf16_f32 v{64+i}, v{64+i}, v{64+i+1}")
    for i in range(0, 16, 2):
        A(f"v_lshrrev_b32 v{64+i+1}, 16, v{64+i}")
        A(f"v_and_b32 v{64+i}, s34, v{64+i}")
    for e in range(4):
        A(f"v_min_u32 v{AD+e}, 128, v{AD+e}")
        A(f"v_add_u32 v{AD+e}, 0x4280, v{AD+e}")
        A(f"v_max_u32 v{64+e}, v{64+e}, v{AD+e}")
    for i in range(16): A(f"v_lshl_add_u32 v{64+i}, v{64+i}, 1, s33")
    A("v_mov_b32 v28, 0\nv_mov_b32 v29, 0")
    A("v_lshlrev_b32 v30, 3, v27")
    A("v_add_u32 v31, s27, v30")
    A("v_cmp_gt_u32 vcc, 69, v27")
    A("s_and_saveexec_b64 s[38:39], vcc".replace("38:39", "34:35") if False else "s_and_saveexec_b64 s[28:29], vcc")
    A("ds_write_b64 v31, v[28:29] offset:4088")
    A("s_mov_b64 exec, -1")
    A("v_cmp_gt_u32 vcc, 56, v27")
    A("s_and_saveexec_b64 s[28:29], vcc")
    A("ds_write_b64 v31, v[28:29] offset:8736")
    A("s_mov_b64 exec, -1")
    A("s_waitcnt lgkmcnt(0)")
    A("s_barrier")
    for i in range(16):
        A(f"ds_read_u16 v{80+i}, v{64+i}")
        if i == 11: A("s_waitcnt lgkmcnt(4)")
    A("v_sub_u32 v30, 1008, v30")
    A("v_add_u32 v30, s27, v30")
    A("s_waitcnt lgkmcnt(0)")
    for jj in range(4):
        b = 80 + 4 * jj
        A(f"v_lshl_or_b32 v{96+2*jj}, v{b+2}, 16, v{b+3}")
        A(f"v_lshl_or_b32 v{96+2*jj+1}, v{b}, 16, v{b+1}")
        A(f"ds_write_b64 v30, v[{96+2*jj}:{96+2*jj+1}] offset:{1024*(3-jj)}")
        A(f"ds_write_b64 v30, v[{96+2*jj}:{96+2*jj+1}] offset:{KCOPY + 8 + 1024*(3-jj)}")
    A("s_waitcnt vmcnt(0)")
    for sl in range(8): A(f"ds_write_b128 v26, v[{UR+4*sl}:{UR+4*sl+3}] offset:{1024*sl}")
    A("s_cmp_eq_u32 s22, 0")
    A("s_cbranch_scc0 S_u9")
    A(f"ds_write_b128 v26, v[{UR+32}:{UR+35}] offset:8192")
    A("S_u9:")
    A(f"""
v_and_b32 v8, 3, v2
v_bfe_u32 v9, v2, 2, 2
v_mul_u32_u24 v8, {XNT_STRIDE}, v8
v_add_u32 v9, v9, v5
v_lshl_add_u32 v8, v9, 4, v8
s_lshl_b32 s31, s22, 8
s_add_u32 s32, s26, s31
v_add_u32 v8, s32, v8             ; vF
v_and_b32 v11, 1, v2
v_bfe_u32 v12, v2, 1, 3
v_mul_u32_u24 v9, {KCOPY}, v11
v_lshl_add_u32 v9, v5, 4, v9
v_lshlrev_b32 v13, 6, v12
v_sub_u32 v9, v9, v13
s_add_u32 s32, s27, s31
s_add_u32 s32, s32, 448
v_add_u32 v9, s32, v9             ; vG
v_lshlrev_b32 v13, 5, v12
v_lshl_add_u32 v13, v11, 2, v13
v_lshl_add_u32 v13, v5, 3, v13    ; P0
""")
    ACC = 32
    for r in range(32): A(f"v_mov_b32 v{ACC+r}, 0")
    FR = [64, 128]
    def rd(buf, ph, i):
        m = i >> 1
        if i & 1 == 0: A(f"ds_read_b128 v[{FR[buf]+4*m}:{FR[buf]+4*m+3}], v8 offset:{512*m+64*ph}")
        else: A(f"ds_read_b128 v[{FR[buf]+32+4*m}:{FR[buf]+32+4*m+3}], v9 offset:{3584-512*m+64*ph}")
    A("s_waitcnt lgkmcnt(0)")
    A("s_barrier")
    stampw(A, 9)
    prods = sorted([(m, e) for m in range(8) for e in range(8) if m + e <= 7], key=lambda p: (max(p), p))
    for i in range(14): rd(0, 0, i)
    for ph in range(4):
        buf = ph & 1
        nxt = list(range(16)) if ph < 3 else []
        if ph > 0: A("s_waitcnt lgkmcnt(0)")
        if ph == 3:
            A("s_lshl_b32 s33, s20, 10")
            A(f"s_add_u32 s33, s33, {3*XNT_STRIDE + 48}")
            A("v_lshl_add_u32 v17, v13, 1, s33")
            for ch in range(2):
                for j in range(2):
                    A(f"ds_read_b64 v[{192+4*ch+2*j}:{192+4*ch+2*j+1}], v17 offset:{USZ*ch+512*j}")
        lasts = -1; issued0 = 14
        for n, (m, e) in enumerate(prods):
            sidx = max(m, e)
            if ph == 0 and sidx != lasts:
                if sidx == 1:
                    for i in (14, 15): rd(0, 0, i)
                    issued0 = 16
                if sidx <= 4: A(f"s_waitcnt lgkmcnt({issued0 - (2*sidx+2)})")
                elif sidx == 5: A("s_waitcnt lgkmcnt(0)")
                lasts = sidx
            c = m + e
            A(f"v_mfma_f32_16x16x32_bf16 v[{ACC+4*c}:{ACC+4*c+3}], v[{FR[buf]+4*m}:{FR[buf]+4*m+3}], v[{FR[buf]+32+4*e}:{FR[buf]+32+4*e+3}], v[{ACC+4*c}:{ACC+4*c+3}]")
            if nxt and (ph > 0 or sidx >= 5):
                cnt = 1 if ph > 0 else 2
                if ph > 0 and n % 2 == 1: cnt = 0
                for _ in range(cnt):
                    if nxt and (16 - len(nxt)) < 15: rd(buf ^ 1, ph + 1, nxt.pop(0))
        if nxt:
            A("s_waitcnt lgkmcnt(4)")
            while nxt: rd(buf ^ 1, ph + 1, nxt.pop(0))
    stamp(A, 10)
    A("s_lshl_b32 s33, s20, 13")
    A(f"s_add_u32 s33, s33, {XB}")
    A("v_add_u32 v14, s33, v3")
    A("s_lshl_b32 s33, s20, 11")
    A(f"s_add_u32 s33, s33, {XB}")
    A("v_add_u32 v15, s33, v3")
    A("s_waitcnt lgkmcnt(0)")
    A("s_barrier")
    for c in range(8): A(f"ds_write_b128 v14, v[{ACC+4*c}:{ACC+4*c+3}] offset:{1024*c}")
    A("s_lshl_b32 s34, s63, 16")
    A("s_and_b32 s35, s63, 0xffff0000")
    A("s_lshl_b32 s17, s3, 13")
    A("s_lshl_b32 s33, s20, 11")
    A("s_add_u32 s17, s17, s33")
    A(f"s_add_u32 s17, s17, {WS_ZP}")
    A("v_lshlrev_b32 v17, 2, v13")
    for ch in range(2):
        for i in range(4):
            A(f"v_lshlrev_b32 v{128+8*ch+2*i}, 16, v{192+4*ch+i}")
            A(f"v_and_b32 v{128+8*ch+2*i+1}, s19, v{192+4*ch+i}")
    for ch in range(2):
        for i in range(8): A(f"v_mul_f32 v{128+8*ch+i}, s{34+ch}, v{128+8*ch+i}")
    for i in range(8): A(f"v_cvt_pk_bf16_f32 v{112+i}, v{128+i}, v{136+i}")
    for i in range(8):
        A(f"v_lshlrev_b32 v{128+i}, 16, v{112+i}")
        A(f"v_and_b32 v{136+i}, s19, v{112+i}")
    A("s_waitcnt lgkmcnt(0)")
    A("s_barrier")
    for src in range(4):
        for j in range(2):
            A(f"ds_read_b128 v[{64+8*src+4*j}:{64+8*src+4*j+3}], v15 offset:{8192*src+1024*j}")
    A("s_waitcnt lgkmcnt(0)")
    for i in range(8):
        A(f"v_add_f32 v{64+i}, v{64+i}, v{72+i}")
        A(f"v_add_f32 v{80+i}, v{80+i}, v{88+i}")
    for i in range(8): A(f"v_cvt_pk_bf16_f32 v{104+i}, v{64+i}, v{80+i}")
    for i in range(8):
        A(f"v_lshlrev_b32 v{64+i}, 16, v{104+i}")
        A(f"v_and_b32 v{80+i}, s19, v{104+i}")
    for i in range(8):
        A(f"v_add_f32 v{64+i}, v{64+i}, v{128+i}")
        A(f"v_add_f32 v{80+i}, v{80+i}, v{136+i}")
    for i in range(8): A(f"v_cvt_pk_bf16_f32 v{104+i}, v{64+i}, v{80+i}")
    A(f"buffer_store_dwordx4 v[104:107], v17, s[{WSRD}:{WSRD+3}], s17 offen sc1")
    A(f"buffer_store_dwordx4 v[108:111], v17, s[{WSRD}:{WSRD+3}], s17 offen offset:1024 sc1")
    A("s_waitcnt vmcnt(0)")
    A("s_barrier")
    stamp(A, 11)
    A("s_cmp_lg_u32 s20, 0")
    A("s_cbranch_scc1 S_fin")
    A("s_lshl_b32 s17, s3, 2")
    A(f"s_add_u32 s17, s17, {FZ}")
    A("v_mov_b32 v18, 0")
    A("s_mov_b64 exec, 1")
    A(f"buffer_store_dword v16, v18, s[{WSRD}:{WSRD+3}], s17 offen sc1")
    A("s_mov_b64 exec, -1")
    A("s_cmp_lg_u32 s3, 0")
    A("s_cbranch_scc1 S_fin")
    A(f"s_mov_b32 s17, {FS}")
    poll_loop(A, "S_fs", f"buffer_load_dwordx4 v[20:23], v3, s[{WSRD}:{WSRD+3}], s17 offen sc1", [20, 21, 22, 23], 16, 12)
    A(f"s_mov_b32 s17, {EPOCH}")
    A("s_mov_b64 exec, 1")
    A(f"buffer_store_dword v16, v18, s[{WSRD}:{WSRD+3}], s17 offen sc1")
    A("s_mov_b64 exec, -1")
    A("S_fin:")
    stamp_out(A, 12)
    A("s_endpgm")

def gen_C(A):
    vm = VM(A)
    A("C_role:")
    XR0 = 49152
    CT = 40448
    A(f"""
v_lshrrev_b32 v1, 6, v0
v_and_b32 v2, 63, v0
v_readfirstlane_b32 s20, v1       ; w
s_and_b32 s21, s2, 7              ; xcd
s_lshr_b32 s22, s2, 3             ; idx 0..31
s_lshr_b32 s23, s21, 1
s_lshl_b32 s23, s23, 2
s_and_b32 s24, s22, 3
s_add_u32 s23, s23, s24           ; rb
s_lshl_b32 s33, s24, 1            ; 2r
s_and_b32 s24, s21, 1
s_mul_i32 s24, s24, 7
s_lshr_b32 s25, s22, 2
s_add_u32 s24, s24, s25           ; ct
s_add_u32 s33, s33, s25           ; rotation c + 2r
s_add_u32 s33, s33, s21           ; + xcd
s_and_b32 s33, s33, {7 if O.rot1 else 0}
v_lshlrev_b32 v3, 4, v2           ; lane*16
v_lshrrev_b32 v7, 3, v2
v_and_b32 v4, 7, v2
v_lshrrev_b32 v5, 1, v7
v_xor_b32 v4, v4, v5
v_lshlrev_b32 v4, 4, v4
v_lshl_add_u32 v4, v7, 10, v4
v_xor_b32 v5, 64, v4              ; odd j
v_lshrrev_b32 v7, 4, v2
v_and_b32 v6, 15, v2
v_lshlrev_b32 v8, 2, v7
v_xor_b32 v6, v6, v8
v_lshlrev_b32 v6, 4, v6
v_mul_u32_u24 v8, 3584, v7
v_add_u32 v6, v6, v8              ; w1 dma
s_lshl_b32 s26, s23, 17
s_lshl_b32 s27, s20, 15
s_add_u32 s26, s26, s27
s_mul_i32 s27, s20, {16*3584}
s_lshl_b32 s28, s24, 8
s_add_u32 s27, s27, s28
s_lshl_b32 s28, s20, 12           ; w*4096
s_waitcnt lgkmcnt(0)
s_load_dword s{TOK}, s[{P_WS}:{P_WS+1}], {EPOCH}
""")
    srd(A, WSRD, P_WS, WS_BYTES)
    srd(A, 8, P_W1, 512 * 3584)
    srd(A, 12, P_U, 2048 * 1024)
    srd(A, 16, P_W2, 1792 * 1024)
    A("s_cmp_ge_u32 s22, 28")
    A("s_cbranch_scc1 C_idle")
    def stage_off(st):
        A(f"s_add_u32 s29, s33, {st}")
        A("s_and_b32 s29, s29, 7")
        A("s_lshl_b32 s30, s29, 7")
        A("s_add_u32 s30, s30, s26")
        A(f"s_mul_i32 s31, s29, {64*3584}")
        A("s_add_u32 s31, s31, s27")
    def dma_x(st, j):
        A(f"s_add_u32 m0, s28, {XR0 + (st & 1)*16384 + 1024*j}")
        A(f"s_add_u32 s29, s30, {8192*j}")
        vm.op(f"buffer_load_dwordx4 v{4 + (j&1)}, s[12:15], s29 offen {O.x_fl} lds", f"s{st}")
    def dma_w(st, j):
        A(f"s_add_u32 m0, s28, {(st % 3)*16384 + 1024*j}")
        A(f"s_add_u32 s29, s31, {4*j*3584}")
        vm.op(f"buffer_load_dwordx4 v6, s[8:11], s29 offen {O.w1_fl} lds", f"s{st}")
    for st in range(2):
        stage_off(st)
        for j in range(4): dma_x(st, j); dma_w(st, j)
    stamp(A, 2)
    A(f"""
v_and_b32 v9, 31, v2              ; lr
v_lshrrev_b32 v7, 5, v2           ; h
v_bfe_u32 v8, v2, 1, 3            ; sw
v_lshlrev_b32 v22, 7, v9
v_add_u32 v22, s28, v22
v_add_u32 v22, {XR0}, v22
""")
    VB = 10
    for ks in range(4):
        A(f"v_add_u32 v{VB+ks}, {2*ks}, v7")
        A(f"v_xor_b32 v{VB+ks}, v{VB+ks}, v8")
        A(f"v_lshl_add_u32 v{VB+ks}, v{VB+ks}, 4, v22")
    VA = 14
    A(f"""
v_bfe_u32 v22, v2, 2, 2           ; r
v_and_b32 v23, 3, v2              ; c
v_bfe_u32 v24, v2, 4, 1           ; g16
v_lshl_add_u32 v25, v7, 3, v22
v_lshlrev_b32 v25, 8, v25
v_lshl_add_u32 v25, v24, 5, v25
v_lshl_add_u32 v25, v23, 3, v25
""")
    for j in range(4):
        A(f"s_add_u32 s34, s20, {j}")
        A("s_and_b32 s34, s34, 3")
        A(f"v_xor_b32 v{VA+j}, s34, v22")
        A(f"v_lshl_add_u32 v{VA+j}, v{VA+j}, 6, v25")
    ONE = 18
    for i in range(4): A(f"v_mov_b32 v{ONE+i}, 0x3f803f80")
    ACC = 64; CAC = 128
    for r in range(80): A(f"v_mov_b32 v{ACC+r}, 0")
    XF = 144
    AF = [32, 48]
    A("s_waitcnt lgkmcnt(0)")
    A(f"s_mul_i32 s{TOK}, s{TOK}, 0x9e3779b1")
    A(f"s_add_u32 s{TOK}, s{TOK}, 0x7f4a7c15")
    A(f"v_mov_b32 v26, s{TOK}")
    A("v_mov_b32 v27, 0")
    A("s_lshl_b32 s34, s2, 2")
    A(f"s_add_u32 s34, s34, {FS}")
    A("s_mov_b64 exec, 1")
    vm.op(f"buffer_store_dword v26, v27, s[{WSRD}:{WSRD+3}], s34 offen sc1", "fs")
    A("s_mov_b64 exec, -1")
    A("s_lshl_b32 s35, s23, 10")
    A("s_lshl_b32 s34, s20, 8")
    A("s_add_u32 s35, s35, s34")
    A(f"s_add_u32 s35, s35, {WS_STAT}")
    A("v_lshlrev_b32 v28, 3, v9")
    statload = f"buffer_load_dwordx2 v[30:31], v28, s[{WSRD}:{WSRD+3}], s35 offen sc1"
    def rdA(st, ks, buf):
        so = (st % 3) * 16384
        for j in range(4):
            for rd in range(2):
                A(f"ds_read_b64_tr_b16 v[{AF[buf]+4*j+2*rd}:{AF[buf]+4*j+2*rd+1}], v{VA+j} offset:{so+4096*ks+1024*rd}")
    for st in range(8):
        vm.wait(f"s{st}")
        A("s_barrier")
        if st in (0, 4): stampw(A, 3 + st // 4)
        A(f"ds_read_b128 v[{XF}:{XF+3}], v{VB} offset:{(st&1)*16384}")
        rdA(st, 0, 0)
        for ks in range(1, 4): A(f"ds_read_b128 v[{XF+4*ks}:{XF+4*ks+3}], v{VB+ks} offset:{(st&1)*16384}")
        pend = []
        if st + 2 < 8:
            stage_off(st + 2)
            pend = [("w", j) for j in range(4)] + [("x", j) for j in range(4)]
        for ks in range(4):
            buf = ks & 1
            if ks == 0:
                A("s_waitcnt lgkmcnt(3)")
                rdA(st, 1, 1)
            elif ks < 3:
                rdA(st, ks + 1, buf ^ 1)
                A("s_waitcnt lgkmcnt(8)")
            else:
                A("s_waitcnt lgkmcnt(0)")
            b = AF[buf]
            for j in range(5):
                if j < 4:
                    d = ACC + 16 * j
                    A(f"v_mfma_f32_32x32x16_bf16 v[{d}:{d+15}], v[{b+4*j}:{b+4*j+3}], v[{XF+4*ks}:{XF+4*ks+3}], v[{d}:{d+15}]")
                else:
                    A(f"v_mfma_f32_32x32x16_bf16 v[{CAC}:{CAC+15}], v[{b}:{b+3}], v[{ONE}:{ONE+3}], v[{CAC}:{CAC+15}]")
                if pend and j in (0, 2) and (pend[0][0] == "w" or ks >= 1):
                    kind, jj = pend.pop(0)
                    (dma_w if kind == "w" else dma_x)(st + 2, jj)
        assert not pend
        if st == 6: vm.op(statload, "stat")
    stamp(A, 5)
    A(f"s_lshl_b32 s34, s20, 7")
    A(f"s_add_u32 s34, s34, {CT}")
    A("v_lshlrev_b32 v29, 4, v7")
    A("v_add_u32 v22, s34, v29")
    A("s_mov_b32 exec_lo, 1\ns_mov_b32 exec_hi, 1")
    for g in range(4): A(f"ds_write_b128 v22, v[{CAC+4*g}:{CAC+4*g+3}] offset:{32*g}")
    A("s_mov_b64 exec, -1")
    A("s_lshl_b32 s34, s23, 2")
    A("s_add_u32 s34, s34, s20")
    A("s_mul_i32 s34, s34, 112")
    A("s_lshl_b32 s29, s24, 3")
    A("s_add_u32 s34, s34, s29")
    A("s_lshl_b32 s34, s34, 10")
    A(f"s_add_u32 s34, s34, {WS_H}")
    for j in range(4):
        A(f"s_add_u32 s29, s20, {j}")
        A("s_and_b32 s29, s29, 3")
        A(f"s_lshl_b32 s{44+j}, s29, 11")
        A(f"s_add_u32 s{44+j}, s{44+j}, s34")
        A("s_lshl_b32 s29, s29, 7")
        A(f"s_add_u32 s29, s29, {CT}")
        A(f"v_add_u32 v{VA+j}, s29, v29")
    vm.wait("stat")
    A("v_cmp_ne_u32 vcc, v31, v26")
    A("s_cbranch_vccz C_st_ok")
    poll_loop(A, "C_st", statload, [31], 26, 29)
    A("v_and_b32 v24, 0xffff0000, v30")
    A("v_xor_b32 v24, 0x80000000, v24")
    A("v_lshlrev_b32 v22, 16, v30")
    A("v_rcp_f32 v22, v22")
    A("s_waitcnt lgkmcnt(0)")
    A("s_barrier")
    CB = [32, 48]
    def rdC(j):
        for g in range(4): A(f"ds_read_b128 v[{CB[j&1]+4*g}:{CB[j&1]+4*g+3}], v{VA+j} offset:{32*g}")
    rdC(0)
    for j in range(4):
        if j < 3:
            rdC(j + 1); A("s_waitcnt lgkmcnt(4)")
        else: A("s_waitcnt lgkmcnt(0)")
        d = ACC + 16 * j; c = CB[j & 1]
        for i in range(0, 16, 2):
            A(f"v_pk_fma_f32 v[{d+i}:{d+i+1}], v[{c+i}:{c+i+1}], v[24:25], v[{d+i}:{d+i+1}] op_sel_hi:[1,0,1]")
        for i in range(0, 16, 2):
            A(f"v_pk_mul_f32 v[{d+i}:{d+i+1}], v[{d+i}:{d+i+1}], v[22:23] op_sel_hi:[1,0]")
        o = XF + 8 * (j & 1)
        for i in range(8): A(f"v_cvt_pk_bf16_f32 v{o+i}, v{d+2*i}, v{d+2*i+1}")
        for i in range(8): A(f"v_pk_max_i16 v{o+i}, v{o+i}, 0")
        for e in range(2):
            vm.op(f"buffer_store_dwordx4 v[{o+4*e}:{o+4*e+3}], v3, s[{WSRD}:{WSRD+3}], s{44+j} offen offset:{1024*e} sc1", "hst")
    stamp(A, 6)
    A("s_mov_b32 s50, 1")
    A("s_branch C_g2")
    A("C_idle:")
    A("s_waitcnt lgkmcnt(0)")
    A(f"s_mul_i32 s{TOK}, s{TOK}, 0x9e3779b1")
    A(f"s_add_u32 s{TOK}, s{TOK}, 0x7f4a7c15")
    A(f"v_mov_b32 v26, s{TOK}")
    A("v_mov_b32 v27, 0")
    A("v_lshrrev_b32 v7, 5, v2")
    A("v_and_b32 v9, 31, v2")
    A("s_lshl_b32 s34, s2, 2")
    A(f"s_add_u32 s34, s34, {FS}")
    A("s_mov_b64 exec, 1")
    A(f"buffer_store_dword v26, v27, s[{WSRD}:{WSRD+3}], s34 offen sc1")
    A("s_mov_b64 exec, -1")
    A("s_mov_b32 s50, 0")
    if O.stamps:
        for i in range(2, 7): stamp(A, i)
    A("C_g2:")
    vm.ops = ["hst"] * 8
    NS = 28; RS_ = 10; HD = 8
    RING = RS_ * 2048
    A(f"""
s_lshl_b32 s36, s21, 2
s_and_b32 s37, s22, 3
s_add_u32 s36, s36, s37
s_lshr_b32 s37, s22, 2            ; dtb
s_mul_i32 s38, s37, 7
s_lshr_b32 s38, s38, 1            ; rho
s_and_b32 s38, s38, {31 if O.rot2 else 0}
v_lshrrev_b32 v4, 3, v2
v_and_b32 v5, 7, v2
v_bfe_u32 v6, v2, 4, 1
v_lshlrev_b32 v6, 2, v6
v_xor_b32 v5, v5, v6
v_lshlrev_b32 v5, 4, v5
v_lshl_add_u32 v4, v4, 10, v5
s_mul_i32 s39, s20, {28*16*1024}
s_lshl_b32 s29, s37, 7
s_add_u32 s39, s39, s29           ; w2 start
s_add_u32 s40, s39, {28*16384}    ; w2 end
s_lshl_b32 s29, s38, 14
s_add_u32 s41, s39, s29           ; w2 cur
s_mul_i32 s42, s36, 224
s_mul_i32 s29, s20, 28
s_add_u32 s42, s42, s29
s_lshl_b32 s42, s42, 10
s_add_u32 s42, s42, {WS_H}        ; h start
s_add_u32 s43, s42, {28*1024}     ; h end
s_lshl_b32 s29, s38, 10
s_add_u32 s48, s42, s29           ; h cur
s_mul_i32 s30, s20, {RING}
v_add_u32 v5, {112*1024}, v3      ; h voffset t=1
""")
    def dma_w2(st):
        sl = st % RS_
        for j in range(2):
            A(f"s_add_u32 m0, s30, {sl*2048 + 1024*j}")
            if j: A("s_add_u32 s29, s41, 8192")
            vm.op(f"buffer_load_dwordx4 v4, s[16:19], {'s29' if j else 's41'} offen {O.w2_fl} lds", f"w{st}")
        A("s_add_u32 s41, s41, 16384")
        A("s_cmp_eq_u32 s41, s40")
        A("s_cmov_b32 s41, s39")
    HR = 184
    def ld_h(st):
        sl = st % HD
        for t in range(2):
            vm.op(f"buffer_load_dwordx4 v[{HR+8*sl+4*t}:{HR+8*sl+4*t+3}], v{3 if t == 0 else 5}, s[{WSRD}:{WSRD+3}], s48 offen sc1", f"h{st}")
        A("s_add_u32 s48, s48, 1024")
        A("s_cmp_eq_u32 s48, s43")
        A("s_cmov_b32 s48, s42")
    for st in range(RS_ - 1): dma_w2(st)
    vm.wait("hst")
    A("s_barrier")
    stamp(A, 7)
    A("s_cmp_lg_u32 s20, 0")
    A("s_cbranch_scc1 C_nofh")
    A("s_cmp_eq_u32 s50, 0")
    A("s_cbranch_scc1 C_nofh")
    A("s_lshl_b32 s29, s23, 7")
    A("s_lshl_b32 s34, s24, 2")
    A("s_add_u32 s29, s29, s34")
    A(f"s_add_u32 s29, s29, {FH}")
    A("s_mov_b64 exec, 1")
    A(f"buffer_store_dword v26, v27, s[{WSRD}:{WSRD+3}], s29 offen sc1")
    A("s_mov_b64 exec, -1")
    A("C_nofh:")
    dma_w2(RS_ - 1)
    A(f"""
s_and_b32 s31, s20, 1
s_lshr_b32 s32, s20, 1
s_lshl_b32 s33, s36, 6
s_lshl_b32 s34, s32, 5
s_add_u32 s33, s33, s34
s_lshl_b32 s34, s37, 6
s_lshl_b32 s35, s31, 5
s_add_u32 s34, s34, s35           ; d base
s_lshl_b32 s35, s33, 10
s_lshl_b32 s29, s34, 1
s_add_u32 s35, s35, s29
v_lshlrev_b32 v8, 10, v9
v_lshl_add_u32 v8, v7, 3, v8
s_lshl_b32 s44, s34, 12
s_lshl_b32 s29, s33, 2
s_add_u32 s44, s44, s29
s_add_u32 s44, s44, {WS_ZP}
v_lshlrev_b32 v28, 2, v9
v_lshl_add_u32 v28, v7, 14, v28
v_bfe_u32 v10, v2, 2, 2
v_and_b32 v11, 3, v2
v_bfe_u32 v12, v2, 4, 1
v_lshl_add_u32 v13, v7, 2, v10
v_lshlrev_b32 v13, 7, v13
v_lshl_add_u32 v13, v12, 5, v13
v_lshl_add_u32 v13, v11, 3, v13
v_add_u32 v13, s30, v13
v_lshrrev_b32 v10, 1, v10
v_lshl_add_u32 v14, v10, 6, v13
v_xor_b32 v10, 1, v10
v_lshl_add_u32 v15, v10, 6, v13
s_lshr_b32 s45, s36, 1
s_lshl_b32 s45, s45, 7
s_add_u32 s45, s45, {FH}
s_lshl_b32 s46, s37, 7
s_add_u32 s46, s46, {FZ}
v_lshlrev_b32 v29, 2, v9          ; (lane&31)*4
v_min_u32 v30, 52, v29            ; 14 flags
""")
    srd(A, 8, P_OUT, 2048 * 1024)
    ACC = 32
    RA = 96
    AFJ = [176, 16]
    for r in range(64): A(f"v_mov_b32 v{ACC+r}, 0")
    def rdA2(st, dst):
        sl = st % RS_
        for u in range(2):
            for rd in range(2):
                A(f"ds_read_b64_tr_b16 v[{dst+4*u+2*rd}:{dst+4*u+2*rd+1}], v{14+u} offset:{sl*2048+1024*rd}")
    A("s_waitcnt vmcnt(0)"); vm.ops = []
    for st in range(RS_):
        rdA2(st, RA + 8 * st)
        if st % 3 == 2: A("s_waitcnt lgkmcnt(0)")
    A("s_waitcnt lgkmcnt(0)")
    for st in range(RS_, 2 * RS_): dma_w2(st)
    stamp(A, 8)
    A("s_cmp_lg_u32 s20, 0")
    A("s_cbranch_scc1 C_fh_ok")
    poll_loop(A, "C_fh", f"buffer_load_dword v31, v30, s[{WSRD}:{WSRD+3}], s45 offen sc1", [31], 26, 29)
    A("s_barrier")
    stamp(A, 9)
    for st in range(HD): ld_h(st)
    XRg = 248;
    ZR = RA
    XR = RA + 8
    zflag = f"buffer_load_dword v31, v29, s[{WSRD}:{WSRD+3}], s46 offen sc1"
    for st in range(NS):
        if st + 1 >= RS_ and st + 1 < NS:
            vm.wait(f"w{st+1}")
            rdA2(st + 1, AFJ[(st + 1) & 1])
        vm.wait(f"h{st}")
        if st >= RS_:
            A("s_waitcnt lgkmcnt(4)" if st + 1 < NS else "s_waitcnt lgkmcnt(0)")
        af = RA + 8 * st if st < RS_ else AFJ[st & 1]
        sl = st % HD
        for u in range(2):
            for t in range(2):
                d = ACC + 16 * (2 * t + u)
                A(f"v_mfma_f32_32x32x16_bf16 v[{d}:{d+15}], v[{af+4*u}:{af+4*u+3}], v[{HR+8*sl+4*t}:{HR+8*sl+4*t+3}], v[{d}:{d+15}]")
        if st + HD < NS: ld_h(st + HD)
        if st >= RS_ and st + RS_ < NS: dma_w2(st + RS_)
        if st == 4:
            for g in range(4):
                vm.op(f"buffer_load_dwordx2 v[{XR+2*g}:{XR+2*g+1}], v8, s[12:15], s35 offen offset:{16*g}", "x")
        if st == 12: vm.op(zflag, "zf")
        if st == 19:
            vm.wait("zf")
            A("v_cmp_ne_u32 vcc, v31, v26")
            A("s_cbranch_vccz C_fz_ok")
            poll_loop(A, "C_fz", zflag, [31], 26, 29)
            for g in range(4):
                for j in range(2):
                    A(f"s_add_u32 s29, s44, {(4*g+j)*8192}")
                    vm.op(f"buffer_load_dword v{ZR+2*g+j}, v28, s[{WSRD}:{WSRD+3}], s29 offen sc1", "z")
        if st == 13: stampw(A, 10)
    stamp(A, 11)
    A("v_add_u32 v10, s30, v3")
    for q in range(4):
        for i in range(4):
            d = ACC + 16 * q + 4 * i
            A(f"ds_write_b128 v10, v[{d}:{d+3}] offset:{4096*q + 1024*i}")
    A("s_lshl_b32 s29, s20, 12")
    A("v_add_u32 v11, s29, v3")
    A(f"v_add_u32 v12, {2*RING}, v11")
    A("s_mov_b32 s47, 0xffff0000")
    vm.drain()
    T1 = 112; T2 = 128
    for i in range(8):
        A(f"v_lshlrev_b32 v{T1+2*i}, 16, v{XR+i}")
        A(f"v_and_b32 v{T1+2*i+1}, s47, v{XR+i}")
        A(f"v_lshlrev_b32 v{T2+2*i}, 16, v{ZR+i}")
        A(f"v_and_b32 v{T2+2*i+1}, s47, v{ZR+i}")
    for i in range(16): A(f"v_add_f32 v{T1+i}, v{T1+i}, v{T2+i}")
    for i in range(8): A(f"v_cvt_pk_bf16_f32 v{XR+i}, v{T1+2*i}, v{T1+2*i+1}")
    for i in range(8):
        A(f"v_lshlrev_b32 v{T1+2*i}, 16, v{XR+i}")
        A(f"v_and_b32 v{T1+2*i+1}, s47, v{XR+i}")
    A("s_waitcnt lgkmcnt(0)")
    A("s_barrier")
    for src in range(4):
        for i in range(4):
            d = ACC + 16 * src + 4 * i
            A(f"ds_read_b128 v[{d}:{d+3}], v{11 + (src>>1)} offset:{(src&1)*RING + 1024*i}")
        if src == 2: A("s_waitcnt lgkmcnt(4)")
    A("s_waitcnt lgkmcnt(0)")
    for i in range(16):
        A(f"v_add_f32 v{ACC+i}, v{ACC+i}, v{ACC+16+i}")
        A(f"v_add_f32 v{ACC+32+i}, v{ACC+32+i}, v{ACC+48+i}")
    for i in range(16): A(f"v_add_f32 v{ACC+i}, v{ACC+i}, v{ACC+32+i}")
    for i in range(8): A(f"v_cvt_pk_bf16_f32 v{ZR+i}, v{ACC+2*i}, v{ACC+2*i+1}")
    for i in range(8):
        A(f"v_lshlrev_b32 v{T2+2*i}, 16, v{ZR+i}")
        A(f"v_and_b32 v{T2+2*i+1}, s47, v{ZR+i}")
    for i in range(16): A(f"v_add_f32 v{T1+i}, v{T1+i}, v{T2+i}")
    for i in range(8): A(f"v_cvt_pk_bf16_f32 v{XR+i}, v{T1+2*i}, v{T1+2*i+1}")
    for g in range(4):
        A(f"buffer_store_dwordx2 v[{XR+2*g}:{XR+2*g+1}], v8, s[8:11], s35 offen offset:{16*g}")
    stamp_out(A, 12)
    A("s_endpgm")

def build(path, **opts):
    for k_, v_ in opts.items(): setattr(O, k_, v_)
    A = Asm()
    A.begin_kernel(K)
    stamp(A, 0, real=True); stamp(A, 1)
    A(f"""
s_cmp_ge_u32 s2, 512
s_cbranch_scc1 K_done
s_load_dwordx16 s[36:51], s[0:1], 0
s_load_dwordx8 s[52:59], s[0:1], 64
s_load_dwordx2 s[60:61], s[0:1], 96
s_cmp_ge_u32 s2, 256
s_cbranch_scc1 S_role
""")
    gen_C(A)
    gen_S(A)
    A("K_done:")
    A("s_endpgm")
    A.end_kernel(K, vgpr=256, sgpr=102, ieee=False)
    A.lines, n = hazard.fix(A.lines)
    hdr = open("cdna_kernels/" + NAME + ".s.ref").read().split("; Override launch")[0]
    txt = A.text(hdr + "; @launch grid=(512,1,1) block=(256,1,1) lds=81920\n")
    open(path, "w").write(txt)
    return n

if __name__ == "__main__":
    print("nops", build("mega.s", stamps=False))
    build("mega_st.s", stamps=True)
```

```python
from gen import *
import hazard, sys

WS_XNT = 0x200000
XNT_STRIDE = 4160
KIMG_STRIDE = 9216
KCOPY = 4640
WS_ZP = 0xA00000
WS_H = 0xC00000
WS_STAT = 0x0
WS_FLG = 0x10000
FX, FH, FZ, FS, EPOCH, FA = WS_FLG, WS_FLG + 0x1000, WS_FLG + 0x2000, WS_FLG + 0x3000, WS_FLG + 0x4000, WS_FLG + 0x5000
WS_XN = 0x1400000
WS_BYTES = 0x10000000
WS_STAMP = 0x2000000
LOG2E = 0x3fb8aa3b
INV2PI = 0x3e22f983
SPIN_MAX = 200000
K = NAME + "_kernel"

P_U, P_LAR, P_AIM, P_CRE, P_CIM, P_LDT, P_DSK = 36, 38, 40, 42, 44, 46, 48
P_W1, P_W2, P_OUT, P_DBG, P_WS = 52, 54, 56, 58, 60
TOK = 62
WSRD = 4

class Opt:
    stamps = False
    x_fl = ""
    w1_fl = ""
    w2_fl = ""
    rot1 = True
    rot2 = True
    warm_w2 = True
    hd = 4
    dbgtime = False
    flag_atomic = True
    warm_delay = True
    xe_fl = ''
    pub_at = 7
    hf_issue = 13
    prio_S3 = 2
    warm_depth = 8
    warm_n = 28
    sfirst = True
    par_fl = 'nt'
    xsl_fl = 'nt'
    zf_issue = 17
    zf_check = 22
    h_fl = 'sc1'
    nojit = False
    g2stamps = False
    plain23 = True
    prio_S2 = 0
    w1depth = 7
    x8_fl = 'nt'
    stop = 0
    idle_exit = False
    nra = 16
    only = ''
    setprio_S = 3
    setprio_C = 1
O = Opt()

def FLAGOP(): return 'buffer_atomic_swap' if O.flag_atomic else 'buffer_store_dword'
def stamp(A, i, real=False):
    if O.stamps:
        A(f"{'s_memrealtime' if real else 's_memtime'} s[{64+2*i}:{65+2*i}]")
def stampw(A, i):
    if O.stamps:
        A("s_waitcnt lgkmcnt(0)"); stamp(A, i); A("s_waitcnt lgkmcnt(0)")
def stamp_out(A, n):
    if O.dbgtime:
        A("s_waitcnt vmcnt(0) lgkmcnt(0)")
        A("s_memtime s[68:69]")
        A("s_memrealtime s[70:71]")
        A("s_waitcnt lgkmcnt(0)")
        A("s_not_b32 s72, s64")
        A("s_sub_u32 s68, s68, s66")
        A("s_sub_u32 s73, s70, s64")
        A("s_mov_b64 exec, 1")
        A("v_mov_b32 v1, 0")
        for i, r in enumerate((72, 70, 68, 73)):
            A(f"v_mov_b32 v2, s{r}")
            A(f"global_atomic_umax v1, v2, s[{P_DBG}:{P_DBG+1}] offset:{4*i} sc1")
        A("s_waitcnt vmcnt(0)")
    if not O.stamps: return
    A("s_mov_b64 exec, -1")
    A("s_waitcnt vmcnt(0) lgkmcnt(0)")
    stamp(A, n); stamp(A, n + 1, real=True)
    A("s_waitcnt lgkmcnt(0)")
    A("v_lshrrev_b32 v1, 6, v0")
    A(f"s_mul_i32 s100, s2, 256")
    A(f"s_add_u32 s100, s100, {WS_STAMP}")
    A("v_lshlrev_b32 v1, 6, v1")
    A("v_add_u32 v1, s100, v1")
    for i in range(n + 2):
        A(f"v_mov_b32 v2, s{64+2*i}")
        A(f"global_store_dword v1, v2, s[{P_WS}:{P_WS+1}] offset:{4*i}")
    A("s_waitcnt vmcnt(0)")

def srd(A, d, p, nbytes):
    A(f"s_mov_b32 s{d}, s{p}")
    A(f"s_mov_b32 s{d+1}, s{p+1}")
    A(f"s_mov_b32 s{d+2}, {nbytes}")
    A(f"s_mov_b32 s{d+3}, 0x00020000")

def dpp_sum(A, regs):
    for ctl in ("row_shr:1 row_mask:0xf", "row_shr:2 row_mask:0xf", "row_shr:4 row_mask:0xf", "row_shr:8 row_mask:0xf",
                "row_bcast:15 row_mask:0xa", "row_bcast:31 row_mask:0xc"):
        for r in regs:
            bc = " bound_ctrl:0" if "shr" in ctl else ""
            A(f"v_add_f32_dpp v{r}, v{r}, v{r} {ctl} bank_mask:0xf{bc}")

def bf16_round(A, dst, src):
    A(f"v_cvt_pk_bf16_f32 v{dst}, v{src}, v{src}")
    A(f"v_lshlrev_b32 v{dst}, 16, v{dst}")

class VM:
    def __init__(self, A): self.A = A; self.ops = []
    def op(self, txt, tag): self.A(txt); self.ops.append(tag)
    def wait(self, *tags):
        idx = max((i for i, t in enumerate(self.ops) if t in tags), default=-1)
        if idx < 0: return
        n = len(self.ops) - 1 - idx
        assert n <= 63, n
        self.A(f"s_waitcnt vmcnt({n})")
        self.ops = self.ops[idx + 1:]
    def drain(self):
        self.A("s_waitcnt vmcnt(0)"); self.ops = []

def poll_loop(A, name, load, cmp_regs, tokv, cnt, sleep=2):
    A(f"s_mov_b32 s{cnt}, 0")
    A(f"{name}_poll:")
    A(load)
    A(f"s_add_u32 s{cnt}, s{cnt}, 1")
    A("s_waitcnt vmcnt(0)")
    check(A, cmp_regs, tokv)
    A(f"s_cbranch_vccz {name}_ok")
    A(f"s_cmp_gt_u32 s{cnt}, {0 if (O.only == 'C' and name in ('C_fa','C_fz','C_fi')) or (O.only == 'S' and name == 'S_fs') else SPIN_MAX}")
    A(f"s_cbranch_scc1 {name}_ok")
    A(f"s_sleep {sleep}")
    A(f"s_branch {name}_poll")
    A(f"{name}_ok:")

def check(A, regs, tokv, tmp=None):
    if len(regs) == 1:
        A(f"v_cmp_ne_u32 vcc, v{regs[0]}, v{tokv}")
        return
    t = tmp if tmp is not None else 255
    A(f"v_xor_b32 v{t}, v{regs[0]}, v{tokv}")
    for r in regs[1:]:
        A(f"v_xor_b32 v{t-1}, v{r}, v{tokv}")
        A(f"v_or_b32 v{t}, v{t}, v{t-1}")
    A(f"v_cmp_ne_u32 vcc, 0, v{t}")

def gen_S(A):
    UB = 0; USZ = 17408
    KB = 2 * USZ + 64
    PAR = KB + 2 * KIMG_STRIDE
    XCH = PAR + 4352
    TBL = XCH + 8192 + 64
    XSL = TBL + 2 * 1344
    assert XSL + 8192 <= 81920
    XB = PAR
    assert XB + 16384 <= 81920
    W_ = f"s[{WSRD}:{WSRD+3}]"
    vm = VM(A)
    A("S_role:")
    if O.setprio_S: A(f"s_setprio {O.setprio_S}")
    A(f"""
s_sub_u32 s3, s2, 256            ; b
v_lshrrev_b32 v1, 6, v0          ; wave
v_and_b32 v2, 63, v0             ; lane
v_readfirstlane_b32 s20, v1
s_lshr_b32 s21, s20, 1           ; ch
s_and_b32 s22, s20, 1
s_lshl_b32 s23, s3, 1
s_add_u32 s23, s23, s21          ; d
s_and_b32 s24, s3, 7             ; xcd
s_lshr_b32 s25, s3, 3            ; j
s_lshl_b32 s16, s24, 8
s_lshl_b32 s17, s25, 3
s_add_u32 s16, s16, s17          ; LN r0
s_lshl_b32 s17, s20, 1
s_add_u32 s16, s16, s17
s_lshl_b32 s18, s16, 10
s_lshl_b32 s26, s24, 1
s_lshr_b32 s27, s25, 4
s_add_u32 s26, s26, s27
s_and_b32 s27, s25, 15           ; sl
v_lshlrev_b32 v3, 4, v2          ; lane*16
v_lshrrev_b32 v4, 2, v2
v_and_b32 v5, 3, v2
v_lshlrev_b32 v5, 4, v5
v_lshl_add_u32 v4, v4, 10, v5
s_lshl_b32 s28, s26, 17
s_lshl_b32 s29, s20, 15
s_add_u32 s28, s28, s29
s_lshl_b32 s29, s27, 6
s_add_u32 s28, s28, s29
s_lshl_b32 s29, s20, 11
s_add_u32 s29, s29, {XSL}
s_lshl_b32 s30, s23, 8
s_lshl_b32 s31, s22, 7
s_add_u32 s30, s30, s31
v_lshlrev_b32 v6, 1, v2
v_add_u32 v6, s30, v6
s_lshl_b32 s31, s23, 1
v_mov_b32 v7, s31
s_lshl_b32 s19, s3, 2
s_waitcnt lgkmcnt(0)
s_load_dword s{TOK}, s[{P_WS}:{P_WS+1}], {EPOCH}
s_load_dword s63, s[{P_DSK}:{P_DSK+1}], s19
""")
    srd(A, 8, P_U, 2048 * 1024)
    srd(A, WSRD, P_WS, WS_BYTES)
    vm.op(f"buffer_load_dwordx4 v[8:11], v3, s[8:11], s18 offen {O.x8_fl}", "x8")
    vm.op(f"buffer_load_dwordx4 v[12:15], v3, s[8:11], s18 offen offset:1024 {O.x8_fl}", "x8")
    for i, p in enumerate((P_LAR, P_AIM, P_CRE, P_CIM)):
        vm.op(f"global_load_ushort v{60+i}, v6, s[{p}:{p+1}] {O.par_fl}", "par")
    vm.op(f"global_load_ushort v64, v7, s[{P_LDT}:{P_LDT+1}]", "par")
    for j in range(2):
        A(f"s_add_u32 m0, s29, {1024*j}")
        A(f"s_add_u32 s31, s28, {16384*j}")
        vm.op(f"buffer_load_dwordx4 v4, s[8:11], s31 offen {O.xsl_fl} lds", "xsl")
    VN, VKQ, VI = 204, 205, 206
    VPW, VPR, VGR, VTR, VXT = 207, 208, 209, 210, 211
    VXS, VXP, VK0, VTB, VKZ, VKW, VFX, VUW = 212, 213, 214, 215, 216, 217, 218, 219
    VF, VG, VUU, VZ, VXW, VXR, VTOK, VZERO = 220, 221, 222, 223, 224, 225, 226, 227
    ONE2 = 228
    GA = 232
    A(f"""
s_mov_b32 s19, 0xffff0000
s_mov_b32 s12, {LOG2E}
s_mov_b32 s13, {INV2PI}
s_mul_i32 s14, s20, 1088
s_add_u32 s14, s14, {PAR}
v_lshrrev_b32 v{VKQ}, 4, v2
v_and_b32 v{VI}, 15, v2
v_lshl_add_u32 v{VPW}, v{VKQ}, 4, v3
v_add_u32 v{VPW}, s14, v{VPW}
v_mul_u32_u24 v{VPR}, 272, v{VKQ}
v_add_u32 v{VPR}, s14, v{VPR}
v_add_u32 v20, 1, v{VI}
v_cvt_f32_u32 v{VN}, v20
v_lshlrev_b32 v{VGR}, 6, v{VKQ}
v_bfe_u32 v21, v2, 2, 2
v_lshl_add_u32 v21, v{VKQ}, 3, v21
v_lshlrev_b32 v21, 6, v21
v_and_b32 v22, 3, v2
v_lshl_add_u32 v21, v22, 3, v21
v_add_u32 v{VTR}, s29, v21
v_mul_u32_u24 v{VXT}, {XNT_STRIDE}, v{VI}
v_lshl_add_u32 v{VXT}, v{VKQ}, 4, v{VXT}
s_lshl_b32 s28, s20, 11
s_add_u32 s28, s28, {XCH}
v_add_u32 v{VXS}, s28, v3
s_xor_b32 s28, s20, 1
s_lshl_b32 s28, s28, 11
s_add_u32 s28, s28, {XCH}
v_add_u32 v{VXP}, s28, v3
s_lshl_b32 s28, s20, 2
s_add_u32 s28, s28, {XCH+8192}
v_mov_b32 v{VK0}, s28
v_and_b32 v20, 15, v20
v_lshlrev_b32 v20, 5, v20
v_lshl_add_u32 v20, v{VKQ}, 3, v20
s_mul_i32 s32, s21, 1344
s_add_u32 s32, s32, {TBL}
v_add_u32 v{VTB}, s32, v20
s_mul_i32 s33, s21, {USZ}
s_mul_i32 s34, s21, {KIMG_STRIDE}
s_add_u32 s34, s34, {KB}
v_and_b32 v27, 127, v0                ; tau
v_lshlrev_b32 v30, 3, v27
v_add_u32 v{VKZ}, s34, v30
v_sub_u32 v30, 1008, v30
v_add_u32 v{VKW}, s34, v30
v_lshlrev_b32 v{VFX}, 2, v{VI}
s_mul_i32 s35, s22, {130*16}
s_add_u32 s28, s35, s33
v_add_u32 v{VUW}, s28, v3
s_mul_i32 s24, s23, {XNT_STRIDE}
s_add_u32 s24, s24, s35
s_add_u32 s24, s24, {WS_XNT}          ; U src
v_and_b32 v20, 3, v2
v_bfe_u32 v21, v2, 2, 2
v_mul_u32_u24 v20, {XNT_STRIDE}, v20
v_add_u32 v21, v21, v{VKQ}
v_lshl_add_u32 v20, v21, 4, v20
s_lshl_b32 s31, s22, 8
s_add_u32 s28, s33, s31
v_add_u32 v{VF}, s28, v20
v_and_b32 v21, 1, v2
v_bfe_u32 v22, v2, 1, 3
v_mul_u32_u24 v20, {KCOPY}, v21
v_lshl_add_u32 v20, v{VKQ}, 4, v20
v_lshlrev_b32 v23, 6, v22
v_sub_u32 v20, v20, v23
s_add_u32 s28, s34, s31
s_add_u32 s28, s28, 448
v_add_u32 v{VG}, s28, v20
v_lshlrev_b32 v23, 5, v22
v_lshl_add_u32 v23, v21, 2, v23
v_lshl_add_u32 v23, v{VKQ}, 3, v23    ; P0
v_lshlrev_b32 v{VZ}, 1, v23
s_lshl_b32 s28, s22, 11
s_add_u32 s28, s28, s33
s_add_u32 s28, s28, {3*XNT_STRIDE + 48}
v_add_u32 v{VUU}, s28, v{VZ}
s_lshl_b32 s28, s20, 12
s_add_u32 s28, s28, {XB}
v_add_u32 v{VXW}, s28, v3
s_xor_b32 s28, s20, 1
s_lshl_b32 s28, s28, 12
s_add_u32 s28, s28, {XB}
v_add_u32 v{VXR}, s28, v3
v_mov_b32 v{VZERO}, 0
v_mov_b32 v{ONE2}, 1.0
v_mov_b32 v{ONE2+1}, 0
v_mov_b32 v230, 0
v_mov_b32 v231, 0
v_lshlrev_b32 v4, 2, v27
s_sub_u32 s28, s32, {2*(0x4280-3)}
s_mov_b32 s31, 0xffff
""")
    AD = 66
    for jj in range(4):
        for e in range(4): A(f"v_add_u32 v{AD+4*jj+e}, {512*jj+e}, v4")
    for i in range(16): A(f"v_cvt_f32_u32 v{GA+i}, v{AD+i}")
    for i in range(0, 16, 2): A(f"v_cvt_pk_bf16_f32 v{GA+i}, v{GA+i}, v{GA+i+1}")
    for i in range(0, 16, 2):
        A(f"v_lshrrev_b32 v{GA+i+1}, 16, v{GA+i}")
        A(f"v_and_b32 v{GA+i}, s31, v{GA+i}")
    for e in range(4):
        A(f"v_min_u32 v{AD+e}, 128, v{AD+e}")
        A(f"v_add_u32 v{AD+e}, 0x4280, v{AD+e}")
        A(f"v_max_u32 v{GA+e}, v{GA+e}, v{AD+e}")
    for i in range(16): A(f"v_lshl_add_u32 v{GA+i}, v{GA+i}, 1, s28")
    A("v_cmp_gt_u32 vcc, 69, v27")
    A("s_and_saveexec_b64 s[30:31], vcc")
    A(f"ds_write_b64 v{VKZ}, v[230:231] offset:4088")
    A("s_mov_b64 exec, -1")
    A("v_cmp_gt_u32 vcc, 56, v27")
    A("s_and_saveexec_b64 s[30:31], vcc")
    A(f"ds_write_b64 v{VKZ}, v[230:231] offset:8736")
    A("s_mov_b64 exec, -1")
    A("v_mov_b32 v40, 0x3b000000")
    A("s_waitcnt lgkmcnt(0)")
    A(f"s_mul_i32 s{TOK}, s{TOK}, 0x9e3779b1")
    A(f"s_add_u32 s{TOK}, s{TOK}, 0x7f4a7c15")
    A(f"v_mov_b32 v{VTOK}, s{TOK}")
    A(f"v_mov_b32 v41, s{TOK}")
    A(f"v_mov_b32 v43, s{TOK}")
    A("s_lshl_b32 s17, s16, 3")
    A(f"s_add_u32 s17, s17, {WS_STAT}")
    A(f"s_add_u32 s18, s18, {WS_XN}")
    A("v_mov_b32 v39, 0x3b000000")
    vm.wait("x8")
    stamp(A, 2)
    X = [16, 24]; Dd = [44, 52]; S = [32, 33]; M = [34, 36]; V = [35, 37]
    def pk(op, d, a_, b_, c_=None, mods=""):
        if c_ is None: A(f"{op} v[{d}:{d+1}], v[{a_}:{a_+1}], v[{b_}:{b_+1}] {mods}")
        else: A(f"{op} v[{d}:{d+1}], v[{a_}:{a_+1}], v[{b_}:{b_+1}], v[{c_}:{c_+1}] {mods}")
    for r in range(2):
        for i in range(4):
            A(f"v_lshlrev_b32 v{X[r]+2*i}, 16, v{8+4*r+i}")
            A(f"v_and_b32 v{X[r]+2*i+1}, s19, v{8+4*r+i}")
    for r in range(2): pk("v_pk_add_f32", Dd[r], X[r], X[r] + 2)
    for r in range(2): pk("v_pk_add_f32", Dd[r] + 2, X[r] + 4, X[r] + 6)
    for r in range(2): pk("v_pk_add_f32", Dd[r], Dd[r], Dd[r] + 2)
    for r in range(2): A(f"v_add_f32 v{S[r]}, v{Dd[r]}, v{Dd[r]+1}")
    dpp_sum(A, S)
    for r in range(2): A(f"v_readlane_b32 s{30+r}, v{S[r]}, 63")
    for r in range(2): A(f"v_mul_f32 v{M[r]}, s{30+r}, v39")
    for i in range(0, 8, 2):
        for r in range(2): pk("v_pk_add_f32", Dd[r] + i, X[r] + i, M[r], mods="op_sel_hi:[1,0] neg_lo:[0,1] neg_hi:[0,1]")
    for r in range(2): pk("v_pk_mul_f32", 8 + 4 * r, Dd[r], Dd[r])
    for i in range(2, 8, 2):
        for r in range(2): pk("v_pk_fma_f32", 8 + 4 * r, Dd[r] + i, Dd[r] + i, 8 + 4 * r)
    for r in range(2): A(f"v_add_f32 v{S[r]}, v{8+4*r}, v{9+4*r}")
    dpp_sum(A, S)
    for r in range(2): A(f"v_readlane_b32 s{30+r}, v{S[r]}, 63")
    for r in range(2): bf16_round(A, M[r], M[r])
    for r in range(2): A(f"v_mul_f32 v{V[r]}, s{30+r}, v39")
    for r in range(2): bf16_round(A, V[r], V[r])
    for r in range(2): A(f"v_add_f32 v{V[r]}, 0x3727c5ac, v{V[r]}")
    for r in range(2): bf16_round(A, V[r], V[r])
    for r in range(2): A(f"v_sqrt_f32 v{V[r]}, v{V[r]}")
    for i in range(0, 8, 2):
        for r in range(2): pk("v_pk_add_f32", Dd[r] + i, X[r] + i, M[r], mods="op_sel_hi:[1,0] neg_lo:[0,1] neg_hi:[0,1]")
    for r in range(2): A(f"v_cvt_pk_bf16_f32 v{40+2*r}, v{V[r]}, v{M[r]}")
    A("s_mov_b64 exec, 1")
    vm.op(f"buffer_store_dwordx4 v[40:43], v{VZERO}, {W_}, s17 offen sc1", "stat")
    A("s_mov_b64 exec, -1")
    for r in range(2): A(f"v_lshlrev_b32 v{V[r]}, 16, v{40+2*r}")
    for r in range(2): A(f"v_rcp_f32 v{V[r]}, v{V[r]}")
    for r in range(2):
        for i in range(4): A(f"v_cvt_pk_bf16_f32 v{8+4*r+i}, v{Dd[r]+2*i}, v{Dd[r]+2*i+1}")
    for r in range(2):
        for i in range(4):
            A(f"v_lshlrev_b32 v{Dd[r]+2*i}, 16, v{8+4*r+i}")
            A(f"v_and_b32 v{Dd[r]+2*i+1}, s19, v{8+4*r+i}")
    for i in range(0, 8, 2):
        for r in range(2): pk("v_pk_mul_f32", Dd[r] + i, Dd[r] + i, M[r], mods="op_sel:[0,1] op_sel_hi:[1,1]")
    for r in range(2):
        for i in range(4): A(f"v_cvt_pk_bf16_f32 v{8+4*r+i}, v{Dd[r]+2*i}, v{Dd[r]+2*i+1}")
    vm.op(f"buffer_store_dwordx4 v[8:11], v3, {W_}, s18 offen sc1", "xn")
    vm.op(f"buffer_store_dwordx4 v[12:15], v3, {W_}, s18 offen offset:1024 sc1", "xn")
    stamp(A, 3)
    vm.wait("par")
    for i in range(5): A(f"v_lshlrev_b32 v{60+i}, 16, v{60+i}")
    A("v_mul_f32 v60, s12, v60\nv_mul_f32 v64, s12, v64\nv_exp_f32 v60, v60\nv_exp_f32 v64, v64")
    bf16_round(A, 60, 60); bf16_round(A, 64, 64)
    A(f"""
v_mul_f32 v16, v60, v64
v_mul_f32 v17, v61, v64
v_mul_f32 v18, v62, v64
v_mul_f32 v19, v63, v64
v_mul_f32 v16, s12, v16
v_sub_f32 v16, 0, v16
v_mul_f32 v17, s13, v17
v_add_f32 v18, v18, v18
v_add_f32 v19, v19, v19
ds_write_b128 v{VPW}, v[16:19]
v_mov_b32 v20, v18
""")
    dpp_sum(A, [20])
    A("v_readlane_b32 s15, v20, 63")
    A("s_waitcnt lgkmcnt(0)")
    P = 32
    for m in range(16):
        A(f"ds_read_b128 v[{P+4*m}:{P+4*m+3}], v{VPR} offset:{16*m}")
        if m == 7: A("s_waitcnt lgkmcnt(4)")
    A("v_mov_b32 v21, s15")
    A(f"ds_write_b32 v{VK0}, v21")
    A("s_lshr_b32 s17, s16, 7")
    A("s_lshl_b32 s17, s17, 7")
    A("s_lshr_b32 s18, s16, 3")
    A("s_and_b32 s18, s18, 15")
    A("s_lshl_b32 s18, s18, 2")
    A("s_add_u32 s17, s17, s18")
    A(f"s_add_u32 s17, s17, {FA}")
    def flag(label, sreg, wave):
        A(f"s_cmp_lg_u32 s20, {wave}")
        A(f"s_cbranch_scc1 {label}")
        A("s_mov_b64 exec, 1")
        A(f"{FLAGOP()} v{VTOK}, v{VZERO}, {W_}, s{sreg} offen sc1")
        A("s_mov_b64 exec, -1")
        A(f"{label}:")
    vm.wait("xn")
    A("s_barrier")
    flag("S_nofa", 17, 0)
    Dacc = 96; T = 112; L = 120; H = 136; t_ = 144
    A("s_waitcnt lgkmcnt(0)")
    def sq():
        for j in range(4): pk("v_pk_mul_f32", t_ + 2*j, T + 2*j, T + 2*j, mods="op_sel_hi:[1,0]")
        for j in range(4): pk("v_pk_fma_f32", T + 2*j, T + 2*j, T + 2*j, t_ + 2*j, mods="op_sel:[1,1,0] op_sel_hi:[0,1,1] neg_lo:[1,0,0]")
    def group(g):
        pj = [P + 4 * (4 * g + j) for j in range(4)]
        for j in range(4): pk("v_pk_mul_f32", t_ + 2*j, pj[j], VN, mods="op_sel_hi:[1,0]")
        for j in range(4): A(f"v_exp_f32 v{t_+2*j}, v{t_+2*j}")
        for j in range(4): A(f"v_fract_f32 v{t_+2*j+1}, v{t_+2*j+1}")
        for j in range(4): A(f"v_cos_f32 v{T+2*j}, v{t_+2*j+1}")
        for j in range(4): A(f"v_sin_f32 v{T+2*j+1}, v{t_+2*j+1}")
        for j in range(4): pk("v_pk_mul_f32", T + 2*j, T + 2*j, t_ + 2*j, mods="op_sel_hi:[1,0]")
        for sgm in range(4):
            for j in range(4): A(f"v_cvt_pk_bf16_f32 v{L+4*sgm+j}, v{T+2*j}, v{T+2*j+1}")
            sq()
        A("s_mov_b32 exec_lo, 0x80008000\ns_mov_b32 exec_hi, 0x80008000")
        for j in range(4): A(f"v_mov_b64 v[{T+2*j}:{T+2*j+1}], v[{ONE2}:{ONE2+1}]")
        A("s_mov_b64 exec, -1")
        for sgm in range(4):
            Hh = H + 4 * (sgm & 1)
            for j in range(4): pk("v_pk_mul_f32", t_ + 2*j, T + 2*j, pj[j] + 2, mods="op_sel_hi:[1,0] neg_hi:[1,0]")
            for j in range(4): pk("v_pk_fma_f32", t_ + 2*j, T + 2*j, pj[j] + 2, t_ + 2*j, mods="op_sel:[1,1,0] op_sel_hi:[0,1,1] neg_lo:[1,0,0] neg_hi:[1,0,0]")
            for j in range(4): A(f"v_cvt_pk_bf16_f32 v{Hh+j}, v{t_+2*j}, v{t_+2*j+1}")
            if sgm < 3: sq()
            d = Dacc + 4 * sgm
            cc = "0" if g == 0 else f"v[{d}:{d+3}]"
            A(f"v_mfma_f32_16x16x32_bf16 v[{d}:{d+3}], v[{L+4*sgm}:{L+4*sgm+3}], v[{Hh}:{Hh+3}], {cc}")
    def sqp():
        for j in range(4): A(f"v_mul_f32 v{t_+2*j}, v{T+2*j+1}, v{T+2*j+1}")
        for j in range(4): A(f"v_mul_f32_e64 v{T+2*j+1}, v{T+2*j}, v{T+2*j+1} mul:2")
        for j in range(4): A(f"v_fma_f32 v{T+2*j}, v{T+2*j}, v{T+2*j}, -v{t_+2*j}")
    def groupp(g):
        pj = [P + 4 * (4 * g + j) for j in range(4)]
        for j in range(4): A(f"v_mul_f32 v{t_+2*j}, v{pj[j]}, v{VN}")
        for j in range(4): A(f"v_mul_f32 v{t_+2*j+1}, v{pj[j]+1}, v{VN}")
        for j in range(4): A(f"v_exp_f32 v{t_+2*j}, v{t_+2*j}")
        for j in range(4): A(f"v_fract_f32 v{t_+2*j+1}, v{t_+2*j+1}")
        for j in range(4): A(f"v_cos_f32 v{T+2*j}, v{t_+2*j+1}")
        for j in range(4): A(f"v_sin_f32 v{T+2*j+1}, v{t_+2*j+1}")
        for j in range(4): A(f"v_mul_f32 v{T+2*j}, v{T+2*j}, v{t_+2*j}")
        for j in range(4): A(f"v_mul_f32 v{T+2*j+1}, v{T+2*j+1}, v{t_+2*j}")
        for sgm in range(4):
            for j in range(4): A(f"v_cvt_pk_bf16_f32 v{L+4*sgm+j}, v{T+2*j}, v{T+2*j+1}")
            sqp()
        A("s_mov_b32 exec_lo, 0x80008000\ns_mov_b32 exec_hi, 0x80008000")
        for j in range(4):
            A(f"v_mov_b32 v{T+2*j}, 1.0")
            A(f"v_mov_b32 v{T+2*j+1}, 0")
        A("s_mov_b64 exec, -1")
        for sgm in range(4):
            Hh = H + 4 * (sgm & 1)
            for j in range(4): A(f"v_mul_f32 v{t_+2*j}, v{pj[j]+3}, v{T+2*j+1}")
            for j in range(4): A(f"v_mul_f32 v{t_+2*j+1}, v{pj[j]+3}, v{T+2*j}")
            for j in range(4): A(f"v_fma_f32 v{t_+2*j}, v{pj[j]+2}, v{T+2*j}, -v{t_+2*j}")
            for j in range(4): A(f"v_fma_f32 v{t_+2*j+1}, -v{pj[j]+2}, v{T+2*j+1}, -v{t_+2*j+1}")
            for j in range(4): A(f"v_cvt_pk_bf16_f32 v{Hh+j}, v{t_+2*j}, v{t_+2*j+1}")
            if sgm < 3: sqp()
            d = Dacc + 4 * sgm
            A(f"v_mfma_f32_16x16x32_bf16 v[{d}:{d+3}], v[{L+4*sgm}:{L+4*sgm+3}], v[{Hh}:{Hh+3}], v[{d}:{d+3}]")
    G = 160
    A("s_lshl_b32 s17, s26, 10")
    A("s_lshl_b32 s18, s20, 8")
    A("s_add_u32 s17, s17, s18")
    A(f"s_add_u32 s17, s17, {WS_STAT}")
    gload = "\n".join(f"buffer_load_dwordx4 v[{G+4*i}:{G+4*i+3}], v{VGR}, {W_}, s17 offen offset:{16*i} sc1" for i in range(4))
    A(gload)
    group(0)
    stamp(A, 4)
    XS = 176
    for c2 in range(2):
        for rd in range(2):
            pass
    A("s_waitcnt vmcnt(0)"); vm.ops = []
    for c2 in range(2):
        for rd in range(2):
            A(f"ds_read_b64_tr_b16 v[{XS+4*c2+2*rd}:{XS+4*c2+2*rd+1}], v{VTR} offset:{32*c2+256*rd}")
    toks = [G + 1 + 2 * i for i in range(8)]
    check(A, toks, VTOK)
    A("s_cbranch_vccz S_st_ok")
    poll_loop(A, "S_st", gload, toks, VTOK, 12)
    stamp(A, 5)
    MM = 184; E = 16
    for i in range(8):
        A(f"v_and_b32 v{MM+2*i}, s19, v{G+2*i}")
        A(f"v_lshlrev_b32 v{MM+2*i+1}, 16, v{G+2*i}")
    for i in range(8): A(f"v_rcp_f32 v{MM+2*i+1}, v{MM+2*i+1}")
    A(f"s_mul_i32 s17, s27, {32*XNT_STRIDE}")
    A("s_lshl_b32 s18, s26, 8")
    A("s_add_u32 s17, s17, s18")
    A("s_lshl_b32 s18, s20, 6")
    A("s_add_u32 s17, s17, s18")
    A(f"s_add_u32 s17, s17, {WS_XNT + 64}")
    A(f"s_add_u32 s18, s17, {16*XNT_STRIDE}")
    A("s_waitcnt lgkmcnt(0)")
    for i in range(4):
        A(f"v_lshlrev_b32 v{E+4*i}, 16, v{XS+i}")
        A(f"v_lshlrev_b32 v{E+4*i+1}, 16, v{XS+4+i}")
        A(f"v_and_b32 v{E+4*i+2}, s19, v{XS+i}")
        A(f"v_and_b32 v{E+4*i+3}, s19, v{XS+4+i}")
    for i in range(8): pk("v_pk_add_f32", E + 2*i, E + 2*i, MM + 2*i, mods="op_sel_hi:[1,0] neg_lo:[0,1] neg_hi:[0,1]")
    for i in range(8): A(f"v_cvt_pk_bf16_f32 v{G+i}, v{E+2*i}, v{E+2*i+1}")
    for i in range(8):
        A(f"v_lshlrev_b32 v{E+2*i}, 16, v{G+i}")
        A(f"v_and_b32 v{E+2*i+1}, s19, v{G+i}")
    for i in range(8): pk("v_pk_mul_f32", E + 2*i, E + 2*i, MM + 2*i, mods="op_sel:[0,1] op_sel_hi:[1,1]")
    for c2 in range(2):
        for i in range(4): A(f"v_cvt_pk_bf16_f32 v{XS+4*c2+i}, v{E+4*i+c2}, v{E+4*i+2+c2}")
    for c2 in range(2):
        A(f"buffer_store_dwordx4 v[{XS+4*c2}:{XS+4*c2+3}], v{VXT}, {W_}, s{17+c2} offen sc1")
    A("s_cmp_lg_u32 s26, 0")
    A("s_cbranch_scc1 S_nopad")
    A("s_cmp_gt_u32 s20, 1")
    A("s_cbranch_scc1 S_nopad")
    A("v_lshrrev_b32 v19, 2, v2")
    A(f"v_mul_u32_u24 v19, {XNT_STRIDE}, v19")
    A("v_and_b32 v18, 3, v2")
    A("v_lshl_add_u32 v19, v18, 4, v19")
    A("s_lshl_b32 s17, s27, 1")
    A("s_add_u32 s17, s17, s20")
    A(f"s_mul_i32 s17, s17, {16*XNT_STRIDE}")
    A(f"s_add_u32 s17, s17, {WS_XNT}")
    for i in range(4): A(f"v_mov_b32 v{20+i}, 0")
    A(f"buffer_store_dwordx4 v[20:23], v19, {W_}, s17 offen sc1")
    A("S_nopad:")
    group(1)
    A("s_lshl_b32 s17, s27, 7")
    A("s_lshl_b32 s18, s26, 2")
    A("s_add_u32 s17, s17, s18")
    A(f"s_add_u32 s17, s17, {FX}")
    A("s_waitcnt vmcnt(0)")
    A("s_barrier")
    flag("S_nofx", 17, 1)
    stamp(A, 6)
    A(f"s_setprio {O.prio_S2}")
    (groupp if O.plain23 else group)(2)
    A("s_lshr_b32 s17, s3, 4")
    A("s_lshl_b32 s17, s17, 7")
    A(f"s_add_u32 s17, s17, {FX}")
    fxload = f"buffer_load_dword v19, v{VFX}, {W_}, s17 offen sc1"
    (groupp if O.plain23 else group)(3)
    stamp(A, 7)
    A(f"s_setprio {O.prio_S3}")
    A(fxload)
    A("s_cmp_eq_u32 s22, 0")
    A("s_cbranch_scc0 S_mh1")
    for mh in range(2):
        if mh == 1: A("S_mh1:")
        keep = [2*mh, 2*mh+1]; send = [2-2*mh, 3-2*mh]
        for j in range(2):
            A(f"ds_write_b128 v{VXS}, v[{Dacc+4*send[j]}:{Dacc+4*send[j]+3}] offset:{1024*j}")
        A("s_waitcnt lgkmcnt(0)")
        A("s_barrier")
        for j in range(2): A(f"ds_read_b128 v[{32+4*j}:{32+4*j+3}], v{VXP} offset:{1024*j}")
        if mh == 0: A(f"ds_read_b32 v40, v{VK0} offset:4")
        A("s_waitcnt lgkmcnt(0)")
        for j in range(2):
            for r in range(4): A(f"v_add_f32 v{32+4*j+r}, v{32+4*j+r}, v{Dacc+4*keep[j]+r}")
            A(f"v_cvt_pk_bf16_f32 v{44+2*j}, v{32+4*j}, v{32+4*j+1}")
            A(f"v_cvt_pk_bf16_f32 v{44+2*j+1}, v{32+4*j+2}, v{32+4*j+3}")
        if mh == 0:
            A("v_add_f32 v40, s15, v40")
            A("v_cvt_pk_bf16_f32 v40, v40, v40")
            A("v_mov_b32 v41, s32")
            A("ds_write_b16 v41, v40 offset:6")
            A(f"ds_write_b64 v{VTB}, v[44:45] offset:8")
            A("s_mov_b32 exec_lo, 0x7f807f80\ns_mov_b32 exec_hi, 0x7f807f80")
            A(f"ds_write_b64 v{VTB}, v[46:47] offset:264")
        else:
            A("s_mov_b32 exec_lo, 0x7f807f80\ns_mov_b32 exec_hi, 0x7f807f80")
            A(f"ds_write_b64 v{VTB}, v[44:45] offset:520")
            A(f"ds_write_b64 v{VTB}, v[46:47] offset:776")
        A("s_mov_b64 exec, -1")
        if mh == 0: A("s_branch S_join")
    A("S_join:")
    A("s_waitcnt vmcnt(0)")
    A(f"v_cmp_ne_u32 vcc, v19, v{VTOK}")
    A("s_cbranch_vccz S_fx_ok")
    poll_loop(A, "S_fx", fxload, [19], VTOK, 12)
    stamp(A, 8)
    UR = 160
    for gi in range(3):
        if gi == 2: A("s_mov_b64 exec, 3")
        A(f"buffer_load_dwordx2 v[{UR+6*gi}:{UR+6*gi+1}], v3, {W_}, s24 offen offset:{1024*gi+8} sc1")
        A(f"buffer_load_dwordx4 v[{UR+6*gi+2}:{UR+6*gi+5}], v3, {W_}, s24 offen offset:{1024*gi+16} sc1")
    A("s_mov_b64 exec, -1")
    A("s_waitcnt lgkmcnt(0)")
    A("s_barrier")
    for i in range(16):
        A(f"ds_read_u16 v{80+i}, v{GA+i}")
        if i == 11: A("s_waitcnt lgkmcnt(4)")
    for jj in range(4):
        b = 80 + 4 * jj
        A(f"s_waitcnt lgkmcnt({[4,4+2,4+4,6][jj] if jj < 3 else 6})" if False else "")
        if jj == 0: A("s_waitcnt lgkmcnt(0)")
        A(f"v_lshl_or_b32 v{96+2*jj}, v{b+2}, 16, v{b+3}")
        A(f"v_lshl_or_b32 v{96+2*jj+1}, v{b}, 16, v{b+1}")
        A(f"ds_write_b64 v{VKW}, v[{96+2*jj}:{96+2*jj+1}] offset:{1024*(3-jj)}")
        A(f"ds_write_b64 v{VKW}, v[{96+2*jj}:{96+2*jj+1}] offset:{KCOPY + 8 + 1024*(3-jj)}")
    for gi in range(3):
        A(f"s_waitcnt vmcnt({4-2*gi})")
        if gi == 2: A("s_mov_b64 exec, 3")
        r = UR + 6 * gi
        t0 = 180 + 12 * (gi & 1)
        for k_ in range(4): A(f"v_alignbyte_b32 v{t0+k_}, v{r+k_+1}, v{r+k_}, 2")
        for k_ in range(4): A(f"v_mov_b32 v{t0+4+k_}, v{r+1+k_}")
        for k_ in range(4): A(f"v_alignbyte_b32 v{t0+8+k_}, v{r+k_+2}, v{r+k_+1}, 2")
        A(f"ds_write_b128 v{VUW}, v[{r+2}:{r+5}] offset:{1024*gi + XNT_STRIDE*3}")
        for sg_ in range(3):
            A(f"ds_write_b128 v{VUW}, v[{t0+4*sg_}:{t0+4*sg_+3}] offset:{1024*gi + XNT_STRIDE*sg_}")
        if gi == 1: A("s_waitcnt lgkmcnt(4)")
    A("s_mov_b64 exec, -1")
    ACC = 32
    FR = [64, 128]
    def rd(buf, ph, i):
        m = i >> 1
        if i & 1 == 0: A(f"ds_read_b128 v[{FR[buf]+4*m}:{FR[buf]+4*m+3}], v{VF} offset:{512*m+64*ph}")
        else: A(f"ds_read_b128 v[{FR[buf]+32+4*m}:{FR[buf]+32+4*m+3}], v{VG} offset:{3584-512*m+64*ph}")
    A("s_waitcnt lgkmcnt(0)")
    A("s_barrier")
    stampw(A, 9)
    A(f"s_setprio {O.prio_S2}")
    prods = sorted([(m, e) for m in range(8) for e in range(8) if m + e <= 7], key=lambda p: (max(p), p))
    for i in range(14): rd(0, 0, i)
    seen = set()
    UU = 192
    for ph in range(4):
        buf = ph & 1
        nxt = list(range(16)) if ph < 3 else []
        if ph > 0: A("s_waitcnt lgkmcnt(0)")
        if ph == 3:
            for j in range(4): A(f"ds_read_b64 v[{UU+2*j}:{UU+2*j+1}], v{VUU} offset:{512*j}")
        lasts = -1; issued0 = 14
        for n, (m, e) in enumerate(prods):
            sidx = max(m, e)
            if ph == 0 and sidx != lasts:
                if sidx == 1:
                    for i in (14, 15): rd(0, 0, i)
                    issued0 = 16
                if sidx <= 4: A(f"s_waitcnt lgkmcnt({issued0 - (2*sidx+2)})")
                elif sidx == 5: A("s_waitcnt lgkmcnt(0)")
                lasts = sidx
            c = m + e
            cc = f"v[{ACC+4*c}:{ACC+4*c+3}]" if c in seen else "0"
            seen.add(c)
            A(f"v_mfma_f32_16x16x32_bf16 v[{ACC+4*c}:{ACC+4*c+3}], v[{FR[buf]+4*m}:{FR[buf]+4*m+3}], v[{FR[buf]+32+4*e}:{FR[buf]+32+4*e+3}], {cc}")
            if nxt and (ph > 0 or sidx >= 5):
                cnt = 1 if ph > 0 else 2
                if ph > 0 and n % 2 == 1: cnt = 0
                for _ in range(cnt):
                    if nxt and (16 - len(nxt)) < 15: rd(buf ^ 1, ph + 1, nxt.pop(0))
            if ph == 3:
                if n == 4:
                    A("s_waitcnt lgkmcnt(0)")
                    A("s_lshl_b32 s30, s63, 16")
                    A("s_and_b32 s31, s63, 0xffff0000")
                    A("s_cmp_eq_u32 s21, 0")
                    A("s_cselect_b32 s30, s30, s31")
                if 5 <= n < 13:
                    i = n - 5
                    A(f"v_lshlrev_b32 v{64+2*i}, 16, v{UU+i}")
                    A(f"v_and_b32 v{64+2*i+1}, s19, v{UU+i}")
                if 13 <= n < 21:
                    i = n - 13
                    A(f"v_mul_f32 v{64+2*i}, s30, v{64+2*i}")
                    A(f"v_mul_f32 v{64+2*i+1}, s30, v{64+2*i+1}")
                    A(f"v_cvt_pk_bf16_f32 v{UU+i}, v{64+2*i}, v{64+2*i+1}")
                if 21 <= n < 29:
                    i = n - 21
                    A(f"v_lshlrev_b32 v{64+2*i}, 16, v{UU+i}")
                    A(f"v_and_b32 v{64+2*i+1}, s19, v{UU+i}")
        if nxt:
            A("s_waitcnt lgkmcnt(4)")
            while nxt: rd(buf ^ 1, ph + 1, nxt.pop(0))
    stamp(A, 10)
    A(f"s_setprio {O.prio_S3}")
    A("s_lshl_b32 s17, s23, 12")
    A("s_lshl_b32 s18, s22, 11")
    A("s_add_u32 s17, s17, s18")
    A(f"s_add_u32 s17, s17, {WS_ZP}")
    A("s_cmp_eq_u32 s22, 0")
    A("s_cbranch_scc0 S_e1")
    for hf in range(2):
        if hf == 1: A("S_e1:")
        keep = ACC + 16 * hf; send = ACC + 16 * (1 - hf)
        for c in range(4): A(f"ds_write_b128 v{VXW}, v[{send+4*c}:{send+4*c+3}] offset:{1024*c}")
        A("s_waitcnt lgkmcnt(0)")
        A("s_barrier")
        for c in range(4): A(f"ds_read_b128 v[{80+4*c}:{80+4*c+3}], v{VXR} offset:{1024*c}")
        for c in range(4):
            A(f"s_waitcnt lgkmcnt({3-c})")
            for i in range(4): A(f"v_add_f32 v{80+4*c+i}, v{80+4*c+i}, v{keep+4*c+i}")
        if hf == 0: A("s_branch S_e2")
    A("S_e2:")
    for i in range(8): A(f"v_cvt_pk_bf16_f32 v{96+i}, v{80+2*i}, v{80+2*i+1}")
    for i in range(8):
        A(f"v_lshlrev_b32 v{80+2*i}, 16, v{96+i}")
        A(f"v_and_b32 v{80+2*i+1}, s19, v{96+i}")
    for i in range(16): A(f"v_add_f32 v{80+i}, v{80+i}, v{64+i}")
    for i in range(8): A(f"v_cvt_pk_bf16_f32 v{96+i}, v{80+2*i}, v{80+2*i+1}")
    for c in range(4):
        A(f"buffer_store_dwordx2 v[{96+2*c}:{96+2*c+1}], v{VZ}, {W_}, s17 offen offset:{512*c} sc1")
    A("s_lshl_b32 s17, s3, 2")
    A(f"s_add_u32 s17, s17, {FZ}")
    A("s_waitcnt vmcnt(0)")
    A("s_barrier")
    stamp(A, 11)
    flag("S_nofz", 17, 0)
    A("s_cmp_lg_u32 s20, 1")
    A("s_cbranch_scc1 S_fin")
    A("s_cmp_lg_u32 s3, 0")
    A("s_cbranch_scc1 S_fin")
    A(f"s_mov_b32 s17, {FH}")
    A("v_lshrrev_b32 v24, 2, v2")
    A("v_lshlrev_b32 v24, 7, v24")
    A("v_and_b32 v25, 3, v2")
    A("v_lshl_add_u32 v24, v25, 4, v24")
    poll_loop(A, "S_fs", f"buffer_load_dwordx4 v[20:23], v24, {W_}, s17 offen sc1", [20, 21, 22, 23], VTOK, 12, sleep=16)
    A(f"s_mov_b32 s17, {EPOCH}")
    A("s_mov_b64 exec, 1")
    A(f"buffer_store_dword v{VTOK}, v{VZERO}, {W_}, s17 offen sc1")
    A("s_mov_b64 exec, -1")
    A("S_fin:")
    stamp_out(A, 12)
    A("s_endpgm")

def gen_C(A):
    vm = VM(A)
    A("C_role:")
    if O.setprio_C: A(f"s_setprio {O.setprio_C}")
    XS_ = 16896
    A(f"""
v_lshrrev_b32 v1, 6, v0
v_and_b32 v2, 63, v0
v_readfirstlane_b32 s20, v1       ; w
s_and_b32 s21, s2, 7              ; xcd
s_lshr_b32 s22, s2, 3             ; idx 0..31
s_lshr_b32 s23, s21, 1
s_lshl_b32 s23, s23, 2
s_and_b32 s24, s22, 3
s_add_u32 s23, s23, s24           ; rb
s_lshl_b32 s33, s24, 1            ; 2r
s_and_b32 s24, s21, 1
s_mul_i32 s24, s24, 7
s_lshr_b32 s25, s22, 2            ; c
s_add_u32 s24, s24, s25           ; ct
s_lshr_b32 s29, s21, 2
s_add_u32 s33, s33, s29
s_and_b32 s33, s33, {7 if O.rot1 else 0}
v_lshlrev_b32 v3, 4, v2           ; lane*16
v_lshrrev_b32 v7, 4, v2
v_and_b32 v6, 15, v2
v_lshlrev_b32 v8, 2, v7
v_xor_b32 v6, v6, v8
v_lshlrev_b32 v6, 4, v6
v_mul_u32_u24 v8, 3584, v7
v_add_u32 v6, v6, v8
s_mul_i32 s27, s20, {16*3584}
s_lshl_b32 s28, s24, 8
s_add_u32 s27, s27, s28
s_lshl_b32 s28, s20, 12           ; w*4096
v_and_b32 v9, 31, v2              ; lr
v_lshrrev_b32 v7, 5, v2           ; h
s_waitcnt lgkmcnt(0)
s_load_dword s{TOK}, s[{P_WS}:{P_WS+1}], {EPOCH}
""")
    srd(A, WSRD, P_WS, WS_BYTES)
    srd(A, 8, P_W1, 512 * 3584)
    srd(A, 12, P_U, 2048 * 1024)
    srd(A, 16, P_W2, 1792 * 1024)
    NS = 28; RS_ = 10; HD = O.hd; NRA = O.nra
    A(f"""
s_lshl_b32 s36, s21, 2
s_and_b32 s37, s22, 3
s_add_u32 s36, s36, s37
s_lshr_b32 s37, s22, 2            ; dtb
s_mul_i32 s38, s37, 7
s_lshr_b32 s38, s38, 1
s_and_b32 s29, s22, 3
s_mul_i32 s29, s29, 7
s_add_u32 s38, s38, s29
s_sub_u32 s29, s38, 28
s_cmp_ge_u32 s38, 28
s_cmov_b32 s38, s29
s_and_b32 s38, s38, {31 if O.rot2 else 0}
v_lshrrev_b32 v4, 3, v2
v_and_b32 v5, 7, v2
v_bfe_u32 v8, v2, 4, 1
v_lshlrev_b32 v8, 2, v8
v_xor_b32 v5, v5, v8
v_lshlrev_b32 v5, 4, v5
v_lshl_add_u32 v4, v4, 10, v5
s_mul_i32 s39, s20, {28*16*1024}
s_lshl_b32 s29, s37, 7
s_add_u32 s39, s39, s29           ; w2 start
s_add_u32 s40, s39, {28*16384}    ; w2 end
s_lshl_b32 s29, s38, 14
s_add_u32 s41, s39, s29           ; w2 cur
s_lshl_b32 s30, s20, 11
""")
    A(f"""
s_lshr_b32 s29, s20, 1
s_lshl_b32 s29, s29, 5
s_lshl_b32 s34, s36, 6
s_add_u32 s34, s34, s29
s_lshl_b32 s34, s34, 10
s_lshl_b32 s29, s37, 7
s_add_u32 s34, s34, s29
s_and_b32 s29, s20, 1
s_lshl_b32 s29, s29, 6
s_add_u32 s34, s34, s29
v_lshlrev_b32 v8, 10, v9
v_lshl_add_u32 v8, v7, 3, v8
""")
    for g in range(4):
        vm.op(f"buffer_load_dwordx2 v[{18+2*g}:{18+2*g+1}], v8, s[12:15], s34 offen offset:{16*g} {O.xe_fl}", "x")
    SL = [9, 0, 1, 2, 3, 4, 5, 6, 7, 8]
    def dma_w2(st):
        sl = SL[st % RS_]
        for j in range(2):
            A(f"s_add_u32 m0, s30, {sl*8192 + 1024*j}")
            if j: A("s_add_u32 s29, s41, 8192")
            vm.op(f"buffer_load_dwordx4 v4, s[16:19], {'s29' if j else 's41'} offen {O.w2_fl} lds", f"w{st}")
        A("s_add_u32 s41, s41, 16384")
        A("s_cmp_eq_u32 s41, s40")
        A("s_cmov_b32 s41, s39")
    def token_and_started(track):
        A("s_waitcnt lgkmcnt(0)")
        A(f"s_mul_i32 s{TOK}, s{TOK}, 0x9e3779b1")
        A(f"s_add_u32 s{TOK}, s{TOK}, 0x7f4a7c15")
        A(f"v_mov_b32 v26, s{TOK}")
        A("v_mov_b32 v27, 0")
        if track: return
        A("s_cmp_lg_u32 s20, 1")
        A("s_cbranch_scc1 C_noidf")
        A("s_sub_u32 s34, s22, 28")
        A("s_lshl_b32 s34, s34, 3")
        A("s_add_u32 s34, s34, s21")
        A("s_lshr_b32 s29, s34, 1")
        A("s_lshl_b32 s29, s29, 7")
        A("s_and_b32 s34, s34, 1")
        A("s_lshl_b32 s34, s34, 2")
        A("s_add_u32 s34, s34, s29")
        A(f"s_add_u32 s34, s34, {FH + 56}")
        A("s_mov_b64 exec, 1")
        A(f"buffer_store_dword v26, v27, s[{WSRD}:{WSRD+3}], s34 offen sc1")
        A("s_mov_b64 exec, -1")
        A("C_noidf:")
    def warm_w2():
        A("s_sub_u32 s34, s22, 28")
        A("s_lshl_b32 s34, s34, 2")
        A("s_add_u32 s34, s34, s20")
        A(f"s_mul_i32 s34, s34, {112*1024}")
        A(f"s_add_u32 s35, s34, {112*1024}")
        A(f"s_mul_i32 s29, s21, {14*1024}")
        A("s_add_u32 s33, s34, s29")
        A("s_lshl_b32 s29, s20, 10")
        A(f"s_add_u32 m0, s29, {4*XS_}")
        A("s_mov_b32 s32, 0")
        A("C_warm:")
        for i in range(2):
            A(f"s_waitcnt vmcnt({O.warm_depth-1})")
            A("buffer_load_dwordx4 v3, s[16:19], s33 offen lds")
            A("s_add_u32 s33, s33, 1024")
        A("s_cmp_eq_u32 s33, s35")
        A("s_cmov_b32 s33, s34")
        A("s_add_u32 s32, s32, 1")
        A(f"s_cmp_lt_u32 s32, {O.warm_n}")
        A("s_cbranch_scc1 C_warm")
    A("s_cmp_ge_u32 s22, 28")
    A("s_cbranch_scc1 C_idle")
    def dma_w(st):
        A(f"s_add_u32 s29, s33, {st}")
        A("s_and_b32 s29, s29, 7")
        A(f"s_mul_i32 s31, s29, {64*3584}")
        A("s_add_u32 s31, s31, s27")
        for j in range(4):
            A(f"s_add_u32 m0, s28, {(st % 5)*16384 + 1024*j}")
            if j: A(f"s_add_u32 s31, s31, {4*3584}")
            if O.w1depth and len(vm.ops) >= O.w1depth:
                A(f"s_waitcnt vmcnt({O.w1depth-1})"); vm.ops = vm.ops[-(O.w1depth-1):]
            vm.op(f"buffer_load_dwordx4 v6, s[8:11], s31 offen {O.w1_fl} lds", f"a{st}")
    for st in range(5): dma_w(st)
    stamp(A, 2)
    A(f"""
v_bfe_u32 v40, v2, 2, 2           ; r
v_and_b32 v41, 3, v2              ; c
v_bfe_u32 v42, v2, 4, 1           ; g16
v_lshl_add_u32 v43, v7, 3, v40
v_lshlrev_b32 v43, 8, v43
v_lshl_add_u32 v43, v42, 5, v43
v_lshl_add_u32 v43, v41, 3, v43
v_xor_b32 v10, s20, v40
v_lshl_add_u32 v10, v10, 6, v43
v_add_u32 v11, 0x10000, v10
v_xor_b32 v12, v9, v7
s_lshl_b32 s29, s33, 3
v_add_u32 v12, s29, v12
v_add_u32 v13, 32, v12
v_and_b32 v12, 63, v12
v_and_b32 v13, 63, v13
v_lshlrev_b32 v12, 4, v12
v_lshlrev_b32 v13, 4, v13
v_lshl_add_u32 v12, v7, 10, v12
v_lshl_add_u32 v13, v7, 10, v13
v_lshrrev_b32 v14, 1, v9
v_mul_u32_u24 v14, 1056, v14
v_and_b32 v15, 1, v9
v_lshl_add_u32 v14, v15, 9, v14
v_xor_b32 v15, v15, v7
v_lshl_add_u32 v14, v15, 4, v14
s_lshl_b32 s26, s23, 17
s_lshl_b32 s29, s20, 13
s_add_u32 s26, s26, s29
s_add_u32 s26, s26, {WS_XN}
s_mul_i32 s32, s20, {4*1056}
s_lshl_b32 s35, s23, 7
s_add_u32 s35, s35, {FA}
v_and_b32 v28, 15, v2
v_lshlrev_b32 v28, 2, v28
s_mul_i32 s34, s23, 448
s_lshl_b32 s29, s24, 3
s_add_u32 s34, s34, s29
s_lshl_b32 s29, s20, 1
s_add_u32 s34, s34, s29
s_lshl_b32 s34, s34, 10
s_add_u32 s49, s34, {WS_H}
""")
    token_and_started(True)
    W = 64
    for st in range(8):
        vm.wait(f"a{st}")
        if st: A("s_waitcnt lgkmcnt(0)")
        A("s_barrier")
        if st == 0: stampw(A, 3)
        for ks in range(4):
            for rd in range(2):
                sl = st % 5
                A(f"ds_read_b64_tr_b16 v[{W+16*st+4*ks+2*rd}:{W+16*st+4*ks+2*rd+1}], v{10 if sl < 4 else 11} offset:{(sl&3)*16384+4096*ks+1024*rd}")
        if st >= 1 and st + 4 < 8: dma_w(st + 4)
    A("s_waitcnt lgkmcnt(0)")
    stamp(A, 4)
    if O.stop == 1:
        for i in range(5, 12): stamp(A, i)
        stamp_out(A, 12); A("s_endpgm")
    A("s_cmp_lg_u32 s20, 0")
    A("s_cbranch_scc1 C_fa_ok")
    poll_loop(A, "C_fa", f"buffer_load_dword v31, v28, s[{WSRD}:{WSRD+3}], s35 offen sc1", [31], 26, 29)
    A("s_barrier")
    stamp(A, 5)
    def tile_off(t, dst, mul, base):
        A(f"s_add_u32 s29, s25, {t}")
        A("s_and_b32 s29, s29, 3")
        A(f"s_mul_i32 s{dst}, s29, {mul}")
        A(f"s_add_u32 s{dst}, s{dst}, s{base}")
    def dma_x(sg, i):
        t, hf = sg >> 1, sg & 1
        if i == 0: tile_off(t, 31, 32768, 26)
        else: A("s_add_u32 s31, s31, 2048")
        A(f"s_add_u32 m0, s32, {(sg & 3)*XS_ + 1056*i}")
        vm.op(f"buffer_load_dwordx4 v{12+hf}, s[{WSRD}:{WSRD+3}], s31 offen sc1 lds", f"x{sg}")
    for sg in range(4):
        for i in range(4): dma_x(sg, i)
    AC = [192, 208]; BF = 224; OP = 240
    def epi_ops(t):
        d = AC[t & 1]
        ops = [f"v_max_f32 v{d+r}, 0, v{d+r}" for r in range(16)]
        ops += [f"v_cvt_pk_bf16_f32 v{OP+i}, v{d+2*i}, v{d+2*i+1}" for i in range(8)]
        return ops
    def epi_store(t):
        tile_off(t, 44, 112 * 1024, 49)
        for e in range(2):
            vm.op(f"buffer_store_dwordx4 v[{OP+4*e}:{OP+4*e+3}], v3, s[{WSRD}:{WSRD+3}], s44 offen offset:{1024*e} sc1", "hst")
    w2next = 0
    def rdB(n):
        sg_, i_ = n >> 4, n & 15
        A(f"ds_read_b128 v[{BF+4*(n&3)}:{BF+4*(n&3)+3}], v14 offset:{(sg_&3)*XS_+32*i_}")
    vm.wait("x0")
    A("s_barrier")
    stampw(A, 6)
    for n in range(3): rdB(n)
    side = []; dm = []
    for n in range(128):
        sg, i = n >> 4, n & 15
        t, hf = sg >> 1, sg & 1
        if i == 0 and hf == 0 and t >= 1:
            side += [("v", o) for o in epi_ops(t - 1)] + [("st", t - 1)]
        if i == 13:
            if sg + 1 < 8: vm.wait(f"x{sg+1}")
            A("s_barrier")
            if sg >= 1 and sg + 3 < 8: dm += [("x", sg + 3, k_) for k_ in range(4)]
            nw2 = {3: 1, 5: 2, 6: 2, 7: 2}.get(sg, 0)
            dm += [("w2", w2next + k_) for k_ in range(nw2)]; w2next += nw2
        if n + 3 < 128:
            rdB(n + 3); A("s_waitcnt lgkmcnt(3)")
        else: A(f"s_waitcnt lgkmcnt({127 - n})")
        d = AC[t & 1]; wreg = W + 4 * (16 * hf + i)
        cc = "0" if (hf == 0 and i == 0) else f"v[{d}:{d+15}]"
        A(f"v_mfma_f32_32x32x16_bf16 v[{d}:{d+15}], v[{wreg}:{wreg+3}], v[{BF+4*(n&3)}:{BF+4*(n&3)+3}], {cc}")
        if dm and (n % 2 == 1 or n >= 125):
            x = dm.pop(0)
            if x[0] == "x": dma_x(x[1], x[2])
            else: dma_w2(x[1])
        elif i >= 3 or hf == 1:
            for _ in range(3):
                if side:
                    k_, o = side.pop(0)
                    if k_ == "v": A(o)
                    else:
                        epi_store(o); break
    assert not side and not dm, (side, dm)
    stamp(A, 7)
    for o in epi_ops(3): A(o)
    epi_store(3)
    A("s_barrier")
    for st in range(w2next, RS_): dma_w2(st)
    A("s_lshl_b32 s29, s23, 7")
    A("s_lshl_b32 s34, s24, 2")
    A("s_add_u32 s29, s29, s34")
    A(f"s_add_u32 s50, s29, {FH}")
    A("s_mov_b32 s51, 0")
    g1_ops = list(vm.ops)
    A("s_branch C_g2")
    A("C_idle:")
    if O.idle_exit: A("s_endpgm")
    token_and_started(False)
    if O.warm_delay:
        A("s_lshl_b32 s35, s23, 7")
        A(f"s_add_u32 s35, s35, {FA}")
        A("v_and_b32 v28, 15, v2")
        A("v_lshlrev_b32 v28, 2, v28")
        A("s_cmp_lg_u32 s20, 0")
        A("s_cbranch_scc1 C_fi_ok")
        poll_loop(A, "C_fi", f"buffer_load_dword v31, v28, s[{WSRD}:{WSRD+3}], s35 offen sc1", [31], 26, 29, sleep=16)
        A("s_barrier")
    if O.warm_w2:
        warm_w2()
        A("s_waitcnt vmcnt(0)")
        A("s_barrier")
    for st in range(RS_): dma_w2(st)
    A("s_waitcnt vmcnt(0)")
    A("s_mov_b32 s51, 99")
    A(f"s_mov_b32 s50, {FH}")
    vm.ops = g1_ops
    if O.stamps:
        for i in range(2, 8): stamp(A, i)
    A("C_g2:")
    A(f"""
s_mul_i32 s42, s36, 224
s_mul_i32 s29, s20, 28
s_add_u32 s42, s42, s29
s_lshl_b32 s42, s42, 10
s_add_u32 s42, s42, {WS_H}        ; h start
s_add_u32 s43, s42, {28*1024}     ; h end
s_lshl_b32 s29, s38, 10
s_add_u32 s48, s42, s29           ; h cur
v_add_u32 v5, {112*1024}, v3      ; h voffset t=1
s_and_b32 s31, s20, 1
s_lshr_b32 s32, s20, 1
s_lshl_b32 s33, s36, 6
s_lshl_b32 s34, s32, 5
s_add_u32 s33, s33, s34
s_lshl_b32 s34, s37, 6
s_lshl_b32 s35, s31, 5
s_add_u32 s34, s34, s35           ; d base
s_lshl_b32 s35, s33, 10
s_lshl_b32 s29, s34, 1
s_add_u32 s35, s35, s29
v_lshlrev_b32 v8, 10, v9
v_lshl_add_u32 v8, v7, 3, v8
s_lshl_b32 s44, s34, 12
s_lshl_b32 s29, s33, 1
s_add_u32 s44, s44, s29
s_add_u32 s44, s44, {WS_ZP}
v_lshrrev_b32 v28, 2, v2
v_and_b32 v10, 3, v2
v_lshlrev_b32 v10, 4, v10
v_lshl_add_u32 v28, v28, 12, v10
v_bfe_u32 v10, v2, 2, 2
v_and_b32 v11, 3, v2
v_bfe_u32 v12, v2, 4, 1
v_lshl_add_u32 v13, v7, 2, v10
v_lshlrev_b32 v13, 7, v13
v_lshl_add_u32 v13, v12, 5, v13
v_lshl_add_u32 v13, v11, 3, v13
v_add_u32 v13, s30, v13
v_lshrrev_b32 v10, 1, v10
v_lshl_add_u32 v14, v10, 6, v13
v_xor_b32 v10, 1, v10
v_lshl_add_u32 v15, v10, 6, v13
v_add_u32 v16, 0x10000, v14
v_add_u32 v17, 0x10000, v15
s_lshr_b32 s45, s36, 1
s_lshl_b32 s45, s45, 7
s_add_u32 s45, s45, {FH}
s_lshl_b32 s46, s37, 7
s_add_u32 s46, s46, {FZ}
v_lshlrev_b32 v29, 2, v9
v_min_u32 v30, 52, v29
v_bfe_u32 v10, v2, 2, 2
v_lshl_add_u32 v10, v7, 2, v10    ; 4h + r
v_lshlrev_b32 v10, 6, v10
v_lshl_add_u32 v10, v12, 5, v10
v_lshl_add_u32 v10, v11, 3, v10
v_add_u32 v12, s30, v10
v_add_u32 v13, 0x10000, v12
v_add_u32 v10, s30, v3
v_add_u32 v11, 0x10000, v10
v_lshlrev_b32 v9, 10, v9
v_lshl_add_u32 v9, v7, 4, v9
""")
    srd(A, 8, P_OUT, 2048 * 1024)
    ZSL_ = SL[18 % RS_]
    free_ = [sl for sl in range(RS_) if sl != ZSL_][:8]
    for half, reg in ((0, 6), (1, 31)):
        A(f"s_mov_b32 s29, {free_[half]*8192}")
        for w_ in range(1, 4):
            A(f"s_cmp_eq_u32 s20, {w_}")
            A(f"s_cmov_b32 s29, {free_[2*w_+half]*8192}")
        A(f"s_mov_b32 s{31+half}, s29")
    ACC = 32
    RA = 96
    HR = RA + 8 * NRA
    assert HR + 8 * HD <= 256
    def areg(st): return RA + 8 * (st % NRA)
    def rdA2(st):
        sl = SL[st % RS_]; dst = areg(st)
        for u in range(2):
            for rd in range(2):
                A(f"ds_read_b64_tr_b16 v[{dst+4*u+2*rd}:{dst+4*u+2*rd+1}], v{(14 if sl < 8 else 16)+u} offset:{(sl&7)*8192+1024*rd}")
    def ld_h(st, t):
        sl = st % HD
        vm.op(f"buffer_load_dwordx4 v[{HR+8*sl+4*t}:{HR+8*sl+4*t+3}], v{3 if t == 0 else 5}, s[{WSRD}:{WSRD+3}], s48 offen {O.h_fl}", f"h{st}")
        if t == 1:
            A("s_add_u32 s48, s48, 1024")
            A("s_cmp_eq_u32 s48, s43")
            A("s_cmov_b32 s48, s42")
    XR = 18
    hflag = f"buffer_load_dword v31, v30, s[{WSRD}:{WSRD+3}], s45 offen sc1"
    wnext = RS_
    for st in range(NRA):
        if st == O.pub_at:
            vm.wait("hst")
            A("s_barrier")
            A("s_cmp_lg_u32 s20, s51")
            A("s_cbranch_scc1 C_nopub")
            A("s_mov_b64 exec, 1")
            A(f"{FLAGOP()} v26, v27, s[{WSRD}:{WSRD+3}], s50 offen sc1")
            A("s_mov_b64 exec, -1")
            A("C_nopub:")
            stamp(A, 8)
        vm.wait(f"w{st}")
        rdA2(st)
        if st >= 1:
            A("s_waitcnt lgkmcnt(4)")
            dma_w2(wnext); wnext += 1
        if st == O.hf_issue: vm.op(hflag, "hf")
    A("s_waitcnt lgkmcnt(0)")
    dma_w2(wnext); wnext += 1
    stamp(A, 9)
    vm.wait("hf")
    A("v_cmp_ne_u32 vcc, v31, v26")
    A("s_cbranch_vccz C_fh_ok")
    poll_loop(A, "C_fh", hflag, [31], 26, 29)
    stamp(A, 10)
    for st in range(HD):
        for t in range(2): ld_h(st, t)
    zflag = f"buffer_load_dword v31, v29, s[{WSRD}:{WSRD+3}], s46 offen sc1"
    TAIL = 4
    assert HD >= TAIL
    T1 = RA + 8 * 12; T2 = RA + 8 * 14; ZR = RA
    assert NS - NRA <= 12
    rnext = NRA
    ZSL = SL[18 % RS_]
    A("s_mov_b32 s47, 0xffff0000")
    def mf(st, t, u):
        af = areg(st); sl = st % HD
        d = ACC + 16 * (2 * t + u)
        cc = "0" if st == 0 else f"v[{d}:{d+15}]"
        A(f"v_mfma_f32_32x32x16_bf16 v[{d}:{d+15}], v[{af+4*u}:{af+4*u+3}], v[{HR+8*sl+4*t}:{HR+8*sl+4*t+3}], {cc}")
    lds_pending = False
    for st in range(NS - TAIL):
        vm.wait(f"h{st}")
        if lds_pending:
            A("s_waitcnt lgkmcnt(0)"); lds_pending = False
            if wnext < NS and wnext - RS_ < rnext:
                dma_w2(wnext); wnext += 1
        n = 0
        for t in range(2):
            for u in range(2):
                mf(st, t, u); n += 1
                if n == 2 and st + HD < NS: ld_h(st + HD, 0)
                if n == 4 and st + HD < NS: ld_h(st + HD, 1)
        if rnext < NS and rnext - NRA <= st - 1:
            vm.wait(f"w{rnext}")
            rdA2(rnext); rnext += 1; lds_pending = True
        if O.g2stamps and st in (3, 7, 11, 15, 19, 23): stampw(A, 2 + (st >> 2))
        if st == O.zf_issue: vm.op(zflag, "zf")
        if st == O.zf_check:
            vm.wait("zf")
            A("v_cmp_ne_u32 vcc, v31, v26")
            A("s_cbranch_vccz C_fz_ok")
            poll_loop(A, "C_fz", zflag, [31], 26, 29)
        if st == NS - TAIL - 1:
            for j in range(2):
                A(f"s_add_u32 m0, s30, {ZSL*8192 + 1024*j}")
                if j: A("s_add_u32 s44, s44, 65536")
                vm.op(f"buffer_load_dwordx4 v28, s[{WSRD}:{WSRD+3}], s44 offen sc1 lds", "z")
    assert wnext == NS and rnext == NS, (wnext, rnext)
    free = [sl for sl in range(RS_) if sl != ZSL][:8]
    vm.wait(f"h{NS-1}")
    side = []
    for i in range(8):
        side += [f"v_lshlrev_b32 v{T1+2*i}, 16, v{XR+i}", f"v_and_b32 v{T1+2*i+1}, s47, v{XR+i}"]
    zops = []
    for i in range(8):
        zops += [f"v_lshlrev_b32 v{T2+2*i}, 16, v{ZR+i}", f"v_and_b32 v{T2+2*i+1}, s47, v{ZR+i}"]
    zops += [f"v_pk_add_f32 v[{T1+i}:{T1+i+1}], v[{T1+i}:{T1+i+1}], v[{T2+i}:{T2+i+1}]" for i in range(0, 16, 2)]
    zops += [f"v_cvt_pk_bf16_f32 v{XR+i}, v{T1+2*i}, v{T1+2*i+1}" for i in range(8)]
    for i in range(8):
        zops += [f"v_lshlrev_b32 v{T1+2*i}, 16, v{XR+i}", f"v_and_b32 v{T1+2*i+1}, s47, v{XR+i}"]
    def wr(q, i):
        sl = free[2 * q + (i >> 1)]
        d = ACC + 16 * q + 4 * i
        A(f"ds_write_b128 v{10 if sl < 8 else 11}, v[{d}:{d+3}] offset:{(sl&7)*8192 + 1024*(i&1)}")
    for q in range(4):
        t, u = q >> 1, q & 1
        for k_, st in enumerate(range(NS - TAIL, NS)):
            mf(st, t, u)
            for _ in range(5):
                if side: A(side.pop(0))
            if q >= 1 and k_ >= 2:
                wr(q - 1, 2 * (k_ - 2)); wr(q - 1, 2 * (k_ - 2) + 1)
    while side: A(side.pop(0))
    stamp(A, 11)
    for i in range(4): wr(3, i)
    A("v_add_u32 v6, s31, v3")
    A("v_add_u32 v4, s32, v3")
    vm.wait("z")
    for g in range(4):
        A(f"ds_read_b64_tr_b16 v[{ZR+2*g}:{ZR+2*g+1}], v{12 if ZSL < 8 else 13} offset:{(ZSL&7)*8192 + 512*g}")
    A("s_waitcnt lgkmcnt(0)")
    A("s_barrier")
    for src in range(4):
        for i in range(4):
            d = ACC + 16 * src + 4 * i
            A(f"ds_read_b128 v[{d}:{d+3}], v{6 if i < 2 else 4} offset:{src*2048 + 1024*(i&1)}")
        if src == 2:
            for o in zops: A(o)
            A("s_waitcnt lgkmcnt(4)")
    for i in range(0, 16, 2):
        A(f"v_pk_add_f32 v[{ACC+i}:{ACC+i+1}], v[{ACC+i}:{ACC+i+1}], v[{ACC+16+i}:{ACC+17+i}]")
    A("s_waitcnt lgkmcnt(0)")
    for i in range(0, 16, 2):
        A(f"v_pk_add_f32 v[{ACC+32+i}:{ACC+33+i}], v[{ACC+32+i}:{ACC+33+i}], v[{ACC+48+i}:{ACC+49+i}]")
    for i in range(0, 16, 2):
        A(f"v_pk_add_f32 v[{ACC+i}:{ACC+i+1}], v[{ACC+i}:{ACC+i+1}], v[{ACC+32+i}:{ACC+33+i}]")
    for i in range(8): A(f"v_cvt_pk_bf16_f32 v{ZR+i}, v{ACC+2*i}, v{ACC+2*i+1}")
    for i in range(8):
        A(f"v_lshlrev_b32 v{T2+2*i}, 16, v{ZR+i}")
        A(f"v_and_b32 v{T2+2*i+1}, s47, v{ZR+i}")
    for i in range(0, 16, 2):
        A(f"v_pk_add_f32 v[{T1+i}:{T1+i+1}], v[{T1+i}:{T1+i+1}], v[{T2+i}:{T2+i+1}]")
    OUTR = ACC
    for i in range(8): A(f"v_cvt_pk_bf16_f32 v{OUTR+i}, v{T1+2*i}, v{T1+2*i+1}")
    for p in range(2):
        A(f"v_permlane32_swap_b32 v{OUTR+4*p}, v{OUTR+4*p+2}")
        A(f"v_permlane32_swap_b32 v{OUTR+4*p+1}, v{OUTR+4*p+3}")
    for p in range(2):
        A(f"buffer_store_dwordx4 v[{OUTR+4*p}:{OUTR+4*p+3}], v9, s[8:11], s35 offen offset:{32*p}")
    stamp_out(A, 12)
    A("s_endpgm")

def build(path, **opts):
    for k_, v_ in opts.items(): setattr(O, k_, v_)
    A = Asm()
    A.begin_kernel(K)
    stamp(A, 0, real=True); stamp(A, 1)
    if O.dbgtime: A("s_memrealtime s[64:65]\ns_memtime s[66:67]")
    A(f"""
s_cmp_ge_u32 s2, 512
s_cbranch_scc1 K_done
s_load_dwordx16 s[36:51], s[0:1], 0
s_load_dwordx8 s[52:59], s[0:1], 64
s_load_dwordx2 s[60:61], s[0:1], 96
{'s_xor_b32 s2, s2, 256' if O.sfirst else ''}
s_cmp_ge_u32 s2, 256
s_cbranch_scc1 {'K_done' if O.only == 'C' else 'S_role'}
{'s_branch K_done' if O.only == 'S' else ''}
""")
    gen_C(A)
    gen_S(A)
    A("K_done:")
    A("s_endpgm")
    A.end_kernel(K, vgpr=256, sgpr=102, ieee=False)
    A.lines, n = hazard.fix(A.lines)
    hdr = open("cdna_kernels/" + NAME + ".s.ref").read().split("; Override launch")[0]
    txt = A.text(hdr + "; @launch grid=(512,1,1) block=(256,1,1) lds=81920\n")
    open(path, "w").write(txt)
    return n

if __name__ == "__main__":
    print("nops", build("mega.s", stamps=False))
    build("mega_st.s", stamps=True)
    build("d1.s", stamps=False, dbgtime=True)
```

```python
from gen import *
import hazard, sys

WS_XNT = 0x200000
XNT_STRIDE = 4160
KIMG_STRIDE = 9216
KCOPY = 4640
WS_ZP = 0xA00000
WS_H = 0xC00000
WS_STAT = 0x0
WS_FLG = 0x10000
FX, FH, FZ, FS, EPOCH, FA = WS_FLG, WS_FLG + 0x1000, WS_FLG + 0x2000, WS_FLG + 0x3000, WS_FLG + 0x4000, WS_FLG + 0x5000
WS_XN = 0x1400000
WS_BYTES = 0x10000000
WS_STAMP = 0x2000000
LOG2E = 0x3fb8aa3b
INV2PI = 0x3e22f983
SPIN_MAX = 200000
K = NAME + "_kernel"

P_U, P_LAR, P_AIM, P_CRE, P_CIM, P_LDT, P_DSK = 36, 38, 40, 42, 44, 46, 48
P_W1, P_W2, P_OUT, P_DBG, P_WS = 52, 54, 56, 58, 60
TOK = 62
WSRD = 4

class Opt:
    stamps = False
    x_fl = ""
    w1_fl = ""
    w2_fl = ""
    rot1 = True
    rot2 = True
    warm_w2 = True
    hd = 4
    dbgtime = False
    flag_atomic = True
    warm_delay = True
    xe_fl = ''
    pub_at = 7
    hf_issue = 13
    prio_S3 = 2
    warm_depth = 8
    warm_n = 28
    sfirst = True
    par_fl = 'nt'
    xsl_fl = 'nt'
    zf_issue = 17
    zf_check = 22
    h_fl = 'sc1'
    nojit = False
    g2stamps = False
    plain23 = True
    prio_S2 = 0
    w1depth = 7
    x8_fl = 'nt'
    stop = 0
    idle_exit = False
    nra = 16
    only = ''
    setprio_S = 3
    setprio_C = 1
O = Opt()

def FLAGOP(): return 'buffer_atomic_swap' if O.flag_atomic else 'buffer_store_dword'
def stamp(A, i, real=False):
    if O.stamps:
        A(f"{'s_memrealtime' if real else 's_memtime'} s[{64+2*i}:{65+2*i}]")
def stampw(A, i):
    if O.stamps:
        A("s_waitcnt lgkmcnt(0)"); stamp(A, i); A("s_waitcnt lgkmcnt(0)")
def stamp_out(A, n):
    if O.dbgtime:
        lb = A.newlabel("DT")
        A("s_and_b32 s72, s2, 127")
        A("s_cmp_lg_u32 s72, 5")
        A(f"s_cbranch_scc1 {lb}")
        A("s_cmp_lg_u32 s20, 0")
        A(f"s_cbranch_scc1 {lb}")
        A("s_waitcnt vmcnt(0) lgkmcnt(0)")
        A("s_memtime s[68:69]")
        A("s_memrealtime s[70:71]")
        A("s_waitcnt lgkmcnt(0)")
        A("s_sub_u32 s68, s68, s66")
        A("s_sub_u32 s73, s70, s64")
        A("s_lshr_b32 s72, s2, 7")
        A("s_lshl_b32 s72, s72, 4")
        A("s_mov_b64 exec, 1")
        A("v_mov_b32 v1, s72")
        for i, r in enumerate((64, 70, 68, 73)):
            A(f"v_mov_b32 v2, s{r}")
            A(f"global_store_dword v1, v2, s[{P_DBG}:{P_DBG+1}] offset:{4*i}")
        A("s_waitcnt vmcnt(0)")
        A(f"{lb}:")
    if not O.stamps: return
    A("s_mov_b64 exec, -1")
    A("s_waitcnt vmcnt(0) lgkmcnt(0)")
    stamp(A, n); stamp(A, n + 1, real=True)
    A("s_waitcnt lgkmcnt(0)")
    A("v_lshrrev_b32 v1, 6, v0")
    A(f"s_mul_i32 s100, s2, 256")
    A(f"s_add_u32 s100, s100, {WS_STAMP}")
    A("v_lshlrev_b32 v1, 6, v1")
    A("v_add_u32 v1, s100, v1")
    for i in range(n + 2):
        A(f"v_mov_b32 v2, s{64+2*i}")
        A(f"global_store_dword v1, v2, s[{P_WS}:{P_WS+1}] offset:{4*i}")
    A("s_waitcnt vmcnt(0)")

def srd(A, d, p, nbytes):
    A(f"s_mov_b32 s{d}, s{p}")
    A(f"s_mov_b32 s{d+1}, s{p+1}")
    A(f"s_mov_b32 s{d+2}, {nbytes}")
    A(f"s_mov_b32 s{d+3}, 0x00020000")

def dpp_sum(A, regs):
    for ctl in ("row_shr:1 row_mask:0xf", "row_shr:2 row_mask:0xf", "row_shr:4 row_mask:0xf", "row_shr:8 row_mask:0xf",
                "row_bcast:15 row_mask:0xa", "row_bcast:31 row_mask:0xc"):
        for r in regs:
            bc = " bound_ctrl:0" if "shr" in ctl else ""
            A(f"v_add_f32_dpp v{r}, v{r}, v{r} {ctl} bank_mask:0xf{bc}")

def bf16_round(A, dst, src):
    A(f"v_cvt_pk_bf16_f32 v{dst}, v{src}, v{src}")
    A(f"v_lshlrev_b32 v{dst}, 16, v{dst}")

class VM:
    def __init__(self, A): self.A = A; self.ops = []
    def op(self, txt, tag): self.A(txt); self.ops.append(tag)
    def wait(self, *tags):
        idx = max((i for i, t in enumerate(self.ops) if t in tags), default=-1)
        if idx < 0: return
        n = len(self.ops) - 1 - idx
        assert n <= 63, n
        self.A(f"s_waitcnt vmcnt({n})")
        self.ops = self.ops[idx + 1:]
    def drain(self):
        self.A("s_waitcnt vmcnt(0)"); self.ops = []

def poll_loop(A, name, load, cmp_regs, tokv, cnt, sleep=2):
    A(f"s_mov_b32 s{cnt}, 0")
    A(f"{name}_poll:")
    A(load)
    A(f"s_add_u32 s{cnt}, s{cnt}, 1")
    A("s_waitcnt vmcnt(0)")
    check(A, cmp_regs, tokv)
    A(f"s_cbranch_vccz {name}_ok")
    A(f"s_cmp_gt_u32 s{cnt}, {0 if (O.only == 'C' and name in ('C_fa','C_fz','C_fi')) or (O.only == 'S' and name == 'S_fs') else SPIN_MAX}")
    A(f"s_cbranch_scc1 {name}_ok")
    A(f"s_sleep {sleep}")
    A(f"s_branch {name}_poll")
    A(f"{name}_ok:")

def check(A, regs, tokv, tmp=None):
    if len(regs) == 1:
        A(f"v_cmp_ne_u32 vcc, v{regs[0]}, v{tokv}")
        return
    t = tmp if tmp is not None else 255
    A(f"v_xor_b32 v{t}, v{regs[0]}, v{tokv}")
    for r in regs[1:]:
        A(f"v_xor_b32 v{t-1}, v{r}, v{tokv}")
        A(f"v_or_b32 v{t}, v{t}, v{t-1}")
    A(f"v_cmp_ne_u32 vcc, 0, v{t}")

def gen_S(A):
    UB = 0; USZ = 17408
    KB = 2 * USZ + 64
    PAR = KB + 2 * KIMG_STRIDE
    XCH = PAR + 4352
    TBL = XCH + 8192 + 64
    XSL = TBL + 2 * 1344
    assert XSL + 8192 <= 81920
    XB = PAR
    assert XB + 16384 <= 81920
    W_ = f"s[{WSRD}:{WSRD+3}]"
    vm = VM(A)
    A("S_role:")
    if O.setprio_S: A(f"s_setprio {O.setprio_S}")
    A(f"""
s_sub_u32 s3, s2, 256            ; b
v_lshrrev_b32 v1, 6, v0          ; wave
v_and_b32 v2, 63, v0             ; lane
v_readfirstlane_b32 s20, v1
s_lshr_b32 s21, s20, 1           ; ch
s_and_b32 s22, s20, 1
s_lshl_b32 s23, s3, 1
s_add_u32 s23, s23, s21          ; d
s_and_b32 s24, s3, 7             ; xcd
s_lshr_b32 s25, s3, 3            ; j
s_lshl_b32 s16, s24, 8
s_lshl_b32 s17, s25, 3
s_add_u32 s16, s16, s17          ; LN r0
s_lshl_b32 s17, s20, 1
s_add_u32 s16, s16, s17
s_lshl_b32 s18, s16, 10
s_lshl_b32 s26, s24, 1
s_lshr_b32 s27, s25, 4
s_add_u32 s26, s26, s27
s_and_b32 s27, s25, 15           ; sl
v_lshlrev_b32 v3, 4, v2          ; lane*16
v_lshrrev_b32 v4, 2, v2
v_and_b32 v5, 3, v2
v_lshlrev_b32 v5, 4, v5
v_lshl_add_u32 v4, v4, 10, v5
s_lshl_b32 s28, s26, 17
s_lshl_b32 s29, s20, 15
s_add_u32 s28, s28, s29
s_lshl_b32 s29, s27, 6
s_add_u32 s28, s28, s29
s_lshl_b32 s29, s20, 11
s_add_u32 s29, s29, {XSL}
s_lshl_b32 s30, s23, 8
s_lshl_b32 s31, s22, 7
s_add_u32 s30, s30, s31
v_lshlrev_b32 v6, 1, v2
v_add_u32 v6, s30, v6
s_lshl_b32 s31, s23, 1
v_mov_b32 v7, s31
s_lshl_b32 s19, s3, 2
s_waitcnt lgkmcnt(0)
s_load_dword s{TOK}, s[{P_WS}:{P_WS+1}], {EPOCH}
s_load_dword s63, s[{P_DSK}:{P_DSK+1}], s19
""")
    srd(A, 8, P_U, 2048 * 1024)
    srd(A, WSRD, P_WS, WS_BYTES)
    vm.op(f"buffer_load_dwordx4 v[8:11], v3, s[8:11], s18 offen {O.x8_fl}", "x8")
    vm.op(f"buffer_load_dwordx4 v[12:15], v3, s[8:11], s18 offen offset:1024 {O.x8_fl}", "x8")
    for i, p in enumerate((P_LAR, P_AIM, P_CRE, P_CIM)):
        vm.op(f"global_load_ushort v{60+i}, v6, s[{p}:{p+1}] {O.par_fl}", "par")
    vm.op(f"global_load_ushort v64, v7, s[{P_LDT}:{P_LDT+1}]", "par")
    for j in range(2):
        A(f"s_add_u32 m0, s29, {1024*j}")
        A(f"s_add_u32 s31, s28, {16384*j}")
        vm.op(f"buffer_load_dwordx4 v4, s[8:11], s31 offen {O.xsl_fl} lds", "xsl")
    VN, VKQ, VI = 204, 205, 206
    VPW, VPR, VGR, VTR, VXT = 207, 208, 209, 210, 211
    VXS, VXP, VK0, VTB, VKZ, VKW, VFX, VUW = 212, 213, 214, 215, 216, 217, 218, 219
    VF, VG, VUU, VZ, VXW, VXR, VTOK, VZERO = 220, 221, 222, 223, 224, 225, 226, 227
    ONE2 = 228
    GA = 232
    A(f"""
s_mov_b32 s19, 0xffff0000
s_mov_b32 s12, {LOG2E}
s_mov_b32 s13, {INV2PI}
s_mul_i32 s14, s20, 1088
s_add_u32 s14, s14, {PAR}
v_lshrrev_b32 v{VKQ}, 4, v2
v_and_b32 v{VI}, 15, v2
v_lshl_add_u32 v{VPW}, v{VKQ}, 4, v3
v_add_u32 v{VPW}, s14, v{VPW}
v_mul_u32_u24 v{VPR}, 272, v{VKQ}
v_add_u32 v{VPR}, s14, v{VPR}
v_add_u32 v20, 1, v{VI}
v_cvt_f32_u32 v{VN}, v20
v_lshlrev_b32 v{VGR}, 6, v{VKQ}
v_bfe_u32 v21, v2, 2, 2
v_lshl_add_u32 v21, v{VKQ}, 3, v21
v_lshlrev_b32 v21, 6, v21
v_and_b32 v22, 3, v2
v_lshl_add_u32 v21, v22, 3, v21
v_add_u32 v{VTR}, s29, v21
v_mul_u32_u24 v{VXT}, {XNT_STRIDE}, v{VI}
v_lshl_add_u32 v{VXT}, v{VKQ}, 4, v{VXT}
s_lshl_b32 s28, s20, 11
s_add_u32 s28, s28, {XCH}
v_add_u32 v{VXS}, s28, v3
s_xor_b32 s28, s20, 1
s_lshl_b32 s28, s28, 11
s_add_u32 s28, s28, {XCH}
v_add_u32 v{VXP}, s28, v3
s_lshl_b32 s28, s20, 2
s_add_u32 s28, s28, {XCH+8192}
v_mov_b32 v{VK0}, s28
v_and_b32 v20, 15, v20
v_lshlrev_b32 v20, 5, v20
v_lshl_add_u32 v20, v{VKQ}, 3, v20
s_mul_i32 s32, s21, 1344
s_add_u32 s32, s32, {TBL}
v_add_u32 v{VTB}, s32, v20
s_mul_i32 s33, s21, {USZ}
s_mul_i32 s34, s21, {KIMG_STRIDE}
s_add_u32 s34, s34, {KB}
v_and_b32 v27, 127, v0                ; tau
v_lshlrev_b32 v30, 3, v27
v_add_u32 v{VKZ}, s34, v30
v_sub_u32 v30, 1008, v30
v_add_u32 v{VKW}, s34, v30
v_lshlrev_b32 v{VFX}, 2, v{VI}
s_mul_i32 s35, s22, {130*16}
s_add_u32 s28, s35, s33
v_add_u32 v{VUW}, s28, v3
s_mul_i32 s24, s23, {XNT_STRIDE}
s_add_u32 s24, s24, s35
s_add_u32 s24, s24, {WS_XNT}          ; U src
v_and_b32 v20, 3, v2
v_bfe_u32 v21, v2, 2, 2
v_mul_u32_u24 v20, {XNT_STRIDE}, v20
v_add_u32 v21, v21, v{VKQ}
v_lshl_add_u32 v20, v21, 4, v20
s_lshl_b32 s31, s22, 8
s_add_u32 s28, s33, s31
v_add_u32 v{VF}, s28, v20
v_and_b32 v21, 1, v2
v_bfe_u32 v22, v2, 1, 3
v_mul_u32_u24 v20, {KCOPY}, v21
v_lshl_add_u32 v20, v{VKQ}, 4, v20
v_lshlrev_b32 v23, 6, v22
v_sub_u32 v20, v20, v23
s_add_u32 s28, s34, s31
s_add_u32 s28, s28, 448
v_add_u32 v{VG}, s28, v20
v_lshlrev_b32 v23, 5, v22
v_lshl_add_u32 v23, v21, 2, v23
v_lshl_add_u32 v23, v{VKQ}, 3, v23    ; P0
v_lshlrev_b32 v{VZ}, 1, v23
s_lshl_b32 s28, s22, 11
s_add_u32 s28, s28, s33
s_add_u32 s28, s28, {3*XNT_STRIDE + 48}
v_add_u32 v{VUU}, s28, v{VZ}
s_lshl_b32 s28, s20, 12
s_add_u32 s28, s28, {XB}
v_add_u32 v{VXW}, s28, v3
s_xor_b32 s28, s20, 1
s_lshl_b32 s28, s28, 12
s_add_u32 s28, s28, {XB}
v_add_u32 v{VXR}, s28, v3
v_mov_b32 v{VZERO}, 0
v_mov_b32 v{ONE2}, 1.0
v_mov_b32 v{ONE2+1}, 0
v_mov_b32 v230, 0
v_mov_b32 v231, 0
v_lshlrev_b32 v4, 2, v27
s_sub_u32 s28, s32, {2*(0x4280-3)}
s_mov_b32 s31, 0xffff
""")
    AD = 66
    for jj in range(4):
        for e in range(4): A(f"v_add_u32 v{AD+4*jj+e}, {512*jj+e}, v4")
    for i in range(16): A(f"v_cvt_f32_u32 v{GA+i}, v{AD+i}")
    for i in range(0, 16, 2): A(f"v_cvt_pk_bf16_f32 v{GA+i}, v{GA+i}, v{GA+i+1}")
    for i in range(0, 16, 2):
        A(f"v_lshrrev_b32 v{GA+i+1}, 16, v{GA+i}")
        A(f"v_and_b32 v{GA+i}, s31, v{GA+i}")
    for e in range(4):
        A(f"v_min_u32 v{AD+e}, 128, v{AD+e}")
        A(f"v_add_u32 v{AD+e}, 0x4280, v{AD+e}")
        A(f"v_max_u32 v{GA+e}, v{GA+e}, v{AD+e}")
    for i in range(16): A(f"v_lshl_add_u32 v{GA+i}, v{GA+i}, 1, s28")
    A("v_cmp_gt_u32 vcc, 69, v27")
    A("s_and_saveexec_b64 s[30:31], vcc")
    A(f"ds_write_b64 v{VKZ}, v[230:231] offset:4088")
    A("s_mov_b64 exec, -1")
    A("v_cmp_gt_u32 vcc, 56, v27")
    A("s_and_saveexec_b64 s[30:31], vcc")
    A(f"ds_write_b64 v{VKZ}, v[230:231] offset:8736")
    A("s_mov_b64 exec, -1")
    A("v_mov_b32 v40, 0x3b000000")
    A("s_waitcnt lgkmcnt(0)")
    A(f"s_mul_i32 s{TOK}, s{TOK}, 0x9e3779b1")
    A(f"s_add_u32 s{TOK}, s{TOK}, 0x7f4a7c15")
    A(f"v_mov_b32 v{VTOK}, s{TOK}")
    A(f"v_mov_b32 v41, s{TOK}")
    A(f"v_mov_b32 v43, s{TOK}")
    A("s_lshl_b32 s17, s16, 3")
    A(f"s_add_u32 s17, s17, {WS_STAT}")
    A(f"s_add_u32 s18, s18, {WS_XN}")
    A("v_mov_b32 v39, 0x3b000000")
    vm.wait("x8")
    stamp(A, 2)
    X = [16, 24]; Dd = [44, 52]; S = [32, 33]; M = [34, 36]; V = [35, 37]
    def pk(op, d, a_, b_, c_=None, mods=""):
        if c_ is None: A(f"{op} v[{d}:{d+1}], v[{a_}:{a_+1}], v[{b_}:{b_+1}] {mods}")
        else: A(f"{op} v[{d}:{d+1}], v[{a_}:{a_+1}], v[{b_}:{b_+1}], v[{c_}:{c_+1}] {mods}")
    for r in range(2):
        for i in range(4):
            A(f"v_lshlrev_b32 v{X[r]+2*i}, 16, v{8+4*r+i}")
            A(f"v_and_b32 v{X[r]+2*i+1}, s19, v{8+4*r+i}")
    for r in range(2): pk("v_pk_add_f32", Dd[r], X[r], X[r] + 2)
    for r in range(2): pk("v_pk_add_f32", Dd[r] + 2, X[r] + 4, X[r] + 6)
    for r in range(2): pk("v_pk_add_f32", Dd[r], Dd[r], Dd[r] + 2)
    for r in range(2): A(f"v_add_f32 v{S[r]}, v{Dd[r]}, v{Dd[r]+1}")
    dpp_sum(A, S)
    for r in range(2): A(f"v_readlane_b32 s{30+r}, v{S[r]}, 63")
    for r in range(2): A(f"v_mul_f32 v{M[r]}, s{30+r}, v39")
    for i in range(0, 8, 2):
        for r in range(2): pk("v_pk_add_f32", Dd[r] + i, X[r] + i, M[r], mods="op_sel_hi:[1,0] neg_lo:[0,1] neg_hi:[0,1]")
    for r in range(2): pk("v_pk_mul_f32", 8 + 4 * r, Dd[r], Dd[r])
    for i in range(2, 8, 2):
        for r in range(2): pk("v_pk_fma_f32", 8 + 4 * r, Dd[r] + i, Dd[r] + i, 8 + 4 * r)
    for r in range(2): A(f"v_add_f32 v{S[r]}, v{8+4*r}, v{9+4*r}")
    dpp_sum(A, S)
    for r in range(2): A(f"v_readlane_b32 s{30+r}, v{S[r]}, 63")
    for r in range(2): bf16_round(A, M[r], M[r])
    for r in range(2): A(f"v_mul_f32 v{V[r]}, s{30+r}, v39")
    for r in range(2): bf16_round(A, V[r], V[r])
    for r in range(2): A(f"v_add_f32 v{V[r]}, 0x3727c5ac, v{V[r]}")
    for r in range(2): bf16_round(A, V[r], V[r])
    for r in range(2): A(f"v_sqrt_f32 v{V[r]}, v{V[r]}")
    for i in range(0, 8, 2):
        for r in range(2): pk("v_pk_add_f32", Dd[r] + i, X[r] + i, M[r], mods="op_sel_hi:[1,0] neg_lo:[0,1] neg_hi:[0,1]")
    for r in range(2): A(f"v_cvt_pk_bf16_f32 v{40+2*r}, v{V[r]}, v{M[r]}")
    A("s_mov_b64 exec, 1")
    vm.op(f"buffer_store_dwordx4 v[40:43], v{VZERO}, {W_}, s17 offen sc1", "stat")
    A("s_mov_b64 exec, -1")
    for r in range(2): A(f"v_lshlrev_b32 v{V[r]}, 16, v{40+2*r}")
    for r in range(2): A(f"v_rcp_f32 v{V[r]}, v{V[r]}")
    for r in range(2):
        for i in range(4): A(f"v_cvt_pk_bf16_f32 v{8+4*r+i}, v{Dd[r]+2*i}, v{Dd[r]+2*i+1}")
    for r in range(2):
        for i in range(4):
            A(f"v_lshlrev_b32 v{Dd[r]+2*i}, 16, v{8+4*r+i}")
            A(f"v_and_b32 v{Dd[r]+2*i+1}, s19, v{8+4*r+i}")
    for i in range(0, 8, 2):
        for r in range(2): pk("v_pk_mul_f32", Dd[r] + i, Dd[r] + i, M[r], mods="op_sel:[0,1] op_sel_hi:[1,1]")
    for r in range(2):
        for i in range(4): A(f"v_cvt_pk_bf16_f32 v{8+4*r+i}, v{Dd[r]+2*i}, v{Dd[r]+2*i+1}")
    vm.op(f"buffer_store_dwordx4 v[8:11], v3, {W_}, s18 offen sc1", "xn")
    vm.op(f"buffer_store_dwordx4 v[12:15], v3, {W_}, s18 offen offset:1024 sc1", "xn")
    stamp(A, 3)
    vm.wait("par")
    for i in range(5): A(f"v_lshlrev_b32 v{60+i}, 16, v{60+i}")
    A("v_mul_f32 v60, s12, v60\nv_mul_f32 v64, s12, v64\nv_exp_f32 v60, v60\nv_exp_f32 v64, v64")
    bf16_round(A, 60, 60); bf16_round(A, 64, 64)
    A(f"""
v_mul_f32 v16, v60, v64
v_mul_f32 v17, v61, v64
v_mul_f32 v18, v62, v64
v_mul_f32 v19, v63, v64
v_mul_f32 v16, s12, v16
v_sub_f32 v16, 0, v16
v_mul_f32 v17, s13, v17
v_add_f32 v18, v18, v18
v_add_f32 v19, v19, v19
ds_write_b128 v{VPW}, v[16:19]
v_mov_b32 v20, v18
""")
    dpp_sum(A, [20])
    A("v_readlane_b32 s15, v20, 63")
    A("s_waitcnt lgkmcnt(0)")
    P = 32
    for m in range(16):
        A(f"ds_read_b128 v[{P+4*m}:{P+4*m+3}], v{VPR} offset:{16*m}")
        if m == 7: A("s_waitcnt lgkmcnt(4)")
    A("v_mov_b32 v21, s15")
    A(f"ds_write_b32 v{VK0}, v21")
    A("s_lshr_b32 s17, s16, 7")
    A("s_lshl_b32 s17, s17, 7")
    A("s_lshr_b32 s18, s16, 3")
    A("s_and_b32 s18, s18, 15")
    A("s_lshl_b32 s18, s18, 2")
    A("s_add_u32 s17, s17, s18")
    A(f"s_add_u32 s17, s17, {FA}")
    def flag(label, sreg, wave):
        A(f"s_cmp_lg_u32 s20, {wave}")
        A(f"s_cbranch_scc1 {label}")
        A("s_mov_b64 exec, 1")
        A(f"{FLAGOP()} v{VTOK}, v{VZERO}, {W_}, s{sreg} offen sc1")
        A("s_mov_b64 exec, -1")
        A(f"{label}:")
    vm.wait("xn")
    A("s_barrier")
    flag("S_nofa", 17, 0)
    Dacc = 96; T = 112; L = 120; H = 136; t_ = 144
    A("s_waitcnt lgkmcnt(0)")
    def sq():
        for j in range(4): pk("v_pk_mul_f32", t_ + 2*j, T + 2*j, T + 2*j, mods="op_sel_hi:[1,0]")
        for j in range(4): pk("v_pk_fma_f32", T + 2*j, T + 2*j, T + 2*j, t_ + 2*j, mods="op_sel:[1,1,0] op_sel_hi:[0,1,1] neg_lo:[1,0,0]")
    def group(g):
        pj = [P + 4 * (4 * g + j) for j in range(4)]
        for j in range(4): pk("v_pk_mul_f32", t_ + 2*j, pj[j], VN, mods="op_sel_hi:[1,0]")
        for j in range(4): A(f"v_exp_f32 v{t_+2*j}, v{t_+2*j}")
        for j in range(4): A(f"v_fract_f32 v{t_+2*j+1}, v{t_+2*j+1}")
        for j in range(4): A(f"v_cos_f32 v{T+2*j}, v{t_+2*j+1}")
        for j in range(4): A(f"v_sin_f32 v{T+2*j+1}, v{t_+2*j+1}")
        for j in range(4): pk("v_pk_mul_f32", T + 2*j, T + 2*j, t_ + 2*j, mods="op_sel_hi:[1,0]")
        for sgm in range(4):
            for j in range(4): A(f"v_cvt_pk_bf16_f32 v{L+4*sgm+j}, v{T+2*j}, v{T+2*j+1}")
            sq()
        A("s_mov_b32 exec_lo, 0x80008000\ns_mov_b32 exec_hi, 0x80008000")
        for j in range(4): A(f"v_mov_b64 v[{T+2*j}:{T+2*j+1}], v[{ONE2}:{ONE2+1}]")
        A("s_mov_b64 exec, -1")
        for sgm in range(4):
            Hh = H + 4 * (sgm & 1)
            for j in range(4): pk("v_pk_mul_f32", t_ + 2*j, T + 2*j, pj[j] + 2, mods="op_sel_hi:[1,0] neg_hi:[1,0]")
            for j in range(4): pk("v_pk_fma_f32", t_ + 2*j, T + 2*j, pj[j] + 2, t_ + 2*j, mods="op_sel:[1,1,0] op_sel_hi:[0,1,1] neg_lo:[1,0,0] neg_hi:[1,0,0]")
            for j in range(4): A(f"v_cvt_pk_bf16_f32 v{Hh+j}, v{t_+2*j}, v{t_+2*j+1}")
            if sgm < 3: sq()
            d = Dacc + 4 * sgm
            cc = "0" if g == 0 else f"v[{d}:{d+3}]"
            A(f"v_mfma_f32_16x16x32_bf16 v[{d}:{d+3}], v[{L+4*sgm}:{L+4*sgm+3}], v[{Hh}:{Hh+3}], {cc}")
    def sqp():
        for j in range(4): A(f"v_mul_f32 v{t_+2*j}, v{T+2*j+1}, v{T+2*j+1}")
        for j in range(4): A(f"v_mul_f32_e64 v{T+2*j+1}, v{T+2*j}, v{T+2*j+1} mul:2")
        for j in range(4): A(f"v_fma_f32 v{T+2*j}, v{T+2*j}, v{T+2*j}, -v{t_+2*j}")
    def groupp(g):
        pj = [P + 4 * (4 * g + j) for j in range(4)]
        for j in range(4): A(f"v_mul_f32 v{t_+2*j}, v{pj[j]}, v{VN}")
        for j in range(4): A(f"v_mul_f32 v{t_+2*j+1}, v{pj[j]+1}, v{VN}")
        for j in range(4): A(f"v_exp_f32 v{t_+2*j}, v{t_+2*j}")
        for j in range(4): A(f"v_fract_f32 v{t_+2*j+1}, v{t_+2*j+1}")
        for j in range(4): A(f"v_cos_f32 v{T+2*j}, v{t_+2*j+1}")
        for j in range(4): A(f"v_sin_f32 v{T+2*j+1}, v{t_+2*j+1}")
        for j in range(4): A(f"v_mul_f32 v{T+2*j}, v{T+2*j}, v{t_+2*j}")
        for j in range(4): A(f"v_mul_f32 v{T+2*j+1}, v{T+2*j+1}, v{t_+2*j}")
        for sgm in range(4):
            for j in range(4): A(f"v_cvt_pk_bf16_f32 v{L+4*sgm+j}, v{T+2*j}, v{T+2*j+1}")
            sqp()
        A("s_mov_b32 exec_lo, 0x80008000\ns_mov_b32 exec_hi, 0x80008000")
        for j in range(4):
            A(f"v_mov_b32 v{T+2*j}, 1.0")
            A(f"v_mov_b32 v{T+2*j+1}, 0")
        A("s_mov_b64 exec, -1")
        for sgm in range(4):
            Hh = H + 4 * (sgm & 1)
            for j in range(4): A(f"v_mul_f32 v{t_+2*j}, v{pj[j]+3}, v{T+2*j+1}")
            for j in range(4): A(f"v_mul_f32 v{t_+2*j+1}, v{pj[j]+3}, v{T+2*j}")
            for j in range(4): A(f"v_fma_f32 v{t_+2*j}, v{pj[j]+2}, v{T+2*j}, -v{t_+2*j}")
            for j in range(4): A(f"v_fma_f32 v{t_+2*j+1}, -v{pj[j]+2}, v{T+2*j+1}, -v{t_+2*j+1}")
            for j in range(4): A(f"v_cvt_pk_bf16_f32 v{Hh+j}, v{t_+2*j}, v{t_+2*j+1}")
            if sgm < 3: sqp()
            d = Dacc + 4 * sgm
            A(f"v_mfma_f32_16x16x32_bf16 v[{d}:{d+3}], v[{L+4*sgm}:{L+4*sgm+3}], v[{Hh}:{Hh+3}], v[{d}:{d+3}]")
    G = 160
    A("s_lshl_b32 s17, s26, 10")
    A("s_lshl_b32 s18, s20, 8")
    A("s_add_u32 s17, s17, s18")
    A(f"s_add_u32 s17, s17, {WS_STAT}")
    gload = "\n".join(f"buffer_load_dwordx4 v[{G+4*i}:{G+4*i+3}], v{VGR}, {W_}, s17 offen offset:{16*i} sc1" for i in range(4))
    A(gload)
    group(0)
    stamp(A, 4)
    XS = 176
    for c2 in range(2):
        for rd in range(2):
            pass
    A("s_waitcnt vmcnt(0)"); vm.ops = []
    for c2 in range(2):
        for rd in range(2):
            A(f"ds_read_b64_tr_b16 v[{XS+4*c2+2*rd}:{XS+4*c2+2*rd+1}], v{VTR} offset:{32*c2+256*rd}")
    toks = [G + 1 + 2 * i for i in range(8)]
    check(A, toks, VTOK)
    A("s_cbranch_vccz S_st_ok")
    poll_loop(A, "S_st", gload, toks, VTOK, 12)
    stamp(A, 5)
    MM = 184; E = 16
    for i in range(8):
        A(f"v_and_b32 v{MM+2*i}, s19, v{G+2*i}")
        A(f"v_lshlrev_b32 v{MM+2*i+1}, 16, v{G+2*i}")
    for i in range(8): A(f"v_rcp_f32 v{MM+2*i+1}, v{MM+2*i+1}")
    A(f"s_mul_i32 s17, s27, {32*XNT_STRIDE}")
    A("s_lshl_b32 s18, s26, 8")
    A("s_add_u32 s17, s17, s18")
    A("s_lshl_b32 s18, s20, 6")
    A("s_add_u32 s17, s17, s18")
    A(f"s_add_u32 s17, s17, {WS_XNT + 64}")
    A(f"s_add_u32 s18, s17, {16*XNT_STRIDE}")
    A("s_waitcnt lgkmcnt(0)")
    for i in range(4):
        A(f"v_lshlrev_b32 v{E+4*i}, 16, v{XS+i}")
        A(f"v_lshlrev_b32 v{E+4*i+1}, 16, v{XS+4+i}")
        A(f"v_and_b32 v{E+4*i+2}, s19, v{XS+i}")
        A(f"v_and_b32 v{E+4*i+3}, s19, v{XS+4+i}")
    for i in range(8): pk("v_pk_add_f32", E + 2*i, E + 2*i, MM + 2*i, mods="op_sel_hi:[1,0] neg_lo:[0,1] neg_hi:[0,1]")
    for i in range(8): A(f"v_cvt_pk_bf16_f32 v{G+i}, v{E+2*i}, v{E+2*i+1}")
    for i in range(8):
        A(f"v_lshlrev_b32 v{E+2*i}, 16, v{G+i}")
        A(f"v_and_b32 v{E+2*i+1}, s19, v{G+i}")
    for i in range(8): pk("v_pk_mul_f32", E + 2*i, E + 2*i, MM + 2*i, mods="op_sel:[0,1] op_sel_hi:[1,1]")
    for c2 in range(2):
        for i in range(4): A(f"v_cvt_pk_bf16_f32 v{XS+4*c2+i}, v{E+4*i+c2}, v{E+4*i+2+c2}")
    for c2 in range(2):
        A(f"buffer_store_dwordx4 v[{XS+4*c2}:{XS+4*c2+3}], v{VXT}, {W_}, s{17+c2} offen sc1")
    A("s_cmp_lg_u32 s26, 0")
    A("s_cbranch_scc1 S_nopad")
    A("s_cmp_gt_u32 s20, 1")
    A("s_cbranch_scc1 S_nopad")
    A("v_lshrrev_b32 v19, 2, v2")
    A(f"v_mul_u32_u24 v19, {XNT_STRIDE}, v19")
    A("v_and_b32 v18, 3, v2")
    A("v_lshl_add_u32 v19, v18, 4, v19")
    A("s_lshl_b32 s17, s27, 1")
    A("s_add_u32 s17, s17, s20")
    A(f"s_mul_i32 s17, s17, {16*XNT_STRIDE}")
    A(f"s_add_u32 s17, s17, {WS_XNT}")
    for i in range(4): A(f"v_mov_b32 v{20+i}, 0")
    A(f"buffer_store_dwordx4 v[20:23], v19, {W_}, s17 offen sc1")
    A("S_nopad:")
    group(1)
    A("s_lshl_b32 s17, s27, 7")
    A("s_lshl_b32 s18, s26, 2")
    A("s_add_u32 s17, s17, s18")
    A(f"s_add_u32 s17, s17, {FX}")
    A("s_waitcnt vmcnt(0)")
    A("s_barrier")
    flag("S_nofx", 17, 1)
    stamp(A, 6)
    A(f"s_setprio {O.prio_S2}")
    (groupp if O.plain23 else group)(2)
    A("s_lshr_b32 s17, s3, 4")
    A("s_lshl_b32 s17, s17, 7")
    A(f"s_add_u32 s17, s17, {FX}")
    fxload = f"buffer_load_dword v19, v{VFX}, {W_}, s17 offen sc1"
    (groupp if O.plain23 else group)(3)
    stamp(A, 7)
    A(f"s_setprio {O.prio_S3}")
    A(fxload)
    A("s_cmp_eq_u32 s22, 0")
    A("s_cbranch_scc0 S_mh1")
    for mh in range(2):
        if mh == 1: A("S_mh1:")
        keep = [2*mh, 2*mh+1]; send = [2-2*mh, 3-2*mh]
        for j in range(2):
            A(f"ds_write_b128 v{VXS}, v[{Dacc+4*send[j]}:{Dacc+4*send[j]+3}] offset:{1024*j}")
        A("s_waitcnt lgkmcnt(0)")
        A("s_barrier")
        for j in range(2): A(f"ds_read_b128 v[{32+4*j}:{32+4*j+3}], v{VXP} offset:{1024*j}")
        if mh == 0: A(f"ds_read_b32 v40, v{VK0} offset:4")
        A("s_waitcnt lgkmcnt(0)")
        for j in range(2):
            for r in range(4): A(f"v_add_f32 v{32+4*j+r}, v{32+4*j+r}, v{Dacc+4*keep[j]+r}")
            A(f"v_cvt_pk_bf16_f32 v{44+2*j}, v{32+4*j}, v{32+4*j+1}")
            A(f"v_cvt_pk_bf16_f32 v{44+2*j+1}, v{32+4*j+2}, v{32+4*j+3}")
        if mh == 0:
            A("v_add_f32 v40, s15, v40")
            A("v_cvt_pk_bf16_f32 v40, v40, v40")
            A("v_mov_b32 v41, s32")
            A("ds_write_b16 v41, v40 offset:6")
            A(f"ds_write_b64 v{VTB}, v[44:45] offset:8")
            A("s_mov_b32 exec_lo, 0x7f807f80\ns_mov_b32 exec_hi, 0x7f807f80")
            A(f"ds_write_b64 v{VTB}, v[46:47] offset:264")
        else:
            A("s_mov_b32 exec_lo, 0x7f807f80\ns_mov_b32 exec_hi, 0x7f807f80")
            A(f"ds_write_b64 v{VTB}, v[44:45] offset:520")
            A(f"ds_write_b64 v{VTB}, v[46:47] offset:776")
        A("s_mov_b64 exec, -1")
        if mh == 0: A("s_branch S_join")
    A("S_join:")
    A("s_waitcnt vmcnt(0)")
    A(f"v_cmp_ne_u32 vcc, v19, v{VTOK}")
    A("s_cbranch_vccz S_fx_ok")
    poll_loop(A, "S_fx", fxload, [19], VTOK, 12)
    stamp(A, 8)
    UR = 160
    for gi in range(3):
        if gi == 2: A("s_mov_b64 exec, 3")
        A(f"buffer_load_dwordx2 v[{UR+6*gi}:{UR+6*gi+1}], v3, {W_}, s24 offen offset:{1024*gi+8} sc1")
        A(f"buffer_load_dwordx4 v[{UR+6*gi+2}:{UR+6*gi+5}], v3, {W_}, s24 offen offset:{1024*gi+16} sc1")
    A("s_mov_b64 exec, -1")
    A("s_waitcnt lgkmcnt(0)")
    A("s_barrier")
    for i in range(16):
        A(f"ds_read_u16 v{80+i}, v{GA+i}")
        if i == 11: A("s_waitcnt lgkmcnt(4)")
    for jj in range(4):
        b = 80 + 4 * jj
        A(f"s_waitcnt lgkmcnt({[4,4+2,4+4,6][jj] if jj < 3 else 6})" if False else "")
        if jj == 0: A("s_waitcnt lgkmcnt(0)")
        A(f"v_lshl_or_b32 v{96+2*jj}, v{b+2}, 16, v{b+3}")
        A(f"v_lshl_or_b32 v{96+2*jj+1}, v{b}, 16, v{b+1}")
        A(f"ds_write_b64 v{VKW}, v[{96+2*jj}:{96+2*jj+1}] offset:{1024*(3-jj)}")
        A(f"ds_write_b64 v{VKW}, v[{96+2*jj}:{96+2*jj+1}] offset:{KCOPY + 8 + 1024*(3-jj)}")
    for gi in range(3):
        A(f"s_waitcnt vmcnt({4-2*gi})")
        if gi == 2: A("s_mov_b64 exec, 3")
        r = UR + 6 * gi
        t0 = 180 + 12 * (gi & 1)
        for k_ in range(4): A(f"v_alignbyte_b32 v{t0+k_}, v{r+k_+1}, v{r+k_}, 2")
        for k_ in range(4): A(f"v_mov_b32 v{t0+4+k_}, v{r+1+k_}")
        for k_ in range(4): A(f"v_alignbyte_b32 v{t0+8+k_}, v{r+k_+2}, v{r+k_+1}, 2")
        A(f"ds_write_b128 v{VUW}, v[{r+2}:{r+5}] offset:{1024*gi + XNT_STRIDE*3}")
        for sg_ in range(3):
            A(f"ds_write_b128 v{VUW}, v[{t0+4*sg_}:{t0+4*sg_+3}] offset:{1024*gi + XNT_STRIDE*sg_}")
        if gi == 1: A("s_waitcnt lgkmcnt(4)")
    A("s_mov_b64 exec, -1")
    ACC = 32
    FR = [64, 128]
    def rd(buf, ph, i):
        m = i >> 1
        if i & 1 == 0: A(f"ds_read_b128 v[{FR[buf]+4*m}:{FR[buf]+4*m+3}], v{VF} offset:{512*m+64*ph}")
        else: A(f"ds_read_b128 v[{FR[buf]+32+4*m}:{FR[buf]+32+4*m+3}], v{VG} offset:{3584-512*m+64*ph}")
    A("s_waitcnt lgkmcnt(0)")
    A("s_barrier")
    stampw(A, 9)
    A(f"s_setprio {O.prio_S2}")
    prods = sorted([(m, e) for m in range(8) for e in range(8) if m + e <= 7], key=lambda p: (max(p), p))
    for i in range(14): rd(0, 0, i)
    seen = set()
    UU = 192
    for ph in range(4):
        buf = ph & 1
        nxt = list(range(16)) if ph < 3 else []
        if ph > 0: A("s_waitcnt lgkmcnt(0)")
        if ph == 3:
            for j in range(4): A(f"ds_read_b64 v[{UU+2*j}:{UU+2*j+1}], v{VUU} offset:{512*j}")
        lasts = -1; issued0 = 14
        for n, (m, e) in enumerate(prods):
            sidx = max(m, e)
            if ph == 0 and sidx != lasts:
                if sidx == 1:
                    for i in (14, 15): rd(0, 0, i)
                    issued0 = 16
                if sidx <= 4: A(f"s_waitcnt lgkmcnt({issued0 - (2*sidx+2)})")
                elif sidx == 5: A("s_waitcnt lgkmcnt(0)")
                lasts = sidx
            c = m + e
            cc = f"v[{ACC+4*c}:{ACC+4*c+3}]" if c in seen else "0"
            seen.add(c)
            A(f"v_mfma_f32_16x16x32_bf16 v[{ACC+4*c}:{ACC+4*c+3}], v[{FR[buf]+4*m}:{FR[buf]+4*m+3}], v[{FR[buf]+32+4*e}:{FR[buf]+32+4*e+3}], {cc}")
            if nxt and (ph > 0 or sidx >= 5):
                cnt = 1 if ph > 0 else 2
                if ph > 0 and n % 2 == 1: cnt = 0
                for _ in range(cnt):
                    if nxt and (16 - len(nxt)) < 15: rd(buf ^ 1, ph + 1, nxt.pop(0))
            if ph == 3:
                if n == 4:
                    A("s_waitcnt lgkmcnt(0)")
                    A("s_lshl_b32 s30, s63, 16")
                    A("s_and_b32 s31, s63, 0xffff0000")
                    A("s_cmp_eq_u32 s21, 0")
                    A("s_cselect_b32 s30, s30, s31")
                if 5 <= n < 13:
                    i = n - 5
                    A(f"v_lshlrev_b32 v{64+2*i}, 16, v{UU+i}")
                    A(f"v_and_b32 v{64+2*i+1}, s19, v{UU+i}")
                if 13 <= n < 21:
                    i = n - 13
                    A(f"v_mul_f32 v{64+2*i}, s30, v{64+2*i}")
                    A(f"v_mul_f32 v{64+2*i+1}, s30, v{64+2*i+1}")
                    A(f"v_cvt_pk_bf16_f32 v{UU+i}, v{64+2*i}, v{64+2*i+1}")
                if 21 <= n < 29:
                    i = n - 21
                    A(f"v_lshlrev_b32 v{64+2*i}, 16, v{UU+i}")
                    A(f"v_and_b32 v{64+2*i+1}, s19, v{UU+i}")
        if nxt:
            A("s_waitcnt lgkmcnt(4)")
            while nxt: rd(buf ^ 1, ph + 1, nxt.pop(0))
    stamp(A, 10)
    A(f"s_setprio {O.prio_S3}")
    A("s_lshl_b32 s17, s23, 12")
    A("s_lshl_b32 s18, s22, 11")
    A("s_add_u32 s17, s17, s18")
    A(f"s_add_u32 s17, s17, {WS_ZP}")
    A("s_cmp_eq_u32 s22, 0")
    A("s_cbranch_scc0 S_e1")
    for hf in range(2):
        if hf == 1: A("S_e1:")
        keep = ACC + 16 * hf; send = ACC + 16 * (1 - hf)
        for c in range(4): A(f"ds_write_b128 v{VXW}, v[{send+4*c}:{send+4*c+3}] offset:{1024*c}")
        A("s_waitcnt lgkmcnt(0)")
        A("s_barrier")
        for c in range(4): A(f"ds_read_b128 v[{80+4*c}:{80+4*c+3}], v{VXR} offset:{1024*c}")
        for c in range(4):
            A(f"s_waitcnt lgkmcnt({3-c})")
            for i in range(4): A(f"v_add_f32 v{80+4*c+i}, v{80+4*c+i}, v{keep+4*c+i}")
        if hf == 0: A("s_branch S_e2")
    A("S_e2:")
    for i in range(8): A(f"v_cvt_pk_bf16_f32 v{96+i}, v{80+2*i}, v{80+2*i+1}")
    for i in range(8):
        A(f"v_lshlrev_b32 v{80+2*i}, 16, v{96+i}")
        A(f"v_and_b32 v{80+2*i+1}, s19, v{96+i}")
    for i in range(16): A(f"v_add_f32 v{80+i}, v{80+i}, v{64+i}")
    for i in range(8): A(f"v_cvt_pk_bf16_f32 v{96+i}, v{80+2*i}, v{80+2*i+1}")
    for c in range(4):
        A(f"buffer_store_dwordx2 v[{96+2*c}:{96+2*c+1}], v{VZ}, {W_}, s17 offen offset:{512*c} sc1")
    A("s_lshl_b32 s17, s3, 2")
    A(f"s_add_u32 s17, s17, {FZ}")
    A("s_waitcnt vmcnt(0)")
    A("s_barrier")
    stamp(A, 11)
    flag("S_nofz", 17, 0)
    A("s_cmp_lg_u32 s20, 1")
    A("s_cbranch_scc1 S_fin")
    A("s_cmp_lg_u32 s3, 0")
    A("s_cbranch_scc1 S_fin")
    A(f"s_mov_b32 s17, {FH}")
    A("v_lshrrev_b32 v24, 2, v2")
    A("v_lshlrev_b32 v24, 7, v24")
    A("v_and_b32 v25, 3, v2")
    A("v_lshl_add_u32 v24, v25, 4, v24")
    poll_loop(A, "S_fs", f"buffer_load_dwordx4 v[20:23], v24, {W_}, s17 offen sc1", [20, 21, 22, 23], VTOK, 12, sleep=16)
    A(f"s_mov_b32 s17, {EPOCH}")
    A("s_mov_b64 exec, 1")
    A(f"buffer_store_dword v{VTOK}, v{VZERO}, {W_}, s17 offen sc1")
    A("s_mov_b64 exec, -1")
    A("S_fin:")
    stamp_out(A, 12)
    A("s_endpgm")

def gen_C(A):
    vm = VM(A)
    A("C_role:")
    if O.setprio_C: A(f"s_setprio {O.setprio_C}")
    XS_ = 16896
    A(f"""
v_lshrrev_b32 v1, 6, v0
v_and_b32 v2, 63, v0
v_readfirstlane_b32 s20, v1       ; w
s_and_b32 s21, s2, 7              ; xcd
s_lshr_b32 s22, s2, 3             ; idx 0..31
s_lshr_b32 s23, s21, 1
s_lshl_b32 s23, s23, 2
s_and_b32 s24, s22, 3
s_add_u32 s23, s23, s24           ; rb
s_lshl_b32 s33, s24, 1            ; 2r
s_and_b32 s24, s21, 1
s_mul_i32 s24, s24, 7
s_lshr_b32 s25, s22, 2            ; c
s_add_u32 s24, s24, s25           ; ct
s_lshr_b32 s29, s21, 2
s_add_u32 s33, s33, s29
s_and_b32 s33, s33, {7 if O.rot1 else 0}
v_lshlrev_b32 v3, 4, v2           ; lane*16
v_lshrrev_b32 v7, 4, v2
v_and_b32 v6, 15, v2
v_lshlrev_b32 v8, 2, v7
v_xor_b32 v6, v6, v8
v_lshlrev_b32 v6, 4, v6
v_mul_u32_u24 v8, 3584, v7
v_add_u32 v6, v6, v8
s_mul_i32 s27, s20, {16*3584}
s_lshl_b32 s28, s24, 8
s_add_u32 s27, s27, s28
s_lshl_b32 s28, s20, 12           ; w*4096
v_and_b32 v9, 31, v2              ; lr
v_lshrrev_b32 v7, 5, v2           ; h
s_waitcnt lgkmcnt(0)
s_load_dword s{TOK}, s[{P_WS}:{P_WS+1}], {EPOCH}
""")
    srd(A, WSRD, P_WS, WS_BYTES)
    srd(A, 8, P_W1, 512 * 3584)
    srd(A, 12, P_U, 2048 * 1024)
    srd(A, 16, P_W2, 1792 * 1024)
    NS = 28; RS_ = 10; HD = O.hd; NRA = O.nra
    A(f"""
s_lshl_b32 s36, s21, 2
s_and_b32 s37, s22, 3
s_add_u32 s36, s36, s37
s_lshr_b32 s37, s22, 2            ; dtb
s_mul_i32 s38, s37, 7
s_lshr_b32 s38, s38, 1
s_and_b32 s29, s22, 3
s_mul_i32 s29, s29, 7
s_add_u32 s38, s38, s29
s_sub_u32 s29, s38, 28
s_cmp_ge_u32 s38, 28
s_cmov_b32 s38, s29
s_and_b32 s38, s38, {31 if O.rot2 else 0}
v_lshrrev_b32 v4, 3, v2
v_and_b32 v5, 7, v2
v_bfe_u32 v8, v2, 4, 1
v_lshlrev_b32 v8, 2, v8
v_xor_b32 v5, v5, v8
v_lshlrev_b32 v5, 4, v5
v_lshl_add_u32 v4, v4, 10, v5
s_mul_i32 s39, s20, {28*16*1024}
s_lshl_b32 s29, s37, 7
s_add_u32 s39, s39, s29           ; w2 start
s_add_u32 s40, s39, {28*16384}    ; w2 end
s_lshl_b32 s29, s38, 14
s_add_u32 s41, s39, s29           ; w2 cur
s_lshl_b32 s30, s20, 11
""")
    A(f"""
s_lshr_b32 s29, s20, 1
s_lshl_b32 s29, s29, 5
s_lshl_b32 s34, s36, 6
s_add_u32 s34, s34, s29
s_lshl_b32 s34, s34, 10
s_lshl_b32 s29, s37, 7
s_add_u32 s34, s34, s29
s_and_b32 s29, s20, 1
s_lshl_b32 s29, s29, 6
s_add_u32 s34, s34, s29
v_lshlrev_b32 v8, 10, v9
v_lshl_add_u32 v8, v7, 3, v8
""")
    for g in range(4):
        vm.op(f"buffer_load_dwordx2 v[{18+2*g}:{18+2*g+1}], v8, s[12:15], s34 offen offset:{16*g} {O.xe_fl}", "x")
    SL = [9, 0, 1, 2, 3, 4, 5, 6, 7, 8]
    def dma_w2(st):
        sl = SL[st % RS_]
        for j in range(2):
            A(f"s_add_u32 m0, s30, {sl*8192 + 1024*j}")
            if j: A("s_add_u32 s29, s41, 8192")
            vm.op(f"buffer_load_dwordx4 v4, s[16:19], {'s29' if j else 's41'} offen {O.w2_fl} lds", f"w{st}")
        A("s_add_u32 s41, s41, 16384")
        A("s_cmp_eq_u32 s41, s40")
        A("s_cmov_b32 s41, s39")
    def token_and_started(track):
        A("s_waitcnt lgkmcnt(0)")
        A(f"s_mul_i32 s{TOK}, s{TOK}, 0x9e3779b1")
        A(f"s_add_u32 s{TOK}, s{TOK}, 0x7f4a7c15")
        A(f"v_mov_b32 v26, s{TOK}")
        A("v_mov_b32 v27, 0")
        if track: return
        A("s_cmp_lg_u32 s20, 1")
        A("s_cbranch_scc1 C_noidf")
        A("s_sub_u32 s34, s22, 28")
        A("s_lshl_b32 s34, s34, 3")
        A("s_add_u32 s34, s34, s21")
        A("s_lshr_b32 s29, s34, 1")
        A("s_lshl_b32 s29, s29, 7")
        A("s_and_b32 s34, s34, 1")
        A("s_lshl_b32 s34, s34, 2")
        A("s_add_u32 s34, s34, s29")
        A(f"s_add_u32 s34, s34, {FH + 56}")
        A("s_mov_b64 exec, 1")
        A(f"buffer_store_dword v26, v27, s[{WSRD}:{WSRD+3}], s34 offen sc1")
        A("s_mov_b64 exec, -1")
        A("C_noidf:")
    def warm_w2():
        A("s_sub_u32 s34, s22, 28")
        A("s_lshl_b32 s34, s34, 2")
        A("s_add_u32 s34, s34, s20")
        A(f"s_mul_i32 s34, s34, {112*1024}")
        A(f"s_add_u32 s35, s34, {112*1024}")
        A(f"s_mul_i32 s29, s21, {14*1024}")
        A("s_add_u32 s33, s34, s29")
        A("s_lshl_b32 s29, s20, 10")
        A(f"s_add_u32 m0, s29, {4*XS_}")
        A("s_mov_b32 s32, 0")
        A("C_warm:")
        for i in range(2):
            A(f"s_waitcnt vmcnt({O.warm_depth-1})")
            A("buffer_load_dwordx4 v3, s[16:19], s33 offen lds")
            A("s_add_u32 s33, s33, 1024")
        A("s_cmp_eq_u32 s33, s35")
        A("s_cmov_b32 s33, s34")
        A("s_add_u32 s32, s32, 1")
        A(f"s_cmp_lt_u32 s32, {O.warm_n}")
        A("s_cbranch_scc1 C_warm")
    A("s_cmp_ge_u32 s22, 28")
    A("s_cbranch_scc1 C_idle")
    def dma_w(st):
        A(f"s_add_u32 s29, s33, {st}")
        A("s_and_b32 s29, s29, 7")
        A(f"s_mul_i32 s31, s29, {64*3584}")
        A("s_add_u32 s31, s31, s27")
        for j in range(4):
            A(f"s_add_u32 m0, s28, {(st % 5)*16384 + 1024*j}")
            if j: A(f"s_add_u32 s31, s31, {4*3584}")
            if O.w1depth and len(vm.ops) >= O.w1depth:
                A(f"s_waitcnt vmcnt({O.w1depth-1})"); vm.ops = vm.ops[-(O.w1depth-1):]
            vm.op(f"buffer_load_dwordx4 v6, s[8:11], s31 offen {O.w1_fl} lds", f"a{st}")
    for st in range(5): dma_w(st)
    stamp(A, 2)
    A(f"""
v_bfe_u32 v40, v2, 2, 2           ; r
v_and_b32 v41, 3, v2              ; c
v_bfe_u32 v42, v2, 4, 1           ; g16
v_lshl_add_u32 v43, v7, 3, v40
v_lshlrev_b32 v43, 8, v43
v_lshl_add_u32 v43, v42, 5, v43
v_lshl_add_u32 v43, v41, 3, v43
v_xor_b32 v10, s20, v40
v_lshl_add_u32 v10, v10, 6, v43
v_add_u32 v11, 0x10000, v10
v_xor_b32 v12, v9, v7
s_lshl_b32 s29, s33, 3
v_add_u32 v12, s29, v12
v_add_u32 v13, 32, v12
v_and_b32 v12, 63, v12
v_and_b32 v13, 63, v13
v_lshlrev_b32 v12, 4, v12
v_lshlrev_b32 v13, 4, v13
v_lshl_add_u32 v12, v7, 10, v12
v_lshl_add_u32 v13, v7, 10, v13
v_lshrrev_b32 v14, 1, v9
v_mul_u32_u24 v14, 1056, v14
v_and_b32 v15, 1, v9
v_lshl_add_u32 v14, v15, 9, v14
v_xor_b32 v15, v15, v7
v_lshl_add_u32 v14, v15, 4, v14
s_lshl_b32 s26, s23, 17
s_lshl_b32 s29, s20, 13
s_add_u32 s26, s26, s29
s_add_u32 s26, s26, {WS_XN}
s_mul_i32 s32, s20, {4*1056}
s_lshl_b32 s35, s23, 7
s_add_u32 s35, s35, {FA}
v_and_b32 v28, 15, v2
v_lshlrev_b32 v28, 2, v28
s_mul_i32 s34, s23, 448
s_lshl_b32 s29, s24, 3
s_add_u32 s34, s34, s29
s_lshl_b32 s29, s20, 1
s_add_u32 s34, s34, s29
s_lshl_b32 s34, s34, 10
s_add_u32 s49, s34, {WS_H}
""")
    token_and_started(True)
    W = 64
    for st in range(8):
        vm.wait(f"a{st}")
        if st: A("s_waitcnt lgkmcnt(0)")
        A("s_barrier")
        if st == 0: stampw(A, 3)
        for ks in range(4):
            for rd in range(2):
                sl = st % 5
                A(f"ds_read_b64_tr_b16 v[{W+16*st+4*ks+2*rd}:{W+16*st+4*ks+2*rd+1}], v{10 if sl < 4 else 11} offset:{(sl&3)*16384+4096*ks+1024*rd}")
        if st >= 1 and st + 4 < 8: dma_w(st + 4)
    A("s_waitcnt lgkmcnt(0)")
    stamp(A, 4)
    if O.stop == 1:
        for i in range(5, 12): stamp(A, i)
        stamp_out(A, 12); A("s_endpgm")
    A("s_cmp_lg_u32 s20, 0")
    A("s_cbranch_scc1 C_fa_ok")
    poll_loop(A, "C_fa", f"buffer_load_dword v31, v28, s[{WSRD}:{WSRD+3}], s35 offen sc1", [31], 26, 29)
    A("s_barrier")
    stamp(A, 5)
    def tile_off(t, dst, mul, base):
        A(f"s_add_u32 s29, s25, {t}")
        A("s_and_b32 s29, s29, 3")
        A(f"s_mul_i32 s{dst}, s29, {mul}")
        A(f"s_add_u32 s{dst}, s{dst}, s{base}")
    def dma_x(sg, i):
        t, hf = sg >> 1, sg & 1
        if i == 0: tile_off(t, 31, 32768, 26)
        else: A("s_add_u32 s31, s31, 2048")
        A(f"s_add_u32 m0, s32, {(sg & 3)*XS_ + 1056*i}")
        vm.op(f"buffer_load_dwordx4 v{12+hf}, s[{WSRD}:{WSRD+3}], s31 offen sc1 lds", f"x{sg}")
    for sg in range(4):
        for i in range(4): dma_x(sg, i)
    AC = [192, 208]; BF = 224; OP = 240
    def epi_ops(t):
        d = AC[t & 1]
        ops = [f"v_max_f32 v{d+r}, 0, v{d+r}" for r in range(16)]
        ops += [f"v_cvt_pk_bf16_f32 v{OP+i}, v{d+2*i}, v{d+2*i+1}" for i in range(8)]
        return ops
    def epi_store(t):
        tile_off(t, 44, 112 * 1024, 49)
        for e in range(2):
            vm.op(f"buffer_store_dwordx4 v[{OP+4*e}:{OP+4*e+3}], v3, s[{WSRD}:{WSRD+3}], s44 offen offset:{1024*e} sc1", "hst")
    w2next = 0
    def rdB(n):
        sg_, i_ = n >> 4, n & 15
        A(f"ds_read_b128 v[{BF+4*(n&3)}:{BF+4*(n&3)+3}], v14 offset:{(sg_&3)*XS_+32*i_}")
    vm.wait("x0")
    A("s_barrier")
    stampw(A, 6)
    for n in range(3): rdB(n)
    side = []; dm = []
    for n in range(128):
        sg, i = n >> 4, n & 15
        t, hf = sg >> 1, sg & 1
        if i == 0 and hf == 0 and t >= 1:
            side += [("v", o) for o in epi_ops(t - 1)] + [("st", t - 1)]
        if i == 13:
            if sg + 1 < 8: vm.wait(f"x{sg+1}")
            A("s_barrier")
            if sg >= 1 and sg + 3 < 8: dm += [("x", sg + 3, k_) for k_ in range(4)]
            nw2 = {3: 1, 5: 2, 6: 2, 7: 2}.get(sg, 0)
            dm += [("w2", w2next + k_) for k_ in range(nw2)]; w2next += nw2
        if n + 3 < 128:
            rdB(n + 3); A("s_waitcnt lgkmcnt(3)")
        else: A(f"s_waitcnt lgkmcnt({127 - n})")
        d = AC[t & 1]; wreg = W + 4 * (16 * hf + i)
        cc = "0" if (hf == 0 and i == 0) else f"v[{d}:{d+15}]"
        A(f"v_mfma_f32_32x32x16_bf16 v[{d}:{d+15}], v[{wreg}:{wreg+3}], v[{BF+4*(n&3)}:{BF+4*(n&3)+3}], {cc}")
        if dm and (n % 2 == 1 or n >= 125):
            x = dm.pop(0)
            if x[0] == "x": dma_x(x[1], x[2])
            else: dma_w2(x[1])
        elif i >= 3 or hf == 1:
            for _ in range(3):
                if side:
                    k_, o = side.pop(0)
                    if k_ == "v": A(o)
                    else:
                        epi_store(o); break
    assert not side and not dm, (side, dm)
    stamp(A, 7)
    for o in epi_ops(3): A(o)
    epi_store(3)
    A("s_barrier")
    for st in range(w2next, RS_): dma_w2(st)
    A("s_lshl_b32 s29, s23, 7")
    A("s_lshl_b32 s34, s24, 2")
    A("s_add_u32 s29, s29, s34")
    A(f"s_add_u32 s50, s29, {FH}")
    A("s_mov_b32 s51, 0")
    g1_ops = list(vm.ops)
    A("s_branch C_g2")
    A("C_idle:")
    if O.idle_exit: A("s_endpgm")
    token_and_started(False)
    if O.warm_delay:
        A("s_lshl_b32 s35, s23, 7")
        A(f"s_add_u32 s35, s35, {FA}")
        A("v_and_b32 v28, 15, v2")
        A("v_lshlrev_b32 v28, 2, v28")
        A("s_cmp_lg_u32 s20, 0")
        A("s_cbranch_scc1 C_fi_ok")
        poll_loop(A, "C_fi", f"buffer_load_dword v31, v28, s[{WSRD}:{WSRD+3}], s35 offen sc1", [31], 26, 29, sleep=16)
        A("s_barrier")
    if O.warm_w2:
        warm_w2()
        A("s_waitcnt vmcnt(0)")
        A("s_barrier")
    for st in range(RS_): dma_w2(st)
    A("s_waitcnt vmcnt(0)")
    A("s_mov_b32 s51, 99")
    A(f"s_mov_b32 s50, {FH}")
    vm.ops = g1_ops
    if O.stamps:
        for i in range(2, 8): stamp(A, i)
    A("C_g2:")
    A(f"""
s_mul_i32 s42, s36, 224
s_mul_i32 s29, s20, 28
s_add_u32 s42, s42, s29
s_lshl_b32 s42, s42, 10
s_add_u32 s42, s42, {WS_H}        ; h start
s_add_u32 s43, s42, {28*1024}     ; h end
s_lshl_b32 s29, s38, 10
s_add_u32 s48, s42, s29           ; h cur
v_add_u32 v5, {112*1024}, v3      ; h voffset t=1
s_and_b32 s31, s20, 1
s_lshr_b32 s32, s20, 1
s_lshl_b32 s33, s36, 6
s_lshl_b32 s34, s32, 5
s_add_u32 s33, s33, s34
s_lshl_b32 s34, s37, 6
s_lshl_b32 s35, s31, 5
s_add_u32 s34, s34, s35           ; d base
s_lshl_b32 s35, s33, 10
s_lshl_b32 s29, s34, 1
s_add_u32 s35, s35, s29
v_lshlrev_b32 v8, 10, v9
v_lshl_add_u32 v8, v7, 3, v8
s_lshl_b32 s44, s34, 12
s_lshl_b32 s29, s33, 1
s_add_u32 s44, s44, s29
s_add_u32 s44, s44, {WS_ZP}
v_lshrrev_b32 v28, 2, v2
v_and_b32 v10, 3, v2
v_lshlrev_b32 v10, 4, v10
v_lshl_add_u32 v28, v28, 12, v10
v_bfe_u32 v10, v2, 2, 2
v_and_b32 v11, 3, v2
v_bfe_u32 v12, v2, 4, 1
v_lshl_add_u32 v13, v7, 2, v10
v_lshlrev_b32 v13, 7, v13
v_lshl_add_u32 v13, v12, 5, v13
v_lshl_add_u32 v13, v11, 3, v13
v_add_u32 v13, s30, v13
v_lshrrev_b32 v10, 1, v10
v_lshl_add_u32 v14, v10, 6, v13
v_xor_b32 v10, 1, v10
v_lshl_add_u32 v15, v10, 6, v13
v_add_u32 v16, 0x10000, v14
v_add_u32 v17, 0x10000, v15
s_lshr_b32 s45, s36, 1
s_lshl_b32 s45, s45, 7
s_add_u32 s45, s45, {FH}
s_lshl_b32 s46, s37, 7
s_add_u32 s46, s46, {FZ}
v_lshlrev_b32 v29, 2, v9
v_min_u32 v30, 52, v29
v_bfe_u32 v10, v2, 2, 2
v_lshl_add_u32 v10, v7, 2, v10    ; 4h + r
v_lshlrev_b32 v10, 6, v10
v_lshl_add_u32 v10, v12, 5, v10
v_lshl_add_u32 v10, v11, 3, v10
v_add_u32 v12, s30, v10
v_add_u32 v13, 0x10000, v12
v_add_u32 v10, s30, v3
v_add_u32 v11, 0x10000, v10
v_lshlrev_b32 v9, 10, v9
v_lshl_add_u32 v9, v7, 4, v9
""")
    srd(A, 8, P_OUT, 2048 * 1024)
    ZSL_ = SL[18 % RS_]
    free_ = [sl for sl in range(RS_) if sl != ZSL_][:8]
    for half, reg in ((0, 6), (1, 31)):
        A(f"s_mov_b32 s29, {free_[half]*8192}")
        for w_ in range(1, 4):
            A(f"s_cmp_eq_u32 s20, {w_}")
            A(f"s_cmov_b32 s29, {free_[2*w_+half]*8192}")
        A(f"s_mov_b32 s{31+half}, s29")
    ACC = 32
    RA = 96
    HR = RA + 8 * NRA
    assert HR + 8 * HD <= 256
    def areg(st): return RA + 8 * (st % NRA)
    def rdA2(st):
        sl = SL[st % RS_]; dst = areg(st)
        for u in range(2):
            for rd in range(2):
                A(f"ds_read_b64_tr_b16 v[{dst+4*u+2*rd}:{dst+4*u+2*rd+1}], v{(14 if sl < 8 else 16)+u} offset:{(sl&7)*8192+1024*rd}")
    def ld_h(st, t):
        sl = st % HD
        vm.op(f"buffer_load_dwordx4 v[{HR+8*sl+4*t}:{HR+8*sl+4*t+3}], v{3 if t == 0 else 5}, s[{WSRD}:{WSRD+3}], s48 offen {O.h_fl}", f"h{st}")
        if t == 1:
            A("s_add_u32 s48, s48, 1024")
            A("s_cmp_eq_u32 s48, s43")
            A("s_cmov_b32 s48, s42")
    XR = 18
    hflag = f"buffer_load_dword v31, v30, s[{WSRD}:{WSRD+3}], s45 offen sc1"
    wnext = RS_
    for st in range(NRA):
        if st == O.pub_at:
            vm.wait("hst")
            A("s_barrier")
            A("s_cmp_lg_u32 s20, s51")
            A("s_cbranch_scc1 C_nopub")
            A("s_mov_b64 exec, 1")
            A(f"{FLAGOP()} v26, v27, s[{WSRD}:{WSRD+3}], s50 offen sc1")
            A("s_mov_b64 exec, -1")
            A("C_nopub:")
            stamp(A, 8)
        vm.wait(f"w{st}")
        rdA2(st)
        if st >= 1:
            A("s_waitcnt lgkmcnt(4)")
            dma_w2(wnext); wnext += 1
        if st == O.hf_issue: vm.op(hflag, "hf")
    A("s_waitcnt lgkmcnt(0)")
    dma_w2(wnext); wnext += 1
    stamp(A, 9)
    vm.wait("hf")
    A("v_cmp_ne_u32 vcc, v31, v26")
    A("s_cbranch_vccz C_fh_ok")
    poll_loop(A, "C_fh", hflag, [31], 26, 29)
    stamp(A, 10)
    for st in range(HD):
        for t in range(2): ld_h(st, t)
    zflag = f"buffer_load_dword v31, v29, s[{WSRD}:{WSRD+3}], s46 offen sc1"
    TAIL = 4
    assert HD >= TAIL
    T1 = RA + 8 * 12; T2 = RA + 8 * 14; ZR = RA
    assert NS - NRA <= 12
    rnext = NRA
    ZSL = SL[18 % RS_]
    A("s_mov_b32 s47, 0xffff0000")
    def mf(st, t, u):
        af = areg(st); sl = st % HD
        d = ACC + 16 * (2 * t + u)
        cc = "0" if st == 0 else f"v[{d}:{d+15}]"
        A(f"v_mfma_f32_32x32x16_bf16 v[{d}:{d+15}], v[{af+4*u}:{af+4*u+3}], v[{HR+8*sl+4*t}:{HR+8*sl+4*t+3}], {cc}")
    lds_pending = False
    for st in range(NS - TAIL):
        vm.wait(f"h{st}")
        if lds_pending:
            A("s_waitcnt lgkmcnt(0)"); lds_pending = False
            if wnext < NS and wnext - RS_ < rnext:
                dma_w2(wnext); wnext += 1
        n = 0
        for t in range(2):
            for u in range(2):
                mf(st, t, u); n += 1
                if n == 2 and st + HD < NS: ld_h(st + HD, 0)
                if n == 4 and st + HD < NS: ld_h(st + HD, 1)
        if rnext < NS and rnext - NRA <= st - 1:
            vm.wait(f"w{rnext}")
            rdA2(rnext); rnext += 1; lds_pending = True
        if O.g2stamps and st in (3, 7, 11, 15, 19, 23): stampw(A, 2 + (st >> 2))
        if st == O.zf_issue: vm.op(zflag, "zf")
        if st == O.zf_check:
            vm.wait("zf")
            A("v_cmp_ne_u32 vcc, v31, v26")
            A("s_cbranch_vccz C_fz_ok")
            poll_loop(A, "C_fz", zflag, [31], 26, 29)
        if st == NS - TAIL - 1:
            for j in range(2):
                A(f"s_add_u32 m0, s30, {ZSL*8192 + 1024*j}")
                if j: A("s_add_u32 s44, s44, 65536")
                vm.op(f"buffer_load_dwordx4 v28, s[{WSRD}:{WSRD+3}], s44 offen sc1 lds", "z")
    assert wnext == NS and rnext == NS, (wnext, rnext)
    free = [sl for sl in range(RS_) if sl != ZSL][:8]
    vm.wait(f"h{NS-1}")
    side = []
    for i in range(8):
        side += [f"v_lshlrev_b32 v{T1+2*i}, 16, v{XR+i}", f"v_and_b32 v{T1+2*i+1}, s47, v{XR+i}"]
    zops = []
    for i in range(8):
        zops += [f"v_lshlrev_b32 v{T2+2*i}, 16, v{ZR+i}", f"v_and_b32 v{T2+2*i+1}, s47, v{ZR+i}"]
    zops += [f"v_pk_add_f32 v[{T1+i}:{T1+i+1}], v[{T1+i}:{T1+i+1}], v[{T2+i}:{T2+i+1}]" for i in range(0, 16, 2)]
    zops += [f"v_cvt_pk_bf16_f32 v{XR+i}, v{T1+2*i}, v{T1+2*i+1}" for i in range(8)]
    for i in range(8):
        zops += [f"v_lshlrev_b32 v{T1+2*i}, 16, v{XR+i}", f"v_and_b32 v{T1+2*i+1}, s47, v{XR+i}"]
    def wr(q, i):
        sl = free[2 * q + (i >> 1)]
        d = ACC + 16 * q + 4 * i
        A(f"ds_write_b128 v{10 if sl < 8 else 11}, v[{d}:{d+3}] offset:{(sl&7)*8192 + 1024*(i&1)}")
    for q in range(4):
        t, u = q >> 1, q & 1
        for k_, st in enumerate(range(NS - TAIL, NS)):
            mf(st, t, u)
            for _ in range(5):
                if side: A(side.pop(0))
            if q >= 1 and k_ >= 2:
                wr(q - 1, 2 * (k_ - 2)); wr(q - 1, 2 * (k_ - 2) + 1)
    while side: A(side.pop(0))
    stamp(A, 11)
    for i in range(4): wr(3, i)
    A("v_add_u32 v6, s31, v3")
    A("v_add_u32 v4, s32, v3")
    vm.wait("z")
    for g in range(4):
        A(f"ds_read_b64_tr_b16 v[{ZR+2*g}:{ZR+2*g+1}], v{12 if ZSL < 8 else 13} offset:{(ZSL&7)*8192 + 512*g}")
    A("s_waitcnt lgkmcnt(0)")
    A("s_barrier")
    for src in range(4):
        for i in range(4):
            d = ACC + 16 * src + 4 * i
            A(f"ds_read_b128 v[{d}:{d+3}], v{6 if i < 2 else 4} offset:{src*2048 + 1024*(i&1)}")
        if src == 2:
            for o in zops: A(o)
            A("s_waitcnt lgkmcnt(4)")
    for i in range(0, 16, 2):
        A(f"v_pk_add_f32 v[{ACC+i}:{ACC+i+1}], v[{ACC+i}:{ACC+i+1}], v[{ACC+16+i}:{ACC+17+i}]")
    A("s_waitcnt lgkmcnt(0)")
    for i in range(0, 16, 2):
        A(f"v_pk_add_f32 v[{ACC+32+i}:{ACC+33+i}], v[{ACC+32+i}:{ACC+33+i}], v[{ACC+48+i}:{ACC+49+i}]")
    for i in range(0, 16, 2):
        A(f"v_pk_add_f32 v[{ACC+i}:{ACC+i+1}], v[{ACC+i}:{ACC+i+1}], v[{ACC+32+i}:{ACC+33+i}]")
    for i in range(8): A(f"v_cvt_pk_bf16_f32 v{ZR+i}, v{ACC+2*i}, v{ACC+2*i+1}")
    for i in range(8):
        A(f"v_lshlrev_b32 v{T2+2*i}, 16, v{ZR+i}")
        A(f"v_and_b32 v{T2+2*i+1}, s47, v{ZR+i}")
    for i in range(0, 16, 2):
        A(f"v_pk_add_f32 v[{T1+i}:{T1+i+1}], v[{T1+i}:{T1+i+1}], v[{T2+i}:{T2+i+1}]")
    OUTR = ACC
    for i in range(8): A(f"v_cvt_pk_bf16_f32 v{OUTR+i}, v{T1+2*i}, v{T1+2*i+1}")
    for p in range(2):
        A(f"v_permlane32_swap_b32 v{OUTR+4*p}, v{OUTR+4*p+2}")
        A(f"v_permlane32_swap_b32 v{OUTR+4*p+1}, v{OUTR+4*p+3}")
    for p in range(2):
        A(f"buffer_store_dwordx4 v[{OUTR+4*p}:{OUTR+4*p+3}], v9, s[8:11], s35 offen offset:{32*p}")
    stamp_out(A, 12)
    A("s_endpgm")

def build(path, **opts):
    for k_, v_ in opts.items(): setattr(O, k_, v_)
    A = Asm()
    A.begin_kernel(K)
    stamp(A, 0, real=True); stamp(A, 1)
    if O.dbgtime: A("s_memrealtime s[64:65]\ns_memtime s[66:67]")
    A(f"""
s_cmp_ge_u32 s2, 512
s_cbranch_scc1 K_done
s_load_dwordx16 s[36:51], s[0:1], 0
s_load_dwordx8 s[52:59], s[0:1], 64
s_load_dwordx2 s[60:61], s[0:1], 96
{'s_xor_b32 s2, s2, 256' if O.sfirst else ''}
s_cmp_ge_u32 s2, 256
s_cbranch_scc1 {'K_done' if O.only == 'C' else 'S_role'}
{'s_branch K_done' if O.only == 'S' else ''}
""")
    gen_C(A)
    gen_S(A)
    A("K_done:")
    A("s_endpgm")
    A.end_kernel(K, vgpr=256, sgpr=102, ieee=False)
    A.lines, n = hazard.fix(A.lines)
    hdr = open("cdna_kernels/" + NAME + ".s.ref").read().split("; Override launch")[0]
    txt = A.text(hdr + "; @launch grid=(512,1,1) block=(256,1,1) lds=81920\n")
    open(path, "w").write(txt)
    return n

if __name__ == "__main__":
    print("nops", build("mega.s", stamps=False))
    build("mega_st.s", stamps=True)
    build("d1.s", stamps=False, dbgtime=True)
```

```python
from gen import *
import hazard, sys

WS_XNT = 0x200000
XNT_STRIDE = 4160
KIMG_STRIDE = 9216
KCOPY = 4640
WS_ZP = 0xA00000
WS_H = 0xC00000
WS_STAT = 0x0
WS_FLG = 0x10000
FX, FH, FZ, FS, EPOCH, FA = WS_FLG, WS_FLG + 0x1000, WS_FLG + 0x2000, WS_FLG + 0x3000, WS_FLG + 0x4000, WS_FLG + 0x5000
WS_XN = 0x1400000
FG = WS_FLG + 0x6000
WS_BYTES = 0x10000000
WS_STAMP = 0x2000000
LOG2E = 0x3fb8aa3b
INV2PI = 0x3e22f983
SPIN_MAX = 200000
K = NAME + "_kernel"

P_U, P_LAR, P_AIM, P_CRE, P_CIM, P_LDT, P_DSK = 36, 38, 40, 42, 44, 46, 48
P_W1, P_W2, P_OUT, P_DBG, P_WS = 52, 54, 56, 58, 60
TOK = 62
WSRD = 4

class Opt:
    stamps = False
    x_fl = ""
    w1_fl = ""
    w2_fl = ""
    rot1 = True
    rot2 = True
    warm_w2 = True
    hd = 4
    fi_sleep = 16
    out_fl = ''
    nozf = False
    s_w2 = False
    s_w2_depth = 4
    s_h = False
    pre_pub = 2
    pretouch = False
    w2_in_g1 = {3: 1, 5: 2, 6: 2}
    spin = SPIN_MAX
    g1stamps = False
    hint_at = 88
    use_hint = False
    x_nodma = False
    x_noepi = False
    x_nobar = False
    x_nord = False
    dbgtime = False
    flag_atomic = True
    warm_delay = True
    xe_fl = ''
    pub_at = 4
    hf_issue = 13
    prio_S3 = 2
    warm_depth = 8
    warm_n = 40
    sfirst = True
    par_fl = 'nt'
    xsl_fl = 'nt'
    zf_issue = 17
    zf_check = 22
    h_fl = 'sc1'
    nojit = False
    g2stamps = False
    plain23 = True
    prio_S2 = 0
    w1depth = 7
    x8_fl = 'nt'
    stop = 0
    idle_exit = False
    nra = 16
    only = ''
    setprio_S = 3
    setprio_C = 1
O = Opt()

def FLAGOP(): return 'buffer_atomic_swap' if O.flag_atomic else 'buffer_store_dword'
def stamp(A, i, real=False):
    if O.stamps:
        A(f"{'s_memrealtime' if real else 's_memtime'} s[{64+2*i}:{65+2*i}]")
def stampw(A, i):
    if O.stamps:
        A("s_waitcnt lgkmcnt(0)"); stamp(A, i); A("s_waitcnt lgkmcnt(0)")
def stamp_out(A, n):
    if O.dbgtime:
        lb = A.newlabel("DT")
        A("s_and_b32 s72, s2, 127")
        A("s_cmp_lg_u32 s72, 5")
        A(f"s_cbranch_scc1 {lb}")
        A("s_cmp_lg_u32 s20, 0")
        A(f"s_cbranch_scc1 {lb}")
        A("s_waitcnt vmcnt(0) lgkmcnt(0)")
        A("s_memtime s[68:69]")
        A("s_memrealtime s[70:71]")
        A("s_waitcnt lgkmcnt(0)")
        A("s_sub_u32 s68, s68, s66")
        A("s_sub_u32 s73, s70, s64")
        A("s_lshr_b32 s72, s2, 7")
        A("s_lshl_b32 s72, s72, 4")
        A("s_mov_b64 exec, 1")
        A("v_mov_b32 v1, s72")
        for i, r in enumerate((64, 70, 68, 73)):
            A(f"v_mov_b32 v2, s{r}")
            A(f"global_store_dword v1, v2, s[{P_DBG}:{P_DBG+1}] offset:{4*i}")
        A("s_waitcnt vmcnt(0)")
        A(f"{lb}:")
    if not O.stamps: return
    A("s_mov_b64 exec, -1")
    A("s_waitcnt vmcnt(0) lgkmcnt(0)")
    stamp(A, n); stamp(A, n + 1, real=True)
    A("s_waitcnt lgkmcnt(0)")
    A("v_lshrrev_b32 v1, 6, v0")
    A(f"s_mul_i32 s100, s2, 256")
    A(f"s_add_u32 s100, s100, {WS_STAMP}")
    A("v_lshlrev_b32 v1, 6, v1")
    A("v_add_u32 v1, s100, v1")
    for i in range(n + 2):
        A(f"v_mov_b32 v2, s{64+2*i}")
        A(f"global_store_dword v1, v2, s[{P_WS}:{P_WS+1}] offset:{4*i}")
    A("s_waitcnt vmcnt(0)")

def srd(A, d, p, nbytes):
    A(f"s_mov_b32 s{d}, s{p}")
    A(f"s_mov_b32 s{d+1}, s{p+1}")
    A(f"s_mov_b32 s{d+2}, {nbytes}")
    A(f"s_mov_b32 s{d+3}, 0x00020000")

def dpp_sum(A, regs):
    for ctl in ("row_shr:1 row_mask:0xf", "row_shr:2 row_mask:0xf", "row_shr:4 row_mask:0xf", "row_shr:8 row_mask:0xf",
                "row_bcast:15 row_mask:0xa", "row_bcast:31 row_mask:0xc"):
        for r in regs:
            bc = " bound_ctrl:0" if "shr" in ctl else ""
            A(f"v_add_f32_dpp v{r}, v{r}, v{r} {ctl} bank_mask:0xf{bc}")

def bf16_round(A, dst, src):
    A(f"v_cvt_pk_bf16_f32 v{dst}, v{src}, v{src}")
    A(f"v_lshlrev_b32 v{dst}, 16, v{dst}")

class VM:
    def __init__(self, A): self.A = A; self.ops = []
    def op(self, txt, tag): self.A(txt); self.ops.append(tag)
    def wait(self, *tags):
        idx = max((i for i, t in enumerate(self.ops) if t in tags), default=-1)
        if idx < 0: return
        n = len(self.ops) - 1 - idx
        assert n <= 63, n
        self.A(f"s_waitcnt vmcnt({n})")
        self.ops = self.ops[idx + 1:]
    def drain(self):
        self.A("s_waitcnt vmcnt(0)"); self.ops = []

def poll_loop(A, name, load, cmp_regs, tokv, cnt, sleep=2):
    A(f"s_mov_b32 s{cnt}, 0")
    A(f"{name}_poll:")
    A(load)
    A(f"s_add_u32 s{cnt}, s{cnt}, 1")
    A("s_waitcnt vmcnt(0)")
    check(A, cmp_regs, tokv)
    A(f"s_cbranch_vccz {name}_ok")
    A(f"s_cmp_gt_u32 s{cnt}, {0 if (O.only == 'C' and name in ('C_fa','C_fz','C_fi')) or (O.only == 'S' and name in ('S_fs', 'S_fg', 'S_ph')) else O.spin}")
    A(f"s_cbranch_scc1 {name}_ok")
    A(f"s_sleep {sleep}")
    A(f"s_branch {name}_poll")
    A(f"{name}_ok:")

def check(A, regs, tokv, tmp=None):
    if len(regs) == 1:
        A(f"v_cmp_ne_u32 vcc, v{regs[0]}, v{tokv}")
        return
    t = tmp if tmp is not None else 255
    A(f"v_xor_b32 v{t}, v{regs[0]}, v{tokv}")
    for r in regs[1:]:
        A(f"v_xor_b32 v{t-1}, v{r}, v{tokv}")
        A(f"v_or_b32 v{t}, v{t}, v{t-1}")
    A(f"v_cmp_ne_u32 vcc, 0, v{t}")

def gen_S(A):
    UB = 0; USZ = 17408
    KB = 2 * USZ + 64
    PAR = KB + 2 * KIMG_STRIDE
    XCH = PAR + 4352
    TBL = XCH + 8192 + 64
    XSL = TBL + 2 * 1344
    assert XSL + 8192 <= 81920
    XB = PAR
    assert XB + 16384 <= 81920
    W_ = f"s[{WSRD}:{WSRD+3}]"
    vm = VM(A)
    A("S_role:")
    if O.setprio_S: A(f"s_setprio {O.setprio_S}")
    A(f"""
s_sub_u32 s3, s2, 256            ; b
v_lshrrev_b32 v1, 6, v0          ; wave
v_and_b32 v2, 63, v0             ; lane
v_readfirstlane_b32 s20, v1
s_lshr_b32 s21, s20, 1           ; ch
s_and_b32 s22, s20, 1
s_lshl_b32 s23, s3, 1
s_add_u32 s23, s23, s21          ; d
s_and_b32 s24, s3, 7             ; xcd
s_lshr_b32 s25, s3, 3            ; j
s_lshl_b32 s16, s24, 8
s_lshl_b32 s17, s25, 3
s_add_u32 s16, s16, s17          ; LN r0
s_lshl_b32 s17, s20, 1
s_add_u32 s16, s16, s17
s_lshl_b32 s18, s16, 10
s_lshl_b32 s26, s24, 1
s_lshr_b32 s27, s25, 4
s_add_u32 s26, s26, s27
s_and_b32 s27, s25, 15           ; sl
v_lshlrev_b32 v3, 4, v2          ; lane*16
v_lshrrev_b32 v4, 2, v2
v_and_b32 v5, 3, v2
v_lshlrev_b32 v5, 4, v5
v_lshl_add_u32 v4, v4, 10, v5
s_lshl_b32 s28, s26, 17
s_lshl_b32 s29, s20, 15
s_add_u32 s28, s28, s29
s_lshl_b32 s29, s27, 6
s_add_u32 s28, s28, s29
s_lshl_b32 s29, s20, 11
s_add_u32 s29, s29, {XSL}
s_lshl_b32 s30, s23, 8
s_lshl_b32 s31, s22, 7
s_add_u32 s30, s30, s31
v_lshlrev_b32 v6, 1, v2
v_add_u32 v6, s30, v6
s_lshl_b32 s31, s23, 1
v_mov_b32 v7, s31
s_lshl_b32 s19, s3, 2
s_waitcnt lgkmcnt(0)
s_load_dword s{TOK}, s[{P_WS}:{P_WS+1}], {EPOCH}
s_load_dword s63, s[{P_DSK}:{P_DSK+1}], s19
""")
    srd(A, 8, P_U, 2048 * 1024)
    srd(A, WSRD, P_WS, WS_BYTES)
    vm.op(f"buffer_load_dwordx4 v[8:11], v3, s[8:11], s18 offen {O.x8_fl}", "x8")
    vm.op(f"buffer_load_dwordx4 v[12:15], v3, s[8:11], s18 offen offset:1024 {O.x8_fl}", "x8")
    for i, p in enumerate((P_LAR, P_AIM, P_CRE, P_CIM)):
        vm.op(f"global_load_ushort v{60+i}, v6, s[{p}:{p+1}] {O.par_fl}", "par")
    vm.op(f"global_load_ushort v64, v7, s[{P_LDT}:{P_LDT+1}]", "par")
    for j in range(2):
        A(f"s_add_u32 m0, s29, {1024*j}")
        A(f"s_add_u32 s31, s28, {16384*j}")
        vm.op(f"buffer_load_dwordx4 v4, s[8:11], s31 offen {O.xsl_fl} lds", "xsl")
    if O.pretouch:
        A("v_lshlrev_b32 v250, 20, v2")
        A("s_mov_b32 exec_lo, 0x3fffff\ns_mov_b32 exec_hi, 0")
        vm.op(f"buffer_load_dword v251, v250, {W_}, 0 offen offset:2048 nt", "pt")
        A("s_mov_b64 exec, 3")
        vm.op(f"global_load_dword v252, v250, s[{P_OUT}:{P_OUT+1}] nt", "pt")
        vm.op(f"global_load_dword v253, v250, s[{P_W2}:{P_W2+1}] nt", "pt")
        A("s_mov_b64 exec, -1")
    VN, VKQ, VI = 204, 205, 206
    VPW, VPR, VGR, VTR, VXT = 207, 208, 209, 210, 211
    VXS, VXP, VK0, VTB, VKZ, VKW, VFX, VUW = 212, 213, 214, 215, 216, 217, 218, 219
    VF, VG, VUU, VZ, VXW, VXR, VTOK, VZERO = 220, 221, 222, 223, 224, 225, 226, 227
    ONE2 = 228
    GA = 232
    A(f"""
s_mov_b32 s19, 0xffff0000
s_mov_b32 s12, {LOG2E}
s_mov_b32 s13, {INV2PI}
s_mul_i32 s14, s20, 1088
s_add_u32 s14, s14, {PAR}
v_lshrrev_b32 v{VKQ}, 4, v2
v_and_b32 v{VI}, 15, v2
v_lshl_add_u32 v{VPW}, v{VKQ}, 4, v3
v_add_u32 v{VPW}, s14, v{VPW}
v_mul_u32_u24 v{VPR}, 272, v{VKQ}
v_add_u32 v{VPR}, s14, v{VPR}
v_add_u32 v20, 1, v{VI}
v_cvt_f32_u32 v{VN}, v20
v_lshlrev_b32 v{VGR}, 6, v{VKQ}
v_bfe_u32 v21, v2, 2, 2
v_lshl_add_u32 v21, v{VKQ}, 3, v21
v_lshlrev_b32 v21, 6, v21
v_and_b32 v22, 3, v2
v_lshl_add_u32 v21, v22, 3, v21
v_add_u32 v{VTR}, s29, v21
v_mul_u32_u24 v{VXT}, {XNT_STRIDE}, v{VI}
v_lshl_add_u32 v{VXT}, v{VKQ}, 4, v{VXT}
s_lshl_b32 s28, s20, 11
s_add_u32 s28, s28, {XCH}
v_add_u32 v{VXS}, s28, v3
s_xor_b32 s28, s20, 1
s_lshl_b32 s28, s28, 11
s_add_u32 s28, s28, {XCH}
v_add_u32 v{VXP}, s28, v3
s_lshl_b32 s28, s20, 2
s_add_u32 s28, s28, {XCH+8192}
v_mov_b32 v{VK0}, s28
v_and_b32 v20, 15, v20
v_lshlrev_b32 v20, 5, v20
v_lshl_add_u32 v20, v{VKQ}, 3, v20
s_mul_i32 s32, s21, 1344
s_add_u32 s32, s32, {TBL}
v_add_u32 v{VTB}, s32, v20
s_mul_i32 s33, s21, {USZ}
s_mul_i32 s34, s21, {KIMG_STRIDE}
s_add_u32 s34, s34, {KB}
v_and_b32 v27, 127, v0                ; tau
v_lshlrev_b32 v30, 3, v27
v_add_u32 v{VKZ}, s34, v30
v_sub_u32 v30, 1008, v30
v_add_u32 v{VKW}, s34, v30
v_lshlrev_b32 v{VFX}, 2, v{VI}
s_mul_i32 s35, s22, {130*16}
s_add_u32 s28, s35, s33
v_add_u32 v{VUW}, s28, v3
s_mul_i32 s24, s23, {XNT_STRIDE}
s_add_u32 s24, s24, s35
s_add_u32 s24, s24, {WS_XNT}          ; U src
v_and_b32 v20, 3, v2
v_bfe_u32 v21, v2, 2, 2
v_mul_u32_u24 v20, {XNT_STRIDE}, v20
v_add_u32 v21, v21, v{VKQ}
v_lshl_add_u32 v20, v21, 4, v20
s_lshl_b32 s31, s22, 8
s_add_u32 s28, s33, s31
v_add_u32 v{VF}, s28, v20
v_and_b32 v21, 1, v2
v_bfe_u32 v22, v2, 1, 3
v_mul_u32_u24 v20, {KCOPY}, v21
v_lshl_add_u32 v20, v{VKQ}, 4, v20
v_lshlrev_b32 v23, 6, v22
v_sub_u32 v20, v20, v23
s_add_u32 s28, s34, s31
s_add_u32 s28, s28, 448
v_add_u32 v{VG}, s28, v20
v_lshlrev_b32 v23, 5, v22
v_lshl_add_u32 v23, v21, 2, v23
v_lshl_add_u32 v23, v{VKQ}, 3, v23    ; P0
v_lshlrev_b32 v{VZ}, 1, v23
s_lshl_b32 s28, s22, 11
s_add_u32 s28, s28, s33
s_add_u32 s28, s28, {3*XNT_STRIDE + 48}
v_add_u32 v{VUU}, s28, v{VZ}
s_lshl_b32 s28, s20, 12
s_add_u32 s28, s28, {XB}
v_add_u32 v{VXW}, s28, v3
s_xor_b32 s28, s20, 1
s_lshl_b32 s28, s28, 12
s_add_u32 s28, s28, {XB}
v_add_u32 v{VXR}, s28, v3
v_mov_b32 v{VZERO}, 0
v_mov_b32 v{ONE2}, 1.0
v_mov_b32 v{ONE2+1}, 0
v_mov_b32 v230, 0
v_mov_b32 v231, 0
v_lshlrev_b32 v4, 2, v27
s_sub_u32 s28, s32, {2*(0x4280-3)}
s_mov_b32 s31, 0xffff
""")
    AD = 66
    for jj in range(4):
        for e in range(4): A(f"v_add_u32 v{AD+4*jj+e}, {512*jj+e}, v4")
    for i in range(16): A(f"v_cvt_f32_u32 v{GA+i}, v{AD+i}")
    for i in range(0, 16, 2): A(f"v_cvt_pk_bf16_f32 v{GA+i}, v{GA+i}, v{GA+i+1}")
    for i in range(0, 16, 2):
        A(f"v_lshrrev_b32 v{GA+i+1}, 16, v{GA+i}")
        A(f"v_and_b32 v{GA+i}, s31, v{GA+i}")
    for e in range(4):
        A(f"v_min_u32 v{AD+e}, 128, v{AD+e}")
        A(f"v_add_u32 v{AD+e}, 0x4280, v{AD+e}")
        A(f"v_max_u32 v{GA+e}, v{GA+e}, v{AD+e}")
    for i in range(16): A(f"v_lshl_add_u32 v{GA+i}, v{GA+i}, 1, s28")
    A("v_cmp_gt_u32 vcc, 69, v27")
    A("s_and_saveexec_b64 s[30:31], vcc")
    A(f"ds_write_b64 v{VKZ}, v[230:231] offset:4088")
    A("s_mov_b64 exec, -1")
    A("v_cmp_gt_u32 vcc, 56, v27")
    A("s_and_saveexec_b64 s[30:31], vcc")
    A(f"ds_write_b64 v{VKZ}, v[230:231] offset:8736")
    A("s_mov_b64 exec, -1")
    A("v_mov_b32 v40, 0x3b000000")
    A("s_waitcnt lgkmcnt(0)")
    A(f"s_mul_i32 s{TOK}, s{TOK}, 0x9e3779b1")
    A(f"s_add_u32 s{TOK}, s{TOK}, 0x7f4a7c15")
    A(f"v_mov_b32 v{VTOK}, s{TOK}")
    A(f"v_mov_b32 v41, s{TOK}")
    A(f"v_mov_b32 v43, s{TOK}")
    A("s_lshl_b32 s17, s16, 3")
    A(f"s_add_u32 s17, s17, {WS_STAT}")
    A(f"s_add_u32 s18, s18, {WS_XN}")
    A("v_mov_b32 v39, 0x3b000000")
    vm.wait("x8")
    stamp(A, 2)
    X = [16, 24]; Dd = [44, 52]; S = [32, 33]; M = [34, 36]; V = [35, 37]
    def pk(op, d, a_, b_, c_=None, mods=""):
        if c_ is None: A(f"{op} v[{d}:{d+1}], v[{a_}:{a_+1}], v[{b_}:{b_+1}] {mods}")
        else: A(f"{op} v[{d}:{d+1}], v[{a_}:{a_+1}], v[{b_}:{b_+1}], v[{c_}:{c_+1}] {mods}")
    for r in range(2):
        for i in range(4):
            A(f"v_lshlrev_b32 v{X[r]+2*i}, 16, v{8+4*r+i}")
            A(f"v_and_b32 v{X[r]+2*i+1}, s19, v{8+4*r+i}")
    for r in range(2): pk("v_pk_add_f32", Dd[r], X[r], X[r] + 2)
    for r in range(2): pk("v_pk_add_f32", Dd[r] + 2, X[r] + 4, X[r] + 6)
    for r in range(2): pk("v_pk_add_f32", Dd[r], Dd[r], Dd[r] + 2)
    for r in range(2): A(f"v_add_f32 v{S[r]}, v{Dd[r]}, v{Dd[r]+1}")
    dpp_sum(A, S)
    for r in range(2): A(f"v_readlane_b32 s{30+r}, v{S[r]}, 63")
    for r in range(2): A(f"v_mul_f32 v{M[r]}, s{30+r}, v39")
    for i in range(0, 8, 2):
        for r in range(2): pk("v_pk_add_f32", Dd[r] + i, X[r] + i, M[r], mods="op_sel_hi:[1,0] neg_lo:[0,1] neg_hi:[0,1]")
    for r in range(2): pk("v_pk_mul_f32", 8 + 4 * r, Dd[r], Dd[r])
    for i in range(2, 8, 2):
        for r in range(2): pk("v_pk_fma_f32", 8 + 4 * r, Dd[r] + i, Dd[r] + i, 8 + 4 * r)
    for r in range(2): A(f"v_add_f32 v{S[r]}, v{8+4*r}, v{9+4*r}")
    dpp_sum(A, S)
    for r in range(2): A(f"v_readlane_b32 s{30+r}, v{S[r]}, 63")
    for r in range(2): bf16_round(A, M[r], M[r])
    for r in range(2): A(f"v_mul_f32 v{V[r]}, s{30+r}, v39")
    for r in range(2): bf16_round(A, V[r], V[r])
    for r in range(2): A(f"v_add_f32 v{V[r]}, 0x3727c5ac, v{V[r]}")
    for r in range(2): bf16_round(A, V[r], V[r])
    for r in range(2): A(f"v_sqrt_f32 v{V[r]}, v{V[r]}")
    for i in range(0, 8, 2):
        for r in range(2): pk("v_pk_add_f32", Dd[r] + i, X[r] + i, M[r], mods="op_sel_hi:[1,0] neg_lo:[0,1] neg_hi:[0,1]")
    for r in range(2): A(f"v_cvt_pk_bf16_f32 v{40+2*r}, v{V[r]}, v{M[r]}")
    A("s_mov_b64 exec, 1")
    vm.op(f"buffer_store_dwordx4 v[40:43], v{VZERO}, {W_}, s17 offen sc1", "stat")
    A("s_mov_b64 exec, -1")
    for r in range(2): A(f"v_lshlrev_b32 v{V[r]}, 16, v{40+2*r}")
    for r in range(2): A(f"v_rcp_f32 v{V[r]}, v{V[r]}")
    for r in range(2):
        for i in range(4): A(f"v_cvt_pk_bf16_f32 v{8+4*r+i}, v{Dd[r]+2*i}, v{Dd[r]+2*i+1}")
    for r in range(2):
        for i in range(4):
            A(f"v_lshlrev_b32 v{Dd[r]+2*i}, 16, v{8+4*r+i}")
            A(f"v_and_b32 v{Dd[r]+2*i+1}, s19, v{8+4*r+i}")
    for i in range(0, 8, 2):
        for r in range(2): pk("v_pk_mul_f32", Dd[r] + i, Dd[r] + i, M[r], mods="op_sel:[0,1] op_sel_hi:[1,1]")
    for r in range(2):
        for i in range(4): A(f"v_cvt_pk_bf16_f32 v{8+4*r+i}, v{Dd[r]+2*i}, v{Dd[r]+2*i+1}")
    vm.op(f"buffer_store_dwordx4 v[8:11], v3, {W_}, s18 offen sc1", "xn")
    vm.op(f"buffer_store_dwordx4 v[12:15], v3, {W_}, s18 offen offset:1024 sc1", "xn")
    stamp(A, 3)
    vm.wait("par")
    for i in range(5): A(f"v_lshlrev_b32 v{60+i}, 16, v{60+i}")
    A("v_mul_f32 v60, s12, v60\nv_mul_f32 v64, s12, v64\nv_exp_f32 v60, v60\nv_exp_f32 v64, v64")
    bf16_round(A, 60, 60); bf16_round(A, 64, 64)
    A(f"""
v_mul_f32 v16, v60, v64
v_mul_f32 v17, v61, v64
v_mul_f32 v18, v62, v64
v_mul_f32 v19, v63, v64
v_mul_f32 v16, s12, v16
v_sub_f32 v16, 0, v16
v_mul_f32 v17, s13, v17
v_add_f32 v18, v18, v18
v_add_f32 v19, v19, v19
ds_write_b128 v{VPW}, v[16:19]
v_mov_b32 v20, v18
""")
    dpp_sum(A, [20])
    A("v_readlane_b32 s15, v20, 63")
    A("s_waitcnt lgkmcnt(0)")
    P = 32
    for m in range(16):
        A(f"ds_read_b128 v[{P+4*m}:{P+4*m+3}], v{VPR} offset:{16*m}")
        if m == 7: A("s_waitcnt lgkmcnt(4)")
    A("v_mov_b32 v21, s15")
    A(f"ds_write_b32 v{VK0}, v21")
    A("s_lshr_b32 s17, s16, 7")
    A("s_lshl_b32 s17, s17, 7")
    A("s_lshr_b32 s18, s16, 3")
    A("s_and_b32 s18, s18, 15")
    A("s_lshl_b32 s18, s18, 2")
    A("s_add_u32 s17, s17, s18")
    A(f"s_add_u32 s17, s17, {FA}")
    def flag(label, sreg, wave):
        A(f"s_cmp_lg_u32 s20, {wave}")
        A(f"s_cbranch_scc1 {label}")
        A("s_mov_b64 exec, 1")
        A(f"{FLAGOP()} v{VTOK}, v{VZERO}, {W_}, s{sreg} offen sc1")
        A("s_mov_b64 exec, -1")
        A(f"{label}:")
    vm.wait("xn")
    A("s_barrier")
    flag("S_nofa", 17, 0)
    Dacc = 96; T = 112; L = 120; H = 136; t_ = 144
    A("s_waitcnt lgkmcnt(0)")
    def sq():
        for j in range(4): pk("v_pk_mul_f32", t_ + 2*j, T + 2*j, T + 2*j, mods="op_sel_hi:[1,0]")
        for j in range(4): pk("v_pk_fma_f32", T + 2*j, T + 2*j, T + 2*j, t_ + 2*j, mods="op_sel:[1,1,0] op_sel_hi:[0,1,1] neg_lo:[1,0,0]")
    def group(g):
        pj = [P + 4 * (4 * g + j) for j in range(4)]
        for j in range(4): pk("v_pk_mul_f32", t_ + 2*j, pj[j], VN, mods="op_sel_hi:[1,0]")
        for j in range(4): A(f"v_exp_f32 v{t_+2*j}, v{t_+2*j}")
        for j in range(4): A(f"v_fract_f32 v{t_+2*j+1}, v{t_+2*j+1}")
        for j in range(4): A(f"v_cos_f32 v{T+2*j}, v{t_+2*j+1}")
        for j in range(4): A(f"v_sin_f32 v{T+2*j+1}, v{t_+2*j+1}")
        for j in range(4): pk("v_pk_mul_f32", T + 2*j, T + 2*j, t_ + 2*j, mods="op_sel_hi:[1,0]")
        for sgm in range(4):
            for j in range(4): A(f"v_cvt_pk_bf16_f32 v{L+4*sgm+j}, v{T+2*j}, v{T+2*j+1}")
            sq()
        A("s_mov_b32 exec_lo, 0x80008000\ns_mov_b32 exec_hi, 0x80008000")
        for j in range(4): A(f"v_mov_b64 v[{T+2*j}:{T+2*j+1}], v[{ONE2}:{ONE2+1}]")
        A("s_mov_b64 exec, -1")
        for sgm in range(4):
            Hh = H + 4 * (sgm & 1)
            for j in range(4): pk("v_pk_mul_f32", t_ + 2*j, T + 2*j, pj[j] + 2, mods="op_sel_hi:[1,0] neg_hi:[1,0]")
            for j in range(4): pk("v_pk_fma_f32", t_ + 2*j, T + 2*j, pj[j] + 2, t_ + 2*j, mods="op_sel:[1,1,0] op_sel_hi:[0,1,1] neg_lo:[1,0,0] neg_hi:[1,0,0]")
            for j in range(4): A(f"v_cvt_pk_bf16_f32 v{Hh+j}, v{t_+2*j}, v{t_+2*j+1}")
            if sgm < 3: sq()
            d = Dacc + 4 * sgm
            cc = "0" if g == 0 else f"v[{d}:{d+3}]"
            A(f"v_mfma_f32_16x16x32_bf16 v[{d}:{d+3}], v[{L+4*sgm}:{L+4*sgm+3}], v[{Hh}:{Hh+3}], {cc}")
    def sqp():
        for j in range(4): A(f"v_mul_f32 v{t_+2*j}, v{T+2*j+1}, v{T+2*j+1}")
        for j in range(4): A(f"v_mul_f32_e64 v{T+2*j+1}, v{T+2*j}, v{T+2*j+1} mul:2")
        for j in range(4): A(f"v_fma_f32 v{T+2*j}, v{T+2*j}, v{T+2*j}, -v{t_+2*j}")
    def groupp(g):
        pj = [P + 4 * (4 * g + j) for j in range(4)]
        for j in range(4): A(f"v_mul_f32 v{t_+2*j}, v{pj[j]}, v{VN}")
        for j in range(4): A(f"v_mul_f32 v{t_+2*j+1}, v{pj[j]+1}, v{VN}")
        for j in range(4): A(f"v_exp_f32 v{t_+2*j}, v{t_+2*j}")
        for j in range(4): A(f"v_fract_f32 v{t_+2*j+1}, v{t_+2*j+1}")
        for j in range(4): A(f"v_cos_f32 v{T+2*j}, v{t_+2*j+1}")
        for j in range(4): A(f"v_sin_f32 v{T+2*j+1}, v{t_+2*j+1}")
        for j in range(4): A(f"v_mul_f32 v{T+2*j}, v{T+2*j}, v{t_+2*j}")
        for j in range(4): A(f"v_mul_f32 v{T+2*j+1}, v{T+2*j+1}, v{t_+2*j}")
        for sgm in range(4):
            for j in range(4): A(f"v_cvt_pk_bf16_f32 v{L+4*sgm+j}, v{T+2*j}, v{T+2*j+1}")
            sqp()
        A("s_mov_b32 exec_lo, 0x80008000\ns_mov_b32 exec_hi, 0x80008000")
        for j in range(4):
            A(f"v_mov_b32 v{T+2*j}, 1.0")
            A(f"v_mov_b32 v{T+2*j+1}, 0")
        A("s_mov_b64 exec, -1")
        for sgm in range(4):
            Hh = H + 4 * (sgm & 1)
            for j in range(4): A(f"v_mul_f32 v{t_+2*j}, v{pj[j]+3}, v{T+2*j+1}")
            for j in range(4): A(f"v_mul_f32 v{t_+2*j+1}, v{pj[j]+3}, v{T+2*j}")
            for j in range(4): A(f"v_fma_f32 v{t_+2*j}, v{pj[j]+2}, v{T+2*j}, -v{t_+2*j}")
            for j in range(4): A(f"v_fma_f32 v{t_+2*j+1}, -v{pj[j]+2}, v{T+2*j+1}, -v{t_+2*j+1}")
            for j in range(4): A(f"v_cvt_pk_bf16_f32 v{Hh+j}, v{t_+2*j}, v{t_+2*j+1}")
            if sgm < 3: sqp()
            d = Dacc + 4 * sgm
            A(f"v_mfma_f32_16x16x32_bf16 v[{d}:{d+3}], v[{L+4*sgm}:{L+4*sgm+3}], v[{Hh}:{Hh+3}], v[{d}:{d+3}]")
    G = 160
    A("s_lshl_b32 s17, s26, 10")
    A("s_lshl_b32 s18, s20, 8")
    A("s_add_u32 s17, s17, s18")
    A(f"s_add_u32 s17, s17, {WS_STAT}")
    gload = "\n".join(f"buffer_load_dwordx4 v[{G+4*i}:{G+4*i+3}], v{VGR}, {W_}, s17 offen offset:{16*i} sc1" for i in range(4))
    A(gload)
    group(0)
    stamp(A, 4)
    XS = 176
    for c2 in range(2):
        for rd in range(2):
            pass
    A("s_waitcnt vmcnt(0)"); vm.ops = []
    for c2 in range(2):
        for rd in range(2):
            A(f"ds_read_b64_tr_b16 v[{XS+4*c2+2*rd}:{XS+4*c2+2*rd+1}], v{VTR} offset:{32*c2+256*rd}")
    toks = [G + 1 + 2 * i for i in range(8)]
    check(A, toks, VTOK)
    A("s_cbranch_vccz S_st_ok")
    poll_loop(A, "S_st", gload, toks, VTOK, 12)
    stamp(A, 5)
    MM = 184; E = 16
    for i in range(8):
        A(f"v_and_b32 v{MM+2*i}, s19, v{G+2*i}")
        A(f"v_lshlrev_b32 v{MM+2*i+1}, 16, v{G+2*i}")
    for i in range(8): A(f"v_rcp_f32 v{MM+2*i+1}, v{MM+2*i+1}")
    A(f"s_mul_i32 s17, s27, {32*XNT_STRIDE}")
    A("s_lshl_b32 s18, s26, 8")
    A("s_add_u32 s17, s17, s18")
    A("s_lshl_b32 s18, s20, 6")
    A("s_add_u32 s17, s17, s18")
    A(f"s_add_u32 s17, s17, {WS_XNT + 64}")
    A(f"s_add_u32 s18, s17, {16*XNT_STRIDE}")
    A("s_waitcnt lgkmcnt(0)")
    for i in range(4):
        A(f"v_lshlrev_b32 v{E+4*i}, 16, v{XS+i}")
        A(f"v_lshlrev_b32 v{E+4*i+1}, 16, v{XS+4+i}")
        A(f"v_and_b32 v{E+4*i+2}, s19, v{XS+i}")
        A(f"v_and_b32 v{E+4*i+3}, s19, v{XS+4+i}")
    for i in range(8): pk("v_pk_add_f32", E + 2*i, E + 2*i, MM + 2*i, mods="op_sel_hi:[1,0] neg_lo:[0,1] neg_hi:[0,1]")
    for i in range(8): A(f"v_cvt_pk_bf16_f32 v{G+i}, v{E+2*i}, v{E+2*i+1}")
    for i in range(8):
        A(f"v_lshlrev_b32 v{E+2*i}, 16, v{G+i}")
        A(f"v_and_b32 v{E+2*i+1}, s19, v{G+i}")
    for i in range(8): pk("v_pk_mul_f32", E + 2*i, E + 2*i, MM + 2*i, mods="op_sel:[0,1] op_sel_hi:[1,1]")
    for c2 in range(2):
        for i in range(4): A(f"v_cvt_pk_bf16_f32 v{XS+4*c2+i}, v{E+4*i+c2}, v{E+4*i+2+c2}")
    for c2 in range(2):
        A(f"buffer_store_dwordx4 v[{XS+4*c2}:{XS+4*c2+3}], v{VXT}, {W_}, s{17+c2} offen sc1")
    A("s_cmp_lg_u32 s26, 0")
    A("s_cbranch_scc1 S_nopad")
    A("s_cmp_gt_u32 s20, 1")
    A("s_cbranch_scc1 S_nopad")
    A("v_lshrrev_b32 v19, 2, v2")
    A(f"v_mul_u32_u24 v19, {XNT_STRIDE}, v19")
    A("v_and_b32 v18, 3, v2")
    A("v_lshl_add_u32 v19, v18, 4, v19")
    A("s_lshl_b32 s17, s27, 1")
    A("s_add_u32 s17, s17, s20")
    A(f"s_mul_i32 s17, s17, {16*XNT_STRIDE}")
    A(f"s_add_u32 s17, s17, {WS_XNT}")
    for i in range(4): A(f"v_mov_b32 v{20+i}, 0")
    A(f"buffer_store_dwordx4 v[20:23], v19, {W_}, s17 offen sc1")
    A("S_nopad:")
    group(1)
    A("s_lshl_b32 s17, s27, 7")
    A("s_lshl_b32 s18, s26, 2")
    A("s_add_u32 s17, s17, s18")
    A(f"s_add_u32 s17, s17, {FX}")
    A("s_waitcnt vmcnt(0)")
    A("s_barrier")
    flag("S_nofx", 17, 1)
    stamp(A, 6)
    A(f"s_setprio {O.prio_S2}")
    (groupp if O.plain23 else group)(2)
    A("s_lshr_b32 s17, s3, 4")
    A("s_lshl_b32 s17, s17, 7")
    A(f"s_add_u32 s17, s17, {FX}")
    fxload = f"buffer_load_dword v19, v{VFX}, {W_}, s17 offen sc1"
    (groupp if O.plain23 else group)(3)
    stamp(A, 7)
    A(f"s_setprio {O.prio_S3}")
    A(fxload)
    A("s_cmp_eq_u32 s22, 0")
    A("s_cbranch_scc0 S_mh1")
    for mh in range(2):
        if mh == 1: A("S_mh1:")
        keep = [2*mh, 2*mh+1]; send = [2-2*mh, 3-2*mh]
        for j in range(2):
            A(f"ds_write_b128 v{VXS}, v[{Dacc+4*send[j]}:{Dacc+4*send[j]+3}] offset:{1024*j}")
        A("s_waitcnt lgkmcnt(0)")
        A("s_barrier")
        for j in range(2): A(f"ds_read_b128 v[{32+4*j}:{32+4*j+3}], v{VXP} offset:{1024*j}")
        if mh == 0: A(f"ds_read_b32 v40, v{VK0} offset:4")
        A("s_waitcnt lgkmcnt(0)")
        for j in range(2):
            for r in range(4): A(f"v_add_f32 v{32+4*j+r}, v{32+4*j+r}, v{Dacc+4*keep[j]+r}")
            A(f"v_cvt_pk_bf16_f32 v{44+2*j}, v{32+4*j}, v{32+4*j+1}")
            A(f"v_cvt_pk_bf16_f32 v{44+2*j+1}, v{32+4*j+2}, v{32+4*j+3}")
        if mh == 0:
            A("v_add_f32 v40, s15, v40")
            A("v_cvt_pk_bf16_f32 v40, v40, v40")
            A("v_mov_b32 v41, s32")
            A("ds_write_b16 v41, v40 offset:6")
            A(f"ds_write_b64 v{VTB}, v[44:45] offset:8")
            A("s_mov_b32 exec_lo, 0x7f807f80\ns_mov_b32 exec_hi, 0x7f807f80")
            A(f"ds_write_b64 v{VTB}, v[46:47] offset:264")
        else:
            A("s_mov_b32 exec_lo, 0x7f807f80\ns_mov_b32 exec_hi, 0x7f807f80")
            A(f"ds_write_b64 v{VTB}, v[44:45] offset:520")
            A(f"ds_write_b64 v{VTB}, v[46:47] offset:776")
        A("s_mov_b64 exec, -1")
        if mh == 0: A("s_branch S_join")
    A("S_join:")
    A("s_waitcnt vmcnt(0)")
    A(f"v_cmp_ne_u32 vcc, v19, v{VTOK}")
    A("s_cbranch_vccz S_fx_ok")
    poll_loop(A, "S_fx", fxload, [19], VTOK, 12)
    stamp(A, 8)
    UR = 160
    for gi in range(3):
        if gi == 2: A("s_mov_b64 exec, 3")
        A(f"buffer_load_dwordx2 v[{UR+6*gi}:{UR+6*gi+1}], v3, {W_}, s24 offen offset:{1024*gi+8} sc1")
        A(f"buffer_load_dwordx4 v[{UR+6*gi+2}:{UR+6*gi+5}], v3, {W_}, s24 offen offset:{1024*gi+16} sc1")
    A("s_mov_b64 exec, -1")
    A("s_waitcnt lgkmcnt(0)")
    A("s_barrier")
    for i in range(16):
        A(f"ds_read_u16 v{80+i}, v{GA+i}")
        if i == 11: A("s_waitcnt lgkmcnt(4)")
    for jj in range(4):
        b = 80 + 4 * jj
        A(f"s_waitcnt lgkmcnt({[4,4+2,4+4,6][jj] if jj < 3 else 6})" if False else "")
        if jj == 0: A("s_waitcnt lgkmcnt(0)")
        A(f"v_lshl_or_b32 v{96+2*jj}, v{b+2}, 16, v{b+3}")
        A(f"v_lshl_or_b32 v{96+2*jj+1}, v{b}, 16, v{b+1}")
        A(f"ds_write_b64 v{VKW}, v[{96+2*jj}:{96+2*jj+1}] offset:{1024*(3-jj)}")
        A(f"ds_write_b64 v{VKW}, v[{96+2*jj}:{96+2*jj+1}] offset:{KCOPY + 8 + 1024*(3-jj)}")
    for gi in range(3):
        A(f"s_waitcnt vmcnt({4-2*gi})")
        if gi == 2: A("s_mov_b64 exec, 3")
        r = UR + 6 * gi
        t0 = 180 + 12 * (gi & 1)
        for k_ in range(4): A(f"v_alignbyte_b32 v{t0+k_}, v{r+k_+1}, v{r+k_}, 2")
        for k_ in range(4): A(f"v_mov_b32 v{t0+4+k_}, v{r+1+k_}")
        for k_ in range(4): A(f"v_alignbyte_b32 v{t0+8+k_}, v{r+k_+2}, v{r+k_+1}, 2")
        A(f"ds_write_b128 v{VUW}, v[{r+2}:{r+5}] offset:{1024*gi + XNT_STRIDE*3}")
        for sg_ in range(3):
            A(f"ds_write_b128 v{VUW}, v[{t0+4*sg_}:{t0+4*sg_+3}] offset:{1024*gi + XNT_STRIDE*sg_}")
        if gi == 1: A("s_waitcnt lgkmcnt(4)")
    A("s_mov_b64 exec, -1")
    ACC = 32
    FR = [64, 128]
    def rd(buf, ph, i):
        m = i >> 1
        if i & 1 == 0: A(f"ds_read_b128 v[{FR[buf]+4*m}:{FR[buf]+4*m+3}], v{VF} offset:{512*m+64*ph}")
        else: A(f"ds_read_b128 v[{FR[buf]+32+4*m}:{FR[buf]+32+4*m+3}], v{VG} offset:{3584-512*m+64*ph}")
    if O.s_w2:
        srd(A, 8, P_W2, 1792 * 1024)
        A("s_lshr_b32 s17, s3, 3")
        A("s_mul_i32 s17, s17, 57344")
        A("s_mul_i32 s18, s20, 14336")
        A("s_add_u32 s17, s17, s18")
        for i in range(14):
            if i >= O.s_w2_depth: A(f"s_waitcnt vmcnt({O.s_w2_depth-1})")
            A(f"buffer_load_dwordx4 v[{104+4*(i%4)}:{104+4*(i%4)+3}], v3, s[8:11], s17 offen")
            A("s_add_u32 s17, s17, 1024")
        A("s_waitcnt vmcnt(0)")
    if O.use_hint:
        A("s_cmp_lg_u32 s20, 0")
        A("s_cbranch_scc1 S_fg_ok")
        A("s_lshr_b32 s17, s3, 4")
        A("s_lshl_b32 s17, s17, 7")
        A("s_and_b32 s18, s3, 15")
        A("s_lshl_b32 s18, s18, 2")
        A("s_add_u32 s17, s17, s18")
        A(f"s_add_u32 s17, s17, {FG}")
        poll_loop(A, "S_fg", f"buffer_load_dword v19, v{VZERO}, {W_}, s17 offen sc1", [19], VTOK, 12, sleep=8)
    A("s_waitcnt lgkmcnt(0)")
    A("s_barrier")
    stampw(A, 9)
    A(f"s_setprio {O.prio_S2}")
    prods = sorted([(m, e) for m in range(8) for e in range(8) if m + e <= 7], key=lambda p: (max(p), p))
    for i in range(14): rd(0, 0, i)
    seen = set()
    UU = 192
    for ph in range(4):
        buf = ph & 1
        nxt = list(range(16)) if ph < 3 else []
        if ph > 0: A("s_waitcnt lgkmcnt(0)")
        if ph == 3:
            for j in range(4): A(f"ds_read_b64 v[{UU+2*j}:{UU+2*j+1}], v{VUU} offset:{512*j}")
        lasts = -1; issued0 = 14
        for n, (m, e) in enumerate(prods):
            sidx = max(m, e)
            if ph == 0 and sidx != lasts:
                if sidx == 1:
                    for i in (14, 15): rd(0, 0, i)
                    issued0 = 16
                if sidx <= 4: A(f"s_waitcnt lgkmcnt({issued0 - (2*sidx+2)})")
                elif sidx == 5: A("s_waitcnt lgkmcnt(0)")
                lasts = sidx
            c = m + e
            cc = f"v[{ACC+4*c}:{ACC+4*c+3}]" if c in seen else "0"
            seen.add(c)
            A(f"v_mfma_f32_16x16x32_bf16 v[{ACC+4*c}:{ACC+4*c+3}], v[{FR[buf]+4*m}:{FR[buf]+4*m+3}], v[{FR[buf]+32+4*e}:{FR[buf]+32+4*e+3}], {cc}")
            if nxt and (ph > 0 or sidx >= 5):
                cnt = 1 if ph > 0 else 2
                if ph > 0 and n % 2 == 1: cnt = 0
                for _ in range(cnt):
                    if nxt and (16 - len(nxt)) < 15: rd(buf ^ 1, ph + 1, nxt.pop(0))
            if ph == 3:
                if n == 4:
                    A("s_waitcnt lgkmcnt(0)")
                    A("s_lshl_b32 s30, s63, 16")
                    A("s_and_b32 s31, s63, 0xffff0000")
                    A("s_cmp_eq_u32 s21, 0")
                    A("s_cselect_b32 s30, s30, s31")
                if 5 <= n < 13:
                    i = n - 5
                    A(f"v_lshlrev_b32 v{64+2*i}, 16, v{UU+i}")
                    A(f"v_and_b32 v{64+2*i+1}, s19, v{UU+i}")
                if 13 <= n < 21:
                    i = n - 13
                    A(f"v_mul_f32 v{64+2*i}, s30, v{64+2*i}")
                    A(f"v_mul_f32 v{64+2*i+1}, s30, v{64+2*i+1}")
                    A(f"v_cvt_pk_bf16_f32 v{UU+i}, v{64+2*i}, v{64+2*i+1}")
                if 21 <= n < 29:
                    i = n - 21
                    A(f"v_lshlrev_b32 v{64+2*i}, 16, v{UU+i}")
                    A(f"v_and_b32 v{64+2*i+1}, s19, v{UU+i}")
        if nxt:
            A("s_waitcnt lgkmcnt(4)")
            while nxt: rd(buf ^ 1, ph + 1, nxt.pop(0))
    stamp(A, 10)
    A(f"s_setprio {O.prio_S3}")
    A("s_lshl_b32 s17, s23, 12")
    A("s_lshl_b32 s18, s22, 11")
    A("s_add_u32 s17, s17, s18")
    A(f"s_add_u32 s17, s17, {WS_ZP}")
    A("s_cmp_eq_u32 s22, 0")
    A("s_cbranch_scc0 S_e1")
    for hf in range(2):
        if hf == 1: A("S_e1:")
        keep = ACC + 16 * hf; send = ACC + 16 * (1 - hf)
        for c in range(4): A(f"ds_write_b128 v{VXW}, v[{send+4*c}:{send+4*c+3}] offset:{1024*c}")
        A("s_waitcnt lgkmcnt(0)")
        A("s_barrier")
        for c in range(4): A(f"ds_read_b128 v[{80+4*c}:{80+4*c+3}], v{VXR} offset:{1024*c}")
        for c in range(4):
            A(f"s_waitcnt lgkmcnt({3-c})")
            for i in range(4): A(f"v_add_f32 v{80+4*c+i}, v{80+4*c+i}, v{keep+4*c+i}")
        if hf == 0: A("s_branch S_e2")
    A("S_e2:")
    for i in range(8): A(f"v_cvt_pk_bf16_f32 v{96+i}, v{80+2*i}, v{80+2*i+1}")
    for i in range(8):
        A(f"v_lshlrev_b32 v{80+2*i}, 16, v{96+i}")
        A(f"v_and_b32 v{80+2*i+1}, s19, v{96+i}")
    for i in range(16): A(f"v_add_f32 v{80+i}, v{80+i}, v{64+i}")
    for i in range(8): A(f"v_cvt_pk_bf16_f32 v{96+i}, v{80+2*i}, v{80+2*i+1}")
    for c in range(4):
        A(f"buffer_store_dwordx2 v[{96+2*c}:{96+2*c+1}], v{VZ}, {W_}, s17 offen offset:{512*c} sc1")
    A("s_lshl_b32 s17, s3, 2")
    A(f"s_add_u32 s17, s17, {FZ}")
    A("s_waitcnt vmcnt(0)")
    A("s_barrier")
    stamp(A, 11)
    flag("S_nofz", 17, 0)
    if O.s_h:
        A("s_and_b32 s24, s3, 7")
        A("s_lshr_b32 s25, s3, 3")
        A("s_lshl_b32 s17, s24, 1")
        A("s_lshr_b32 s18, s25, 4")
        A("s_add_u32 s17, s17, s18")
        A("s_lshl_b32 s17, s17, 7")
        A("s_and_b32 s18, s25, 3")
        A("s_mul_i32 s18, s18, 7")
        A("s_lshr_b32 s18, s18, 1")
        A("s_lshl_b32 s18, s18, 2")
        A("s_add_u32 s17, s17, s18")
        A(f"s_add_u32 s17, s17, {FH}")
        A(f"v_min_u32 v24, 12, v{VFX}")
        poll_loop(A, "S_ph", f"buffer_load_dword v19, v24, {W_}, s17 offen sc1", [19], VTOK, 12, sleep=4)
        A(f"s_mul_i32 s17, s24, {896*1024}")
        A(f"s_mul_i32 s18, s25, {28*1024}")
        A("s_add_u32 s17, s17, s18")
        A(f"s_mul_i32 s18, s20, {7*1024}")
        A("s_add_u32 s17, s17, s18")
        A(f"s_add_u32 s17, s17, {WS_H}")
        for i in range(7):
            A(f"buffer_load_dwordx4 v[{104+4*i}:{104+4*i+3}], v3, {W_}, s17 offen sc1")
            A("s_add_u32 s17, s17, 1024")
    A("s_cmp_lg_u32 s20, 1")
    A("s_cbranch_scc1 S_fin")
    A("s_cmp_lg_u32 s3, 0")
    A("s_cbranch_scc1 S_fin")
    A(f"s_mov_b32 s17, {FH}")
    A("v_lshrrev_b32 v24, 2, v2")
    A("v_lshlrev_b32 v24, 7, v24")
    A("v_and_b32 v25, 3, v2")
    A("v_lshl_add_u32 v24, v25, 4, v24")
    poll_loop(A, "S_fs", f"buffer_load_dwordx4 v[20:23], v24, {W_}, s17 offen sc1", [20, 21, 22, 23], VTOK, 12, sleep=16)
    A(f"s_mov_b32 s17, {EPOCH}")
    A("s_mov_b64 exec, 1")
    A(f"buffer_store_dword v{VTOK}, v{VZERO}, {W_}, s17 offen sc1")
    A("s_mov_b64 exec, -1")
    A("S_fin:")
    stamp_out(A, 12)
    A("s_endpgm")

def gen_C(A):
    vm = VM(A)
    A("C_role:")
    if O.setprio_C: A(f"s_setprio {O.setprio_C}")
    XS_ = 16896
    A(f"""
v_lshrrev_b32 v1, 6, v0
v_and_b32 v2, 63, v0
v_readfirstlane_b32 s20, v1       ; w
s_and_b32 s21, s2, 7              ; xcd
s_lshr_b32 s22, s2, 3             ; idx 0..31
s_lshr_b32 s23, s21, 1
s_lshl_b32 s23, s23, 2
s_and_b32 s24, s22, 3
s_add_u32 s23, s23, s24           ; rb
s_lshl_b32 s33, s24, 1            ; 2r
s_and_b32 s24, s21, 1
s_mul_i32 s24, s24, 7
s_lshr_b32 s25, s22, 2            ; c
s_add_u32 s24, s24, s25           ; ct
s_lshr_b32 s29, s21, 2
s_add_u32 s33, s33, s29
s_and_b32 s96, s33, {7 if O.rot1 else 0}
v_lshlrev_b32 v3, 4, v2           ; lane*16
v_lshrrev_b32 v7, 4, v2
v_and_b32 v6, 15, v2
v_lshlrev_b32 v8, 2, v7
v_xor_b32 v6, v6, v8
v_lshlrev_b32 v6, 4, v6
v_mul_u32_u24 v8, 3584, v7
v_add_u32 v6, v6, v8
s_mul_i32 s27, s20, {16*3584}
s_lshl_b32 s28, s24, 8
s_add_u32 s27, s27, s28
s_lshl_b32 s28, s20, 12           ; w*4096
v_and_b32 v9, 31, v2              ; lr
v_lshrrev_b32 v7, 5, v2           ; h
s_waitcnt lgkmcnt(0)
s_load_dword s{TOK}, s[{P_WS}:{P_WS+1}], {EPOCH}
""")
    srd(A, WSRD, P_WS, WS_BYTES)
    srd(A, 8, P_W1, 512 * 3584)
    srd(A, 12, P_U, 2048 * 1024)
    srd(A, 16, P_W2, 1792 * 1024)
    NS = 28; RS_ = 10; HD = O.hd; NRA = O.nra
    A(f"""
s_lshl_b32 s36, s21, 2
s_and_b32 s37, s22, 3
s_add_u32 s36, s36, s37
s_lshr_b32 s37, s22, 2            ; dtb
s_mul_i32 s38, s37, 7
s_lshr_b32 s38, s38, 1
s_and_b32 s29, s22, 3
s_mul_i32 s29, s29, 7
s_add_u32 s38, s38, s29
s_sub_u32 s29, s38, 28
s_cmp_ge_u32 s38, 28
s_cmov_b32 s38, s29
s_and_b32 s38, s38, {31 if O.rot2 else 0}
v_lshrrev_b32 v4, 3, v2
v_and_b32 v5, 7, v2
v_bfe_u32 v8, v2, 4, 1
v_lshlrev_b32 v8, 2, v8
v_xor_b32 v5, v5, v8
v_lshlrev_b32 v5, 4, v5
v_lshl_add_u32 v4, v4, 10, v5
s_mul_i32 s39, s20, {28*16*1024}
s_lshl_b32 s29, s37, 7
s_add_u32 s39, s39, s29           ; w2 start
s_add_u32 s40, s39, {28*16384}    ; w2 end
s_lshl_b32 s29, s38, 14
s_add_u32 s41, s39, s29           ; w2 cur
s_lshl_b32 s30, s20, 11
""")
    A(f"""
s_lshr_b32 s29, s20, 1
s_lshl_b32 s29, s29, 5
s_lshl_b32 s34, s36, 6
s_add_u32 s34, s34, s29
s_lshl_b32 s34, s34, 10
s_lshl_b32 s29, s37, 7
s_add_u32 s34, s34, s29
s_and_b32 s29, s20, 1
s_lshl_b32 s29, s29, 6
s_add_u32 s34, s34, s29
v_lshlrev_b32 v8, 10, v9
v_lshl_add_u32 v8, v7, 3, v8
""")
    for g in range(4):
        vm.op(f"buffer_load_dwordx2 v[{18+2*g}:{18+2*g+1}], v8, s[12:15], s34 offen offset:{16*g} {O.xe_fl}", "x")
    SL = [9, 0, 1, 2, 3, 4, 5, 6, 7, 8]
    def dma_w2(st):
        sl = SL[st % RS_]
        for j in range(2):
            A(f"s_add_u32 m0, s30, {sl*8192 + 1024*j}")
            if j: A("s_add_u32 s29, s41, 8192")
            vm.op(f"buffer_load_dwordx4 v4, s[16:19], {'s29' if j else 's41'} offen {O.w2_fl} lds", f"w{st}")
        A("s_add_u32 s41, s41, 16384")
        A("s_cmp_eq_u32 s41, s40")
        A("s_cmov_b32 s41, s39")
    def g2_setup():
        A(f"""
s_mul_i32 s42, s36, 224
s_mul_i32 s29, s20, 28
s_add_u32 s42, s42, s29
s_lshl_b32 s42, s42, 10
s_add_u32 s42, s42, {WS_H}        ; h start
s_add_u32 s43, s42, {28*1024}     ; h end
s_lshl_b32 s29, s38, 10
s_add_u32 s48, s42, s29           ; h cur
v_add_u32 v5, {112*1024}, v3      ; h voffset t=1
s_and_b32 s31, s20, 1
s_lshr_b32 s32, s20, 1
s_lshl_b32 s33, s36, 6
s_lshl_b32 s34, s32, 5
s_add_u32 s33, s33, s34
s_lshl_b32 s34, s37, 6
s_lshl_b32 s35, s31, 5
s_add_u32 s34, s34, s35           ; d base
s_lshl_b32 s35, s33, 10
s_lshl_b32 s29, s34, 1
s_add_u32 s94, s35, s29
s_lshl_b32 s95, s34, 12
s_lshl_b32 s29, s33, 1
s_add_u32 s95, s95, s29
s_add_u32 s95, s95, {WS_ZP}
v_lshrrev_b32 v28, 2, v2
v_and_b32 v10, 3, v2
v_lshlrev_b32 v10, 4, v10
v_lshl_add_u32 v28, v28, 12, v10
v_bfe_u32 v10, v2, 2, 2
v_and_b32 v11, 3, v2
v_bfe_u32 v12, v2, 4, 1
v_lshl_add_u32 v13, v7, 2, v10
v_lshlrev_b32 v13, 7, v13
v_lshl_add_u32 v13, v12, 5, v13
v_lshl_add_u32 v13, v11, 3, v13
v_add_u32 v13, s30, v13
v_lshrrev_b32 v10, 1, v10
v_lshl_add_u32 v14, v10, 6, v13
v_xor_b32 v10, 1, v10
v_lshl_add_u32 v15, v10, 6, v13
v_add_u32 v16, 0x10000, v14
v_add_u32 v17, 0x10000, v15
s_lshr_b32 s45, s36, 1
s_lshl_b32 s45, s45, 7
s_add_u32 s45, s45, {FH}
s_lshl_b32 s46, s37, 7
s_add_u32 s46, s46, {FZ}
v_lshlrev_b32 v29, 2, v9
s_mul_i32 s29, s20, 7
s_lshr_b32 s29, s29, 1
s_lshl_b32 s29, s29, 2
v_min_u32 v30, 12, v29
v_add_u32 v30, s29, v30
v_bfe_u32 v10, v2, 2, 2
v_lshl_add_u32 v10, v7, 2, v10    ; 4h + r
v_lshlrev_b32 v10, 6, v10
v_lshl_add_u32 v10, v12, 5, v10
v_lshl_add_u32 v10, v11, 3, v10
v_add_u32 v12, s30, v10
v_add_u32 v13, 0x10000, v12
v_add_u32 v10, s30, v3
v_add_u32 v11, 0x10000, v10
v_lshlrev_b32 v8, 10, v9
v_lshl_add_u32 v8, v7, 4, v8
""")
        ZSL_ = SL[18 % RS_]
        free_ = [sl for sl in range(RS_) if sl != ZSL_][:8]
        for half, reg in ((0, 6), (1, 31)):
            A(f"s_mov_b32 s29, {free_[half]*8192}")
            for w_ in range(1, 4):
                A(f"s_cmp_eq_u32 s20, {w_}")
                A(f"s_cmov_b32 s29, {free_[2*w_+half]*8192}")
            A(f"s_mov_b32 s{92+half}, s29")
    def token_and_started(track):
        A("s_waitcnt lgkmcnt(0)")
        A(f"s_mul_i32 s{TOK}, s{TOK}, 0x9e3779b1")
        A(f"s_add_u32 s{TOK}, s{TOK}, 0x7f4a7c15")
        A(f"v_mov_b32 v26, s{TOK}")
        A("v_mov_b32 v27, 0")
        A("s_lshr_b32 s97, s2, 4")
        A("s_lshl_b32 s97, s97, 7")
        A("s_and_b32 s29, s2, 15")
        A("s_lshl_b32 s29, s29, 2")
        A("s_add_u32 s97, s97, s29")
        A(f"s_add_u32 s97, s97, {FG}")
        if track: return
        A("s_cmp_lg_u32 s20, 1")
        A("s_cbranch_scc1 C_noidf")
        A("s_sub_u32 s34, s22, 28")
        A("s_lshl_b32 s34, s34, 3")
        A("s_add_u32 s34, s34, s21")
        A("s_lshr_b32 s29, s34, 1")
        A("s_lshl_b32 s29, s29, 7")
        A("s_and_b32 s34, s34, 1")
        A("s_lshl_b32 s34, s34, 2")
        A("s_add_u32 s34, s34, s29")
        A(f"s_add_u32 s34, s34, {FH + 56}")
        A("s_mov_b64 exec, 1")
        A(f"buffer_store_dword v26, v27, s[{WSRD}:{WSRD+3}], s34 offen sc1")
        A(f"buffer_store_dword v26, v27, s[{WSRD}:{WSRD+3}], s97 offen sc1")
        A("s_mov_b64 exec, -1")
        A("C_noidf:")
    def warm_w2():
        A("s_sub_u32 s34, s22, 28")
        A("s_lshl_b32 s34, s34, 2")
        A("s_add_u32 s34, s34, s20")
        A(f"s_mul_i32 s34, s34, {112*1024}")
        A(f"s_add_u32 s35, s34, {112*1024}")
        A(f"s_mul_i32 s29, s21, {14*1024}")
        A("s_add_u32 s33, s34, s29")
        A("s_lshl_b32 s29, s20, 10")
        A(f"s_add_u32 m0, s29, {4*XS_}")
        A("s_mov_b32 s32, 0")
        A("C_warm:")
        for i in range(2):
            A(f"s_waitcnt vmcnt({O.warm_depth-1})")
            A("buffer_load_dwordx4 v3, s[16:19], s33 offen lds")
            A("s_add_u32 s33, s33, 1024")
        A("s_cmp_eq_u32 s33, s35")
        A("s_cmov_b32 s33, s34")
        A("s_add_u32 s32, s32, 1")
        A(f"s_cmp_lt_u32 s32, {O.warm_n}")
        A("s_cbranch_scc1 C_warm")
    A("s_cmp_ge_u32 s22, 28")
    A("s_cbranch_scc1 C_idle")
    def dma_w(st):
        A(f"s_add_u32 s29, s96, {st}")
        A("s_and_b32 s29, s29, 7")
        A(f"s_mul_i32 s31, s29, {64*3584}")
        A("s_add_u32 s31, s31, s27")
        for j in range(4):
            A(f"s_add_u32 m0, s28, {(st % 5)*16384 + 1024*j}")
            if j: A(f"s_add_u32 s31, s31, {4*3584}")
            if O.w1depth and len(vm.ops) >= O.w1depth:
                A(f"s_waitcnt vmcnt({O.w1depth-1})"); vm.ops = vm.ops[-(O.w1depth-1):]
            vm.op(f"buffer_load_dwordx4 v6, s[8:11], s31 offen {O.w1_fl} lds", f"a{st}")
    for st in range(2): dma_w(st)
    g2_setup()
    for st in range(2, 5): dma_w(st)
    stamp(A, 2)
    A(f"""
v_bfe_u32 v40, v2, 2, 2           ; r
v_and_b32 v41, 3, v2              ; c
v_bfe_u32 v42, v2, 4, 1           ; g16
v_lshl_add_u32 v43, v7, 3, v40
v_lshlrev_b32 v43, 8, v43
v_lshl_add_u32 v43, v42, 5, v43
v_lshl_add_u32 v43, v41, 3, v43
v_xor_b32 v44, s20, v40
v_lshl_add_u32 v44, v44, 6, v43
v_add_u32 v45, 0x10000, v44
v_xor_b32 v46, v9, v7
s_lshl_b32 s29, s96, 3
v_add_u32 v46, s29, v46
v_add_u32 v47, 32, v46
v_and_b32 v46, 63, v46
v_and_b32 v47, 63, v47
v_lshlrev_b32 v46, 4, v46
v_lshlrev_b32 v47, 4, v47
v_lshl_add_u32 v46, v7, 10, v46
v_lshl_add_u32 v47, v7, 10, v47
v_lshrrev_b32 v48, 1, v9
v_mul_u32_u24 v48, 1056, v48
v_and_b32 v50, 1, v9
v_lshl_add_u32 v48, v50, 9, v48
v_xor_b32 v50, v50, v7
v_lshl_add_u32 v48, v50, 4, v48
s_lshl_b32 s26, s23, 17
s_lshl_b32 s29, s20, 13
s_add_u32 s26, s26, s29
s_add_u32 s26, s26, {WS_XN}
s_mul_i32 s32, s20, {4*1056}
s_lshl_b32 s35, s23, 7
s_add_u32 s35, s35, {FA}
v_and_b32 v49, 15, v2
v_lshlrev_b32 v49, 2, v49
s_mul_i32 s34, s23, 448
s_lshl_b32 s29, s24, 3
s_add_u32 s34, s34, s29
s_lshl_b32 s29, s20, 1
s_add_u32 s34, s34, s29
s_lshl_b32 s34, s34, 10
s_add_u32 s49, s34, {WS_H}
""")
    token_and_started(True)
    W = 64
    for st in range(8):
        vm.wait(f"a{st}")
        if st: A("s_waitcnt lgkmcnt(0)")
        A("s_barrier")
        if st == 0: stampw(A, 3)
        for ks in range(4):
            for rd in range(2):
                sl = st % 5
                A(f"ds_read_b64_tr_b16 v[{W+16*st+4*ks+2*rd}:{W+16*st+4*ks+2*rd+1}], v{44 if sl < 4 else 45} offset:{(sl&3)*16384+4096*ks+1024*rd}")
        if st >= 1 and st + 4 < 8: dma_w(st + 4)
    A("s_waitcnt lgkmcnt(0)")
    stamp(A, 4)
    if O.stop == 1:
        for i in range(5, 12): stamp(A, i)
        stamp_out(A, 12); A("s_endpgm")
    A("s_cmp_lg_u32 s20, 0")
    A("s_cbranch_scc1 C_fa_ok")
    poll_loop(A, "C_fa", f"buffer_load_dword v31, v49, s[{WSRD}:{WSRD+3}], s35 offen sc1", [31], 26, 29)
    A("s_barrier")
    stamp(A, 5)
    def tile_off(t, dst, mul, base):
        A(f"s_add_u32 s29, s25, {t}")
        A("s_and_b32 s29, s29, 3")
        A(f"s_mul_i32 s{dst}, s29, {mul}")
        A(f"s_add_u32 s{dst}, s{dst}, s{base}")
    def dma_x(sg, i):
        t, hf = sg >> 1, sg & 1
        if i == 0: tile_off(t, 31, 32768, 26)
        else: A("s_add_u32 s31, s31, 2048")
        A(f"s_add_u32 m0, s32, {(sg & 3)*XS_ + 1056*i}")
        vm.op(f"buffer_load_dwordx4 v{46+hf}, s[{WSRD}:{WSRD+3}], s31 offen sc1 lds", f"x{sg}")
    for sg in range(4):
        for i in range(4): dma_x(sg, i)
    AC = [192, 208]; BF = 224; OP = 240
    def epi_ops(t):
        d = AC[t & 1]
        ops = [f"v_max_f32 v{d+r}, 0, v{d+r}" for r in range(16)]
        ops += [f"v_cvt_pk_bf16_f32 v{OP+i}, v{d+2*i}, v{d+2*i+1}" for i in range(8)]
        return ops
    def epi_store(t):
        tile_off(t, 44, 112 * 1024, 49)
        for e in range(2):
            vm.op(f"buffer_store_dwordx4 v[{OP+4*e}:{OP+4*e+3}], v3, s[{WSRD}:{WSRD+3}], s44 offen offset:{1024*e} sc1", "hst")
    w2next = 0
    def rdB(n):
        sg_, i_ = n >> 4, n & 15
        A(f"ds_read_b128 v[{BF+4*(n&3)}:{BF+4*(n&3)+3}], v48 offset:{(sg_&3)*XS_+32*i_}")
    vm.wait("x0")
    A("s_barrier")
    stampw(A, 6)
    for n in range(3): rdB(n)
    side = []; dm = []
    for n in range(128):
        sg, i = n >> 4, n & 15
        t, hf = sg >> 1, sg & 1
        if i == 0 and hf == 0 and t >= 1:
            if not O.x_noepi: side += [("v", o) for o in epi_ops(t - 1)] + [("st", t - 1)]
        if O.g1stamps and n in (32, 64, 96): stampw(A, 7 + n // 32)
        if n == O.hint_at:
            A("s_cmp_lg_u32 s20, 1")
            A("s_cbranch_scc1 C_nohint")
            A("s_mov_b64 exec, 1")
            A(f"{FLAGOP()} v26, v27, s[{WSRD}:{WSRD+3}], s97 offen sc1")
            A("s_mov_b64 exec, -1")
            A("C_nohint:")
        if i == 13:
            if sg + 1 < 8: vm.wait(f"x{sg+1}")
            if not O.x_nobar: A("s_barrier")
            if sg >= 1 and sg + 3 < 8: dm += [("x", sg + 3, k_) for k_ in range(4)]
            nw2 = O.w2_in_g1.get(sg, 0)
            dm += [("w2", w2next + k_) for k_ in range(nw2)]; w2next += nw2
        if O.x_nord: pass
        elif n + 3 < 128:
            rdB(n + 3); A("s_waitcnt lgkmcnt(3)")
        else: A(f"s_waitcnt lgkmcnt({127 - n})")
        d = AC[t & 1]; wreg = W + 4 * (16 * hf + i)
        cc = "0" if (hf == 0 and i == 0) else f"v[{d}:{d+15}]"
        A(f"v_mfma_f32_32x32x16_bf16 v[{d}:{d+15}], v[{wreg}:{wreg+3}], v[{BF+4*(n&3)}:{BF+4*(n&3)+3}], {cc}")
        if dm and (n % 2 == 1 or n >= 125):
            x = dm.pop(0)
            if O.x_nodma: pass
            elif x[0] == "x": dma_x(x[1], x[2])
            else: dma_w2(x[1])
        elif i >= 3 or hf == 1:
            for _ in range(3):
                if side:
                    k_, o = side.pop(0)
                    if k_ == "v": A(o)
                    else:
                        epi_store(o); break
    assert not side and not dm, (side, dm)
    stamp(A, 7)
    if O.stop == 2:
        for i in range(11 if O.g1stamps else 8, 12): stamp(A, i)
        stamp_out(A, 12); A("s_endpgm")
    for o in epi_ops(3): A(o)
    epi_store(3)
    A("s_barrier")
    for st in range(w2next, min(RS_, w2next + O.pre_pub)): dma_w2(st)
    w2next = min(RS_, w2next + O.pre_pub)
    A("s_lshl_b32 s29, s23, 7")
    A("s_lshl_b32 s34, s24, 2")
    A("s_add_u32 s29, s29, s34")
    A(f"s_add_u32 s50, s29, {FH}")
    vm.wait("hst")
    A("s_barrier")
    A("s_cmp_lg_u32 s20, 0")
    A("s_cbranch_scc1 C_nopub")
    A("s_mov_b64 exec, 1")
    A(f"{FLAGOP()} v26, v27, s[{WSRD}:{WSRD+3}], s50 offen sc1")
    A("s_mov_b64 exec, -1")
    A("C_nopub:")
    stamp(A, 8)
    for st in range(w2next, RS_): dma_w2(st)
    g1_ops = list(vm.ops)
    A("s_branch C_g2")
    A("C_idle:")
    if O.idle_exit: A("s_endpgm")
    g2_setup()
    token_and_started(False)
    if O.warm_delay:
        A("s_lshl_b32 s35, s23, 7")
        A(f"s_add_u32 s35, s35, {FA}")
        A("v_and_b32 v49, 15, v2")
        A("v_lshlrev_b32 v49, 2, v49")
        A("s_cmp_lg_u32 s20, 0")
        A("s_cbranch_scc1 C_fi_ok")
        poll_loop(A, "C_fi", f"buffer_load_dword v31, v49, s[{WSRD}:{WSRD+3}], s35 offen sc1", [31], 26, 29, sleep=O.fi_sleep)
        A("s_barrier")
        stamp(A, 2)
    if O.warm_w2:
        warm_w2()
        A("s_waitcnt vmcnt(0)")
        A("s_barrier")
    for st in range(RS_): dma_w2(st)
    A("s_waitcnt vmcnt(0)")
    vm.ops = g1_ops
    if O.stamps:
        for i in range(3, 9): stamp(A, i)
    A("C_g2:")
    srd(A, 8, P_OUT, 2048 * 1024)
    ACC = 32
    RA = 96
    HR = RA + 8 * NRA
    assert HR + 8 * HD <= 256
    def areg(st): return RA + 8 * (st % NRA)
    def rdA2(st):
        sl = SL[st % RS_]; dst = areg(st)
        for u in range(2):
            for rd in range(2):
                A(f"ds_read_b64_tr_b16 v[{dst+4*u+2*rd}:{dst+4*u+2*rd+1}], v{(14 if sl < 8 else 16)+u} offset:{(sl&7)*8192+1024*rd}")
    def ld_h(st, t):
        sl = st % HD
        vm.op(f"buffer_load_dwordx4 v[{HR+8*sl+4*t}:{HR+8*sl+4*t+3}], v{3 if t == 0 else 5}, s[{WSRD}:{WSRD+3}], s48 offen {O.h_fl}", f"h{st}")
        if t == 1:
            A("s_add_u32 s48, s48, 1024")
            A("s_cmp_eq_u32 s48, s43")
            A("s_cmov_b32 s48, s42")
    XR = 18
    hflag = f"buffer_load_dword v31, v30, s[{WSRD}:{WSRD+3}], s45 offen sc1"
    wnext = RS_
    for st in range(NRA):
        vm.wait(f"w{st}")
        rdA2(st)
        if st >= 1:
            A("s_waitcnt lgkmcnt(4)")
            dma_w2(wnext); wnext += 1
        if st == O.hf_issue: vm.op(hflag, "hf")
    A("s_waitcnt lgkmcnt(0)")
    dma_w2(wnext); wnext += 1
    stamp(A, 9)
    vm.wait("hf")
    A("v_cmp_ne_u32 vcc, v31, v26")
    A("s_cbranch_vccz C_fh_ok")
    poll_loop(A, "C_fh", hflag, [31], 26, 29)
    stamp(A, 10)
    for st in range(HD):
        for t in range(2): ld_h(st, t)
    zflag = f"buffer_load_dword v31, v29, s[{WSRD}:{WSRD+3}], s46 offen sc1"
    TAIL = 4
    assert HD >= TAIL
    T1 = RA + 8 * 12; T2 = RA + 8 * 14; ZR = RA
    assert NS - NRA <= 12
    rnext = NRA
    ZSL = SL[18 % RS_]
    A("s_mov_b32 s47, 0xffff0000")
    def mf(st, t, u):
        af = areg(st); sl = st % HD
        d = ACC + 16 * (2 * t + u)
        cc = "0" if st == 0 else f"v[{d}:{d+15}]"
        A(f"v_mfma_f32_32x32x16_bf16 v[{d}:{d+15}], v[{af+4*u}:{af+4*u+3}], v[{HR+8*sl+4*t}:{HR+8*sl+4*t+3}], {cc}")
    lds_pending = False
    for st in range(NS - TAIL):
        vm.wait(f"h{st}")
        if lds_pending:
            A("s_waitcnt lgkmcnt(0)"); lds_pending = False
            if wnext < NS and wnext - RS_ < rnext:
                dma_w2(wnext); wnext += 1
        n = 0
        for t in range(2):
            for u in range(2):
                mf(st, t, u); n += 1
                if n == 2 and st + HD < NS: ld_h(st + HD, 0)
                if n == 4 and st + HD < NS: ld_h(st + HD, 1)
        if rnext < NS and rnext - NRA <= st - 1:
            vm.wait(f"w{rnext}")
            rdA2(rnext); rnext += 1; lds_pending = True
        if O.g2stamps and st in (3, 7, 11, 15, 19, 23): stampw(A, 2 + (st >> 2))
        if st == O.zf_issue and not O.nozf: vm.op(zflag, "zf")
        if st == O.zf_check and not O.nozf:
            vm.wait("zf")
            A("v_cmp_ne_u32 vcc, v31, v26")
            A("s_cbranch_vccz C_fz_ok")
            poll_loop(A, "C_fz", zflag, [31], 26, 29)
        if st == NS - TAIL - 1:
            for j in range(2):
                A(f"s_add_u32 m0, s30, {ZSL*8192 + 1024*j}")
                if j: A("s_add_u32 s95, s95, 65536")
                vm.op(f"buffer_load_dwordx4 v28, s[{WSRD}:{WSRD+3}], s95 offen sc1 lds", "z")
    assert wnext == NS and rnext == NS, (wnext, rnext)
    free = [sl for sl in range(RS_) if sl != ZSL][:8]
    vm.wait(f"h{NS-1}")
    side = []
    for i in range(8):
        side += [f"v_lshlrev_b32 v{T1+2*i}, 16, v{XR+i}", f"v_and_b32 v{T1+2*i+1}, s47, v{XR+i}"]
    zops = []
    for i in range(8):
        zops += [f"v_lshlrev_b32 v{T2+2*i}, 16, v{ZR+i}", f"v_and_b32 v{T2+2*i+1}, s47, v{ZR+i}"]
    zops += [f"v_pk_add_f32 v[{T1+i}:{T1+i+1}], v[{T1+i}:{T1+i+1}], v[{T2+i}:{T2+i+1}]" for i in range(0, 16, 2)]
    zops += [f"v_cvt_pk_bf16_f32 v{XR+i}, v{T1+2*i}, v{T1+2*i+1}" for i in range(8)]
    for i in range(8):
        zops += [f"v_lshlrev_b32 v{T1+2*i}, 16, v{XR+i}", f"v_and_b32 v{T1+2*i+1}, s47, v{XR+i}"]
    def wr(q, i):
        sl = free[2 * q + (i >> 1)]
        d = ACC + 16 * q + 4 * i
        A(f"ds_write_b128 v{10 if sl < 8 else 11}, v[{d}:{d+3}] offset:{(sl&7)*8192 + 1024*(i&1)}")
    for q in range(4):
        t, u = q >> 1, q & 1
        for k_, st in enumerate(range(NS - TAIL, NS)):
            mf(st, t, u)
            for _ in range(5):
                if side: A(side.pop(0))
            if q >= 1 and k_ >= 2:
                wr(q - 1, 2 * (k_ - 2)); wr(q - 1, 2 * (k_ - 2) + 1)
    while side: A(side.pop(0))
    stamp(A, 11)
    for i in range(4): wr(3, i)
    A("v_add_u32 v6, s92, v3")
    A("v_add_u32 v4, s93, v3")
    vm.wait("z")
    for g in range(4):
        A(f"ds_read_b64_tr_b16 v[{ZR+2*g}:{ZR+2*g+1}], v{12 if ZSL < 8 else 13} offset:{(ZSL&7)*8192 + 512*g}")
    A("s_waitcnt lgkmcnt(0)")
    A("s_barrier")
    for src in range(4):
        for i in range(4):
            d = ACC + 16 * src + 4 * i
            A(f"ds_read_b128 v[{d}:{d+3}], v{6 if i < 2 else 4} offset:{src*2048 + 1024*(i&1)}")
        if src == 2:
            for o in zops: A(o)
            A("s_waitcnt lgkmcnt(4)")
    for i in range(0, 16, 2):
        A(f"v_pk_add_f32 v[{ACC+i}:{ACC+i+1}], v[{ACC+i}:{ACC+i+1}], v[{ACC+16+i}:{ACC+17+i}]")
    A("s_waitcnt lgkmcnt(0)")
    for i in range(0, 16, 2):
        A(f"v_pk_add_f32 v[{ACC+32+i}:{ACC+33+i}], v[{ACC+32+i}:{ACC+33+i}], v[{ACC+48+i}:{ACC+49+i}]")
    for i in range(0, 16, 2):
        A(f"v_pk_add_f32 v[{ACC+i}:{ACC+i+1}], v[{ACC+i}:{ACC+i+1}], v[{ACC+32+i}:{ACC+33+i}]")
    for i in range(8): A(f"v_cvt_pk_bf16_f32 v{ZR+i}, v{ACC+2*i}, v{ACC+2*i+1}")
    for i in range(8):
        A(f"v_lshlrev_b32 v{T2+2*i}, 16, v{ZR+i}")
        A(f"v_and_b32 v{T2+2*i+1}, s47, v{ZR+i}")
    for i in range(0, 16, 2):
        A(f"v_pk_add_f32 v[{T1+i}:{T1+i+1}], v[{T1+i}:{T1+i+1}], v[{T2+i}:{T2+i+1}]")
    OUTR = ACC
    for i in range(8): A(f"v_cvt_pk_bf16_f32 v{OUTR+i}, v{T1+2*i}, v{T1+2*i+1}")
    for p in range(2):
        A(f"v_permlane32_swap_b32 v{OUTR+4*p}, v{OUTR+4*p+2}")
        A(f"v_permlane32_swap_b32 v{OUTR+4*p+1}, v{OUTR+4*p+3}")
    for p in range(2):
        A(f"buffer_store_dwordx4 v[{OUTR+4*p}:{OUTR+4*p+3}], v8, s[8:11], s94 offen offset:{32*p} {O.out_fl}")
    stamp_out(A, 12)
    A("s_endpgm")

def build(path, **opts):
    for k_, v_ in opts.items(): setattr(O, k_, v_)
    A = Asm()
    A.begin_kernel(K)
    stamp(A, 0, real=True); stamp(A, 1)
    if O.dbgtime: A("s_memrealtime s[64:65]\ns_memtime s[66:67]")
    A(f"""
s_cmp_ge_u32 s2, 512
s_cbranch_scc1 K_done
s_load_dwordx16 s[36:51], s[0:1], 0
s_load_dwordx8 s[52:59], s[0:1], 64
s_load_dwordx2 s[60:61], s[0:1], 96
{'s_xor_b32 s2, s2, 256' if O.sfirst else ''}
s_cmp_ge_u32 s2, 256
s_cbranch_scc1 {'K_done' if O.only == 'C' else 'S_role'}
{'s_branch K_done' if O.only == 'S' else ''}
""")
    gen_C(A)
    gen_S(A)
    A("K_done:")
    A("s_endpgm")
    A.end_kernel(K, vgpr=256, sgpr=102, ieee=False)
    A.lines, n = hazard.fix(A.lines)
    hdr = open("cdna_kernels/" + NAME + ".s.ref").read().split("; Override launch")[0]
    txt = A.text(hdr + "; @launch grid=(512,1,1) block=(256,1,1) lds=81920\n")
    open(path, "w").write(txt)
    return n

if __name__ == "__main__":
    print("nops", build("mega.s", stamps=False))
    build("mega_st.s", stamps=True, fi_sleep=2)
    O.fi_sleep = 16
    build("v1.s", stamps=False, out_fl='')
    build("v2.s", stamps=False, out_fl='sc1')
    build("v3.s", stamps=False, out_fl='nt')
    build("v4.s", stamps=False, out_fl='sc0 sc1')
    build("v5.s", stamps=False, out_fl='', plain23=False)
```

```python
from gen import *
import hazard, sys

WS_XNT = 0x200000
XNT_STRIDE = 4160
KIMG_STRIDE = 9216
KCOPY = 4640
WS_ZP = 0xA00000
WS_H = 0xC00000
WS_STAT = 0x0
WS_FLG = 0x10000
FX, FH, FZ, FS, EPOCH, FA = WS_FLG, WS_FLG + 0x1000, WS_FLG + 0x2000, WS_FLG + 0x3000, WS_FLG + 0x4000, WS_FLG + 0x5000
WS_XN = 0x1400000
FG = WS_FLG + 0x6000
WS_BYTES = 0x10000000
WS_STAMP = 0x2000000
LOG2E = 0x3fb8aa3b
INV2PI = 0x3e22f983
SPIN_MAX = 200000
K = NAME + "_kernel"

P_U, P_LAR, P_AIM, P_CRE, P_CIM, P_LDT, P_DSK = 36, 38, 40, 42, 44, 46, 48
P_W1, P_W2, P_OUT, P_DBG, P_WS = 52, 54, 56, 58, 60
TOK = 62
WSRD = 4

class Opt:
    stamps = False
    x_fl = ""
    w1_fl = ""
    w2_fl = ""
    rot1 = True
    rot2 = True
    warm_w2 = True
    hd = 4
    bf_dist = 3
    wsoff = 0
    w1depth0 = 7
    w1sw = 3
    h_lead = 0
    dbl = ''
    scramble = False
    prio_S4 = 3
    prio_Sc = 0
    plain3 = False
    fa_sleep = 12
    fa_issue = 4
    fa_check = 6
    x_pre = 0
    s9_at = 1
    last_rd = 0
    last_dma = 0
    prio_S1 = 0
    prio_Sx = 0
    s_exit = 0
    no_xn = False
    no_xnt = False
    no_xsl = False
    xt_at = -1
    fi_sleep = 16
    out_fl = 'nt'
    nozf = False
    s_w2 = False
    s_w2_depth = 4
    s_h = False
    pre_pub = 2
    pretouch = False
    w2_in_g1 = {1: 1, 5: 2, 6: 1, 7: 2}
    spin = SPIN_MAX
    g1stamps = False
    hint_at = 80
    use_hint = False
    x_nodma = False
    x_noepi = False
    x_nobar = False
    x_nord = False
    dbgtime = False
    flag_atomic = True
    warm_delay = True
    xe_fl = ''
    pub_at = 4
    hf_issue = 13
    hf_check = 15
    prio_S3 = 0
    warm_depth = 8
    warm_n = 40
    sfirst = True
    par_fl = 'nt'
    xsl_fl = 'nt'
    zf_issue = 16
    zf_check = 20
    h_fl = 'sc1'
    nojit = False
    g2stamps = False
    plain23 = True
    prio_S2 = 0
    w1depth = 7
    x8_fl = 'nt'
    stop = 0
    idle_exit = False
    nra = 16
    only = ''
    setprio_S = 3
    setprio_C = 1
O = Opt()

def FLAGOP(): return 'buffer_atomic_swap' if O.flag_atomic else 'buffer_store_dword'
def stamp(A, i, real=False):
    if O.stamps:
        A(f"{'s_memrealtime' if real else 's_memtime'} s[{64+2*i}:{65+2*i}]")
def stampw(A, i):
    if O.stamps:
        A("s_waitcnt lgkmcnt(0)"); stamp(A, i); A("s_waitcnt lgkmcnt(0)")
def stamp_out(A, n):
    if O.dbgtime:
        lb = A.newlabel("DT")
        A("s_and_b32 s72, s2, 127")
        A("s_cmp_lg_u32 s72, 5")
        A(f"s_cbranch_scc1 {lb}")
        A("s_cmp_lg_u32 s20, 0")
        A(f"s_cbranch_scc1 {lb}")
        A("s_waitcnt vmcnt(0) lgkmcnt(0)")
        A("s_memtime s[68:69]")
        A("s_memrealtime s[70:71]")
        A("s_waitcnt lgkmcnt(0)")
        A("s_sub_u32 s68, s68, s66")
        A("s_sub_u32 s73, s70, s64")
        A("s_lshr_b32 s72, s2, 7")
        A("s_lshl_b32 s72, s72, 4")
        A("s_mov_b64 exec, 1")
        A("v_mov_b32 v1, s72")
        for i, r in enumerate((64, 70, 68, 73)):
            A(f"v_mov_b32 v2, s{r}")
            A(f"global_store_dword v1, v2, s[{P_DBG}:{P_DBG+1}] offset:{4*i}")
        A("s_waitcnt vmcnt(0)")
        A(f"{lb}:")
    if not O.stamps: return
    A("s_mov_b64 exec, -1")
    A("s_waitcnt vmcnt(0) lgkmcnt(0)")
    stamp(A, n); stamp(A, n + 1, real=True)
    A("s_waitcnt lgkmcnt(0)")
    A("v_lshrrev_b32 v1, 6, v0")
    A(f"s_mul_i32 s100, s2, 256")
    A(f"s_add_u32 s100, s100, {WS_STAMP}")
    A("v_lshlrev_b32 v1, 6, v1")
    A("v_add_u32 v1, s100, v1")
    for i in range(n + 2):
        A(f"v_mov_b32 v2, s{64+2*i}")
        A(f"global_store_dword v1, v2, s[{P_WS}:{P_WS+1}] offset:{4*i}")
    A("s_waitcnt vmcnt(0)")

def srd(A, d, p, nbytes):
    A(f"s_mov_b32 s{d}, s{p}")
    A(f"s_mov_b32 s{d+1}, s{p+1}")
    A(f"s_mov_b32 s{d+2}, {nbytes}")
    A(f"s_mov_b32 s{d+3}, 0x00020000")

def dpp_sum(A, regs):
    for ctl in ("row_shr:1 row_mask:0xf", "row_shr:2 row_mask:0xf", "row_shr:4 row_mask:0xf", "row_shr:8 row_mask:0xf",
                "row_bcast:15 row_mask:0xa", "row_bcast:31 row_mask:0xc"):
        for r in regs:
            bc = " bound_ctrl:0" if "shr" in ctl else ""
            A(f"v_add_f32_dpp v{r}, v{r}, v{r} {ctl} bank_mask:0xf{bc}")

def bf16_round(A, dst, src):
    A(f"v_cvt_pk_bf16_f32 v{dst}, v{src}, v{src}")
    A(f"v_lshlrev_b32 v{dst}, 16, v{dst}")

class VM:
    def __init__(self, A): self.A = A; self.ops = []
    def op(self, txt, tag): self.A(txt); self.ops.append(tag)
    def wait(self, *tags):
        idx = max((i for i, t in enumerate(self.ops) if t in tags), default=-1)
        if idx < 0: return
        n = len(self.ops) - 1 - idx
        assert n <= 63, n
        self.A(f"s_waitcnt vmcnt({n})")
        self.ops = self.ops[idx + 1:]
    def drain(self):
        self.A("s_waitcnt vmcnt(0)"); self.ops = []

class LG:
    def __init__(self, A): self.A = A; self.ops = []
    def op(self, txt, tag): self.A(txt); self.ops.append(tag)
    def wait(self, *tags):
        idx = max((i for i, t in enumerate(self.ops) if t in tags), default=-1)
        if idx < 0: return
        n = min(len(self.ops) - 1 - idx, 15)
        self.A(f"s_waitcnt lgkmcnt({n})")
        self.ops = self.ops[len(self.ops) - n:] if n else []
    def drain(self):
        self.A("s_waitcnt lgkmcnt(0)"); self.ops = []

def poll_loop(A, name, load, cmp_regs, tokv, cnt, sleep=2):
    A(f"s_mov_b32 s{cnt}, 0")
    A(f"{name}_poll:")
    A(load)
    A(f"s_add_u32 s{cnt}, s{cnt}, 1")
    A("s_waitcnt vmcnt(0)")
    check(A, cmp_regs, tokv)
    A(f"s_cbranch_vccz {name}_ok")
    A(f"s_cmp_gt_u32 s{cnt}, {0 if (O.only == 'C' and name in ('C_fa','C_fz','C_fi')) or (O.only == 'S' and name in ('S_fs', 'S_fg', 'S_ph')) else O.spin}")
    A(f"s_cbranch_scc1 {name}_ok")
    A(f"s_sleep {sleep}")
    A(f"s_branch {name}_poll")
    A(f"{name}_ok:")

def check(A, regs, tokv, tmp=None):
    if len(regs) == 1:
        A(f"v_cmp_ne_u32 vcc, v{regs[0]}, v{tokv}")
        return
    t = tmp if tmp is not None else 255
    A(f"v_xor_b32 v{t}, v{regs[0]}, v{tokv}")
    for r in regs[1:]:
        A(f"v_xor_b32 v{t-1}, v{r}, v{tokv}")
        A(f"v_or_b32 v{t}, v{t}, v{t-1}")
    A(f"v_cmp_ne_u32 vcc, 0, v{t}")

def gen_S(A):
    UB = 0; USZ = 17408
    KB = 2 * USZ + 64
    PAR = KB + 2 * KIMG_STRIDE
    XCH = PAR + 4352
    TBL = XCH + 8192 + 64
    XSL = TBL + 2 * 1344
    assert XSL + 8192 <= 81920
    XB = PAR
    assert XB + 16384 <= 81920
    W_ = f"s[{WSRD}:{WSRD+3}]"
    vm = VM(A)
    A("S_role:")
    if O.s_exit == 2: A("s_endpgm")
    if O.setprio_S: A(f"s_setprio {O.setprio_S}")
    A(f"""
s_sub_u32 s3, s2, 256            ; b
v_lshrrev_b32 v1, 6, v0          ; wave
v_and_b32 v2, 63, v0             ; lane
v_readfirstlane_b32 s20, v1
s_lshr_b32 s21, s20, 1           ; ch
s_and_b32 s22, s20, 1
s_lshl_b32 s23, s3, 1
s_add_u32 s23, s23, s21          ; d
s_and_b32 s24, s3, 7             ; xcd
s_lshr_b32 s25, s3, 3            ; j
s_lshl_b32 s16, s24, 8
s_lshl_b32 s17, s25, 3
s_add_u32 s16, s16, s17          ; LN r0
s_lshl_b32 s17, s20, 1
s_add_u32 s16, s16, s17
s_lshl_b32 s18, s16, 10
s_lshl_b32 s26, s24, 1
s_lshr_b32 s27, s25, 4
s_add_u32 s26, s26, s27
s_and_b32 s27, s25, 15           ; sl
v_lshlrev_b32 v3, 4, v2          ; lane*16
v_lshrrev_b32 v4, 2, v2
v_and_b32 v5, 3, v2
v_lshlrev_b32 v5, 4, v5
v_lshl_add_u32 v4, v4, 10, v5
s_lshl_b32 s28, s26, 17
s_lshl_b32 s29, s20, 15
s_add_u32 s28, s28, s29
s_lshl_b32 s29, s27, 6
s_add_u32 s28, s28, s29
s_lshl_b32 s29, s20, 11
s_add_u32 s29, s29, {XSL}
s_lshl_b32 s30, s23, 8
s_lshl_b32 s31, s22, 7
s_add_u32 s30, s30, s31
v_lshlrev_b32 v6, 1, v2
v_add_u32 v6, s30, v6
s_lshl_b32 s31, s23, 1
v_mov_b32 v7, s31
s_lshl_b32 s19, s3, 2
s_waitcnt lgkmcnt(0)
s_add_u32 s{P_WS}, s{P_WS}, {O.wsoff}
s_addc_u32 s{P_WS+1}, s{P_WS+1}, 0
s_load_dword s{TOK}, s[{P_WS}:{P_WS+1}], {EPOCH}
s_load_dword s63, s[{P_DSK}:{P_DSK+1}], s19
""")
    srd(A, 8, P_U, 2048 * 1024)
    srd(A, WSRD, P_WS, WS_BYTES - O.wsoff)
    vm.op(f"buffer_load_dwordx4 v[8:11], v3, s[8:11], s18 offen {O.x8_fl}", "x8")
    vm.op(f"buffer_load_dwordx4 v[12:15], v3, s[8:11], s18 offen offset:1024 {O.x8_fl}", "x8")
    for i, p in enumerate((P_LAR, P_AIM, P_CRE, P_CIM)):
        vm.op(f"global_load_ushort v{60+i}, v6, s[{p}:{p+1}] {O.par_fl}", "par")
    vm.op(f"global_load_ushort v64, v7, s[{P_LDT}:{P_LDT+1}]", "par")
    for j in range(2):
        A(f"s_add_u32 m0, s29, {1024*j}")
        A(f"s_add_u32 s31, s28, {16384*j}")
        if not O.no_xsl: vm.op(f"buffer_load_dwordx4 v4, s[8:11], s31 offen {O.xsl_fl} lds", "xsl")
    if O.pretouch:
        A("v_lshlrev_b32 v250, 20, v2")
        A("s_mov_b32 exec_lo, 0x3fffff\ns_mov_b32 exec_hi, 0")
        vm.op(f"buffer_load_dword v251, v250, {W_}, 0 offen offset:2048 nt", "pt")
        A("s_mov_b64 exec, 3")
        vm.op(f"global_load_dword v252, v250, s[{P_OUT}:{P_OUT+1}] nt", "pt")
        vm.op(f"global_load_dword v253, v250, s[{P_W2}:{P_W2+1}] nt", "pt")
        A("s_mov_b64 exec, -1")
    VN, VKQ, VI = 204, 205, 206
    VPW, VPR, VGR, VTR, VXT = 207, 208, 209, 210, 211
    VXS, VXP, VK0, VTB, VKZ, VKW, VFX, VUW = 212, 213, 214, 215, 216, 217, 218, 219
    VF, VG, VUU, VZ, VXW, VXR, VTOK, VZERO = 220, 221, 222, 223, 224, 225, 226, 227
    ONE2 = 228
    GA = 232
    A(f"""
s_mov_b32 s19, 0xffff0000
s_mov_b32 s12, {LOG2E}
s_mov_b32 s13, {INV2PI}
s_mul_i32 s14, s20, 1088
s_add_u32 s14, s14, {PAR}
v_lshrrev_b32 v{VKQ}, 4, v2
v_and_b32 v{VI}, 15, v2
v_lshl_add_u32 v{VPW}, v{VKQ}, 4, v3
v_add_u32 v{VPW}, s14, v{VPW}
v_mul_u32_u24 v{VPR}, 272, v{VKQ}
v_add_u32 v{VPR}, s14, v{VPR}
v_add_u32 v20, 1, v{VI}
v_cvt_f32_u32 v{VN}, v20
v_lshlrev_b32 v{VGR}, 6, v{VKQ}
v_bfe_u32 v21, v2, 2, 2
v_lshl_add_u32 v21, v{VKQ}, 3, v21
v_lshlrev_b32 v21, 6, v21
v_and_b32 v22, 3, v2
v_lshl_add_u32 v21, v22, 3, v21
v_add_u32 v{VTR}, s29, v21
v_mul_u32_u24 v{VXT}, {XNT_STRIDE}, v{VI}
v_lshl_add_u32 v{VXT}, v{VKQ}, 4, v{VXT}
s_lshl_b32 s28, s20, 11
s_add_u32 s28, s28, {XCH}
v_add_u32 v{VXS}, s28, v3
s_xor_b32 s28, s20, 1
s_lshl_b32 s28, s28, 11
s_add_u32 s28, s28, {XCH}
v_add_u32 v{VXP}, s28, v3
s_lshl_b32 s28, s20, 3
s_add_u32 s28, s28, {XCH+8192}
v_mov_b32 v{VK0}, s28
v_xor_b32 v248, 8, v{VK0}
v_and_b32 v20, 15, v20
v_lshlrev_b32 v20, 5, v20
v_lshl_add_u32 v20, v{VKQ}, 3, v20
s_mul_i32 s32, s21, 1344
s_add_u32 s32, s32, {TBL}
v_add_u32 v{VTB}, s32, v20
s_mul_i32 s33, s21, {USZ}
s_mul_i32 s34, s21, {KIMG_STRIDE}
s_add_u32 s34, s34, {KB}
v_and_b32 v27, 127, v0                ; tau
v_lshlrev_b32 v30, 3, v27
v_add_u32 v{VKZ}, s34, v30
v_sub_u32 v30, 1008, v30
v_add_u32 v{VKW}, s34, v30
v_lshlrev_b32 v{VFX}, 2, v{VI}
s_mul_i32 s35, s22, {130*16}
s_add_u32 s28, s35, s33
v_add_u32 v{VUW}, s28, v3
s_mul_i32 s24, s23, {XNT_STRIDE}
s_add_u32 s24, s24, s35
s_add_u32 s24, s24, {WS_XNT}          ; U src
v_and_b32 v20, 3, v2
v_bfe_u32 v21, v2, 2, 2
v_mul_u32_u24 v20, {XNT_STRIDE}, v20
v_add_u32 v21, v21, v{VKQ}
v_lshl_add_u32 v20, v21, 4, v20
s_lshl_b32 s31, s22, 8
s_add_u32 s28, s33, s31
v_add_u32 v{VF}, s28, v20
v_and_b32 v21, 1, v2
v_bfe_u32 v22, v2, 1, 3
v_mul_u32_u24 v20, {KCOPY}, v21
v_lshl_add_u32 v20, v{VKQ}, 4, v20
v_lshlrev_b32 v23, 6, v22
v_sub_u32 v20, v20, v23
s_add_u32 s28, s34, s31
s_add_u32 s28, s28, 448
v_add_u32 v{VG}, s28, v20
v_lshlrev_b32 v23, 5, v22
v_lshl_add_u32 v23, v21, 2, v23
v_lshl_add_u32 v23, v{VKQ}, 3, v23    ; P0
v_lshlrev_b32 v{VZ}, 1, v23
s_lshl_b32 s28, s22, 11
s_add_u32 s28, s28, s33
s_add_u32 s28, s28, {3*XNT_STRIDE + 48}
v_add_u32 v{VUU}, s28, v{VZ}
s_lshl_b32 s28, s20, 12
s_add_u32 s28, s28, {XB}
v_add_u32 v{VXW}, s28, v3
s_xor_b32 s28, s20, 1
s_lshl_b32 s28, s28, 12
s_add_u32 s28, s28, {XB}
v_add_u32 v{VXR}, s28, v3
v_mov_b32 v{VZERO}, 0
v_mov_b32 v{ONE2}, 1.0
v_mov_b32 v{ONE2+1}, 0
v_mov_b32 v230, 0
v_mov_b32 v231, 0
v_lshlrev_b32 v4, 2, v27
s_sub_u32 s28, s32, {2*(0x4280-3)}
s_mov_b32 s31, 0xffff
""")
    AD = 66
    for jj in range(4):
        for e in range(4): A(f"v_add_u32 v{AD+4*jj+e}, {512*jj+e}, v4")
    for i in range(16): A(f"v_cvt_f32_u32 v{GA+i}, v{AD+i}")
    for i in range(0, 16, 2): A(f"v_cvt_pk_bf16_f32 v{GA+i}, v{GA+i}, v{GA+i+1}")
    for i in range(0, 16, 2):
        A(f"v_lshrrev_b32 v{GA+i+1}, 16, v{GA+i}")
        A(f"v_and_b32 v{GA+i}, s31, v{GA+i}")
    for e in range(4):
        A(f"v_min_u32 v{AD+e}, 128, v{AD+e}")
        A(f"v_add_u32 v{AD+e}, 0x4280, v{AD+e}")
        A(f"v_max_u32 v{GA+e}, v{GA+e}, v{AD+e}")
    for i in range(16): A(f"v_lshl_add_u32 v{GA+i}, v{GA+i}, 1, s28")
    A("v_cmp_gt_u32 vcc, 69, v27")
    A("s_and_saveexec_b64 s[30:31], vcc")
    A(f"ds_write_b64 v{VKZ}, v[230:231] offset:4088")
    A("s_mov_b64 exec, -1")
    A("v_cmp_gt_u32 vcc, 56, v27")
    A("s_and_saveexec_b64 s[30:31], vcc")
    A(f"ds_write_b64 v{VKZ}, v[230:231] offset:8736")
    A("s_mov_b64 exec, -1")
    A("v_mov_b32 v40, 0x3b000000")
    A("s_waitcnt lgkmcnt(0)")
    A(f"s_mul_i32 s{TOK}, s{TOK}, 0x9e3779b1")
    A(f"s_add_u32 s{TOK}, s{TOK}, 0x7f4a7c15")
    A(f"v_mov_b32 v{VTOK}, s{TOK}")
    A(f"v_mov_b32 v41, s{TOK}")
    A(f"v_mov_b32 v43, s{TOK}")
    A("s_lshl_b32 s17, s16, 3")
    A(f"s_add_u32 s17, s17, {WS_STAT}")
    A(f"s_add_u32 s18, s18, {WS_XN}")
    A("v_mov_b32 v39, 0x3b000000")
    vm.wait("x8")
    stamp(A, 2)
    X = [16, 24]; Dd = [44, 52]; S = [32, 33]; M = [34, 36]; V = [35, 37]
    def pk(op, d, a_, b_, c_=None, mods=""):
        if c_ is None: A(f"{op} v[{d}:{d+1}], v[{a_}:{a_+1}], v[{b_}:{b_+1}] {mods}")
        else: A(f"{op} v[{d}:{d+1}], v[{a_}:{a_+1}], v[{b_}:{b_+1}], v[{c_}:{c_+1}] {mods}")
    for r in range(2):
        for i in range(4):
            A(f"v_lshlrev_b32 v{X[r]+2*i}, 16, v{8+4*r+i}")
            A(f"v_and_b32 v{X[r]+2*i+1}, s19, v{8+4*r+i}")
    for r in range(2): pk("v_pk_add_f32", Dd[r], X[r], X[r] + 2)
    for r in range(2): pk("v_pk_add_f32", Dd[r] + 2, X[r] + 4, X[r] + 6)
    for r in range(2): pk("v_pk_add_f32", Dd[r], Dd[r], Dd[r] + 2)
    for r in range(2): A(f"v_add_f32 v{S[r]}, v{Dd[r]}, v{Dd[r]+1}")
    dpp_sum(A, S)
    for r in range(2): A(f"v_readlane_b32 s{30+r}, v{S[r]}, 63")
    for r in range(2): A(f"v_mul_f32 v{M[r]}, s{30+r}, v39")
    for i in range(0, 8, 2):
        for r in range(2): pk("v_pk_add_f32", Dd[r] + i, X[r] + i, M[r], mods="op_sel_hi:[1,0] neg_lo:[0,1] neg_hi:[0,1]")
    for r in range(2): pk("v_pk_mul_f32", 8 + 4 * r, Dd[r], Dd[r])
    for i in range(2, 8, 2):
        for r in range(2): pk("v_pk_fma_f32", 8 + 4 * r, Dd[r] + i, Dd[r] + i, 8 + 4 * r)
    for r in range(2): A(f"v_add_f32 v{S[r]}, v{8+4*r}, v{9+4*r}")
    dpp_sum(A, S)
    for r in range(2): A(f"v_readlane_b32 s{30+r}, v{S[r]}, 63")
    for r in range(2): bf16_round(A, M[r], M[r])
    for r in range(2): A(f"v_mul_f32 v{V[r]}, s{30+r}, v39")
    for r in range(2): bf16_round(A, V[r], V[r])
    for r in range(2): A(f"v_add_f32 v{V[r]}, 0x3727c5ac, v{V[r]}")
    for r in range(2): bf16_round(A, V[r], V[r])
    for r in range(2): A(f"v_sqrt_f32 v{V[r]}, v{V[r]}")
    for i in range(0, 8, 2):
        for r in range(2): pk("v_pk_add_f32", Dd[r] + i, X[r] + i, M[r], mods="op_sel_hi:[1,0] neg_lo:[0,1] neg_hi:[0,1]")
    for r in range(2): A(f"v_cvt_pk_bf16_f32 v{40+2*r}, v{V[r]}, v{M[r]}")
    A("s_mov_b64 exec, 1")
    vm.op(f"buffer_store_dwordx4 v[40:43], v{VZERO}, {W_}, s17 offen sc1", "stat")
    A("s_mov_b64 exec, -1")
    for r in range(2): A(f"v_lshlrev_b32 v{V[r]}, 16, v{40+2*r}")
    for r in range(2): A(f"v_rcp_f32 v{V[r]}, v{V[r]}")
    for r in range(2):
        for i in range(4): A(f"v_cvt_pk_bf16_f32 v{8+4*r+i}, v{Dd[r]+2*i}, v{Dd[r]+2*i+1}")
    for r in range(2):
        for i in range(4):
            A(f"v_lshlrev_b32 v{Dd[r]+2*i}, 16, v{8+4*r+i}")
            A(f"v_and_b32 v{Dd[r]+2*i+1}, s19, v{8+4*r+i}")
    for i in range(0, 8, 2):
        for r in range(2): pk("v_pk_mul_f32", Dd[r] + i, Dd[r] + i, M[r], mods="op_sel:[0,1] op_sel_hi:[1,1]")
    for r in range(2):
        for i in range(4): A(f"v_cvt_pk_bf16_f32 v{8+4*r+i}, v{Dd[r]+2*i}, v{Dd[r]+2*i+1}")
    if not O.no_xn:
        vm.op(f"buffer_store_dwordx4 v[8:11], v3, {W_}, s18 offen sc1", "xn")
        vm.op(f"buffer_store_dwordx4 v[12:15], v3, {W_}, s18 offen offset:1024 sc1", "xn")
    stamp(A, 3)
    if O.s_exit == 1: A("s_endpgm")
    vm.wait("par")
    for i in range(5): A(f"v_lshlrev_b32 v{60+i}, 16, v{60+i}")
    A("v_mul_f32 v60, s12, v60\nv_mul_f32 v64, s12, v64\nv_exp_f32 v60, v60\nv_exp_f32 v64, v64")
    bf16_round(A, 60, 60); bf16_round(A, 64, 64)
    A("""
v_max_f32 v21, |v62|, |v63|
v_mul_f32 v16, v60, v64
v_mul_f32 v17, v61, v64
v_mul_f32 v16, s12, v16
v_sub_f32 v16, 0, v16
v_mul_f32 v17, s13, v17
v_mov_b32 v20, v62
""")
    for ctl in ("row_shr:1 row_mask:0xf", "row_shr:2 row_mask:0xf", "row_shr:4 row_mask:0xf", "row_shr:8 row_mask:0xf",
                "row_bcast:15 row_mask:0xa", "row_bcast:31 row_mask:0xc"):
        bc = " bound_ctrl:0" if "shr" in ctl else ""
        A(f"v_max_f32_dpp v21, v21, v21 {ctl} bank_mask:0xf{bc}")
        A(f"v_add_f32_dpp v20, v20, v20 {ctl} bank_mask:0xf{bc}")
    A("v_readlane_b32 s14, v21, 63")
    A("v_readlane_b32 s15, v20, 63")
    A("v_frexp_exp_i32_f32 v22, s14")
    A("v_sub_u32 v23, 0, v22")
    A("v_ldexp_f32 v18, v62, v23")
    A("v_ldexp_f32 v19, v63, v23")
    A(f"ds_write_b128 v{VPW}, v[16:19]")
    A("v_add_f32 v200, v64, v64")
    A("v_mov_b32 v201, v22")
    A("v_mov_b32 v21, s15")
    A(f"ds_write_b64 v{VK0}, v[21:22]".replace("v[21:22]", "v[202:203]") if False else "v_mov_b32 v202, s15")
    A("v_mov_b32 v203, v22")
    A(f"ds_write_b64 v{VK0}, v[202:203]")
    A("s_waitcnt lgkmcnt(0)")
    P = 32
    for m in range(16):
        A(f"ds_read_b128 v[{P+4*m}:{P+4*m+3}], v{VPR} offset:{16*m}")
        if m == 7: A("s_waitcnt lgkmcnt(4)")
    A("s_lshr_b32 s17, s16, 7")
    A("s_lshl_b32 s17, s17, 7")
    A("s_lshr_b32 s18, s16, 3")
    A("s_and_b32 s18, s18, 15")
    A("s_lshl_b32 s18, s18, 2")
    A("s_add_u32 s17, s17, s18")
    A(f"s_add_u32 s17, s17, {FA}")
    def flag(label, sreg, wave):
        A(f"s_cmp_lg_u32 s20, {wave}")
        A(f"s_cbranch_scc1 {label}")
        A("s_mov_b64 exec, 1")
        A(f"{FLAGOP()} v{VTOK}, v{VZERO}, {W_}, s{sreg} offen sc1")
        A("s_mov_b64 exec, -1")
        A(f"{label}:")
    vm.wait("xn")
    A("s_barrier")
    flag("S_nofa", 17, 0)
    A(f"s_setprio {O.prio_S1}")
    Dacc = 96; T = 112; L = 120; H = 136; t_ = 144
    A("ds_read_b64 v[250:251], v248")
    A("s_waitcnt lgkmcnt(0)")
    A("v_max_i32 v249, v251, v201")
    A("v_add_f32 v250, v250, v202")
    A("v_sub_u32 v251, 0, v249")
    A("v_ldexp_f32 v250, v250, v251")
    A("v_sub_u32 v201, v201, v249")
    A("v_ldexp_f32 v249, v200, v249")
    A("v_mov_b32 v248, v201")
    def sq():
        for j in range(4): pk("v_pk_mul_f32", t_ + 2*j, T + 2*j, T + 2*j, mods="op_sel_hi:[1,0]")
        for j in range(4): pk("v_pk_fma_f32", T + 2*j, T + 2*j, T + 2*j, t_ + 2*j, mods="op_sel:[1,1,0] op_sel_hi:[0,1,1] neg_lo:[1,0,0]")
    def group(g):
        pj = [P + 4 * (4 * g + j) for j in range(4)]
        for j in range(4): pk("v_pk_mul_f32", t_ + 2*j, pj[j], VN, mods="op_sel_hi:[1,0]")
        for j in range(4): A(f"v_exp_f32 v{t_+2*j}, v{t_+2*j}")
        for j in range(4): A(f"v_fract_f32 v{t_+2*j+1}, v{t_+2*j+1}")
        for j in range(4): A(f"v_cos_f32 v{T+2*j}, v{t_+2*j+1}")
        for j in range(4): A(f"v_sin_f32 v{T+2*j+1}, v{t_+2*j+1}")
        for j in range(4): pk("v_pk_mul_f32", T + 2*j, T + 2*j, t_ + 2*j, mods="op_sel_hi:[1,0]")
        for sgm in range(4):
            for j in range(4): A(f"v_cvt_pk_f16_f32 v{L+4*sgm+j}, v{T+2*j}, v{T+2*j+1}")
            sq()
        A("s_mov_b32 exec_lo, 0x80008000\ns_mov_b32 exec_hi, 0x80008000")
        for j in range(4): A(f"v_mov_b64 v[{T+2*j}:{T+2*j+1}], v[{ONE2}:{ONE2+1}]")
        A("s_mov_b64 exec, -1")
        for sgm in range(4):
            Hh = H + 4 * (sgm & 1)
            for j in range(4): pk("v_pk_mul_f32", t_ + 2*j, T + 2*j, pj[j] + 2, mods="op_sel_hi:[1,0] neg_hi:[1,0]")
            for j in range(4): pk("v_pk_fma_f32", t_ + 2*j, T + 2*j, pj[j] + 2, t_ + 2*j, mods="op_sel:[1,1,0] op_sel_hi:[0,1,1] neg_lo:[1,0,0] neg_hi:[1,0,0]")
            for j in range(4): A(f"v_cvt_pk_f16_f32 v{Hh+j}, v{t_+2*j}, v{t_+2*j+1}")
            if sgm < 3: sq()
            d = Dacc + 4 * sgm
            cc = "0" if g == 0 else f"v[{d}:{d+3}]"
            A(f"v_mfma_f32_16x16x32_f16 v[{d}:{d+3}], v[{L+4*sgm}:{L+4*sgm+3}], v[{Hh}:{Hh+3}], {cc}")
    def sqp():
        for j in range(4): A(f"v_mul_f32 v{t_+2*j}, v{T+2*j+1}, v{T+2*j+1}")
        for j in range(4): A(f"v_mul_f32_e64 v{T+2*j+1}, v{T+2*j}, v{T+2*j+1} mul:2")
        for j in range(4): A(f"v_fma_f32 v{T+2*j}, v{T+2*j}, v{T+2*j}, -v{t_+2*j}")
    def groupp(g):
        pj = [P + 4 * (4 * g + j) for j in range(4)]
        for j in range(4): A(f"v_mul_f32 v{t_+2*j}, v{pj[j]}, v{VN}")
        for j in range(4): A(f"v_mul_f32 v{t_+2*j+1}, v{pj[j]+1}, v{VN}")
        for j in range(4): A(f"v_exp_f32 v{t_+2*j}, v{t_+2*j}")
        for j in range(4): A(f"v_fract_f32 v{t_+2*j+1}, v{t_+2*j+1}")
        for j in range(4): A(f"v_cos_f32 v{T+2*j}, v{t_+2*j+1}")
        for j in range(4): A(f"v_sin_f32 v{T+2*j+1}, v{t_+2*j+1}")
        for j in range(4): A(f"v_mul_f32 v{T+2*j}, v{T+2*j}, v{t_+2*j}")
        for j in range(4): A(f"v_mul_f32 v{T+2*j+1}, v{T+2*j+1}, v{t_+2*j}")
        for sgm in range(4):
            for j in range(4): A(f"v_cvt_pk_f16_f32 v{L+4*sgm+j}, v{T+2*j}, v{T+2*j+1}")
            sqp()
        A("s_mov_b32 exec_lo, 0x80008000\ns_mov_b32 exec_hi, 0x80008000")
        for j in range(4):
            A(f"v_mov_b32 v{T+2*j}, 1.0")
            A(f"v_mov_b32 v{T+2*j+1}, 0")
        A("s_mov_b64 exec, -1")
        for sgm in range(4):
            Hh = H + 4 * (sgm & 1)
            for j in range(4): A(f"v_mul_f32 v{t_+2*j}, v{pj[j]+3}, v{T+2*j+1}")
            for j in range(4): A(f"v_mul_f32 v{t_+2*j+1}, v{pj[j]+3}, v{T+2*j}")
            for j in range(4): A(f"v_fma_f32 v{t_+2*j}, v{pj[j]+2}, v{T+2*j}, -v{t_+2*j}")
            for j in range(4): A(f"v_fma_f32 v{t_+2*j+1}, -v{pj[j]+2}, v{T+2*j+1}, -v{t_+2*j+1}")
            for j in range(4): A(f"v_cvt_pk_f16_f32 v{Hh+j}, v{t_+2*j}, v{t_+2*j+1}")
            if sgm < 3: sqp()
            d = Dacc + 4 * sgm
            A(f"v_mfma_f32_16x16x32_f16 v[{d}:{d+3}], v[{L+4*sgm}:{L+4*sgm+3}], v[{Hh}:{Hh+3}], v[{d}:{d+3}]")
    G = 160
    A("s_lshl_b32 s17, s26, 10")
    A("s_lshl_b32 s18, s20, 8")
    A("s_add_u32 s17, s17, s18")
    A(f"s_add_u32 s17, s17, {WS_STAT}")
    gload = "\n".join(f"buffer_load_dwordx4 v[{G+4*i}:{G+4*i+3}], v{VGR}, {W_}, s17 offen offset:{16*i} sc1" for i in range(4))
    A(gload)
    group(0)
    stamp(A, 4)
    A(f"s_setprio {O.prio_Sx}")
    XS = 176
    for c2 in range(2):
        for rd in range(2):
            pass
    A("s_waitcnt vmcnt(0)"); vm.ops = []
    for c2 in range(2):
        for rd in range(2):
            A(f"ds_read_b64_tr_b16 v[{XS+4*c2+2*rd}:{XS+4*c2+2*rd+1}], v{VTR} offset:{32*c2+256*rd}")
    toks = [G + 1 + 2 * i for i in range(8)]
    check(A, toks, VTOK)
    A("s_cbranch_vccz S_st_ok")
    poll_loop(A, "S_st", gload, toks, VTOK, 12)
    stamp(A, 5)
    MM = 184; E = 16
    for i in range(8):
        A(f"v_and_b32 v{MM+2*i}, s19, v{G+2*i}")
        A(f"v_lshlrev_b32 v{MM+2*i+1}, 16, v{G+2*i}")
    for i in range(8): A(f"v_rcp_f32 v{MM+2*i+1}, v{MM+2*i+1}")
    A(f"s_mul_i32 s17, s27, {32*XNT_STRIDE}")
    A("s_lshl_b32 s18, s26, 8")
    A("s_add_u32 s17, s17, s18")
    A("s_lshl_b32 s18, s20, 6")
    A("s_add_u32 s17, s17, s18")
    A(f"s_add_u32 s17, s17, {WS_XNT + 64}")
    A(f"s_add_u32 s18, s17, {16*XNT_STRIDE}")
    A("s_waitcnt lgkmcnt(0)")
    for i in range(4):
        A(f"v_lshlrev_b32 v{E+4*i}, 16, v{XS+i}")
        A(f"v_lshlrev_b32 v{E+4*i+1}, 16, v{XS+4+i}")
        A(f"v_and_b32 v{E+4*i+2}, s19, v{XS+i}")
        A(f"v_and_b32 v{E+4*i+3}, s19, v{XS+4+i}")
    for i in range(8): pk("v_pk_add_f32", E + 2*i, E + 2*i, MM + 2*i, mods="op_sel_hi:[1,0] neg_lo:[0,1] neg_hi:[0,1]")
    for i in range(8): A(f"v_cvt_pk_bf16_f32 v{G+i}, v{E+2*i}, v{E+2*i+1}")
    for i in range(8):
        A(f"v_lshlrev_b32 v{E+2*i}, 16, v{G+i}")
        A(f"v_and_b32 v{E+2*i+1}, s19, v{G+i}")
    for i in range(8): pk("v_pk_mul_f32", E + 2*i, E + 2*i, MM + 2*i, mods="op_sel:[0,1] op_sel_hi:[1,1]")
    for c2 in range(2):
        for i in range(4): A(f"v_cvt_pk_bf16_f32 v{XS+4*c2+i}, v{E+4*i+c2}, v{E+4*i+2+c2}")
    for i in range(8):
        A(f"v_lshlrev_b32 v{E+2*i}, 16, v{XS+i}")
        A(f"v_and_b32 v{E+2*i+1}, s19, v{XS+i}")
    for i in range(8): A(f"v_cvt_pk_f16_f32 v{XS+i}, v{E+2*i}, v{E+2*i+1}")
    for c2 in range(2):
        if not O.no_xnt: A(f"buffer_store_dwordx4 v[{XS+4*c2}:{XS+4*c2+3}], v{VXT}, {W_}, s{17+c2} offen sc1")
    A("s_cmp_lg_u32 s26, 0")
    A("s_cbranch_scc1 S_nopad")
    A("s_cmp_gt_u32 s20, 1")
    A("s_cbranch_scc1 S_nopad")
    A("v_lshrrev_b32 v19, 2, v2")
    A(f"v_mul_u32_u24 v19, {XNT_STRIDE}, v19")
    A("v_and_b32 v18, 3, v2")
    A("v_lshl_add_u32 v19, v18, 4, v19")
    A("s_lshl_b32 s17, s27, 1")
    A("s_add_u32 s17, s17, s20")
    A(f"s_mul_i32 s17, s17, {16*XNT_STRIDE}")
    A(f"s_add_u32 s17, s17, {WS_XNT}")
    for i in range(4): A(f"v_mov_b32 v{20+i}, 0")
    A(f"buffer_store_dwordx4 v[20:23], v19, {W_}, s17 offen sc1")
    A("S_nopad:")
    A(f"s_setprio {O.prio_S1}")
    group(1)
    A("s_lshl_b32 s17, s27, 7")
    A("s_lshl_b32 s18, s26, 2")
    A("s_add_u32 s17, s17, s18")
    A(f"s_add_u32 s17, s17, {FX}")
    A("s_waitcnt vmcnt(0)")
    A("s_barrier")
    flag("S_nofx", 17, 1)
    stamp(A, 6)
    A(f"s_setprio {O.prio_S2}")
    (groupp if O.plain23 else group)(2)
    A("s_lshr_b32 s17, s3, 4")
    A("s_lshl_b32 s17, s17, 7")
    A(f"s_add_u32 s17, s17, {FX}")
    fxload = f"buffer_load_dword v19, v{VFX}, {W_}, s17 offen sc1"
    (groupp if (O.plain23 or O.plain3) else group)(3)
    stamp(A, 7)
    A(f"s_setprio {O.prio_S3}")
    A(fxload)
    for r in range(16): A(f"v_ldexp_f32 v{Dacc+r}, v{Dacc+r}, v248")
    A("s_cmp_eq_u32 s22, 0")
    A("s_cbranch_scc0 S_mh1")
    for mh in range(2):
        if mh == 1: A("S_mh1:")
        keep = [2*mh, 2*mh+1]; send = [2-2*mh, 3-2*mh]
        for j in range(2):
            A(f"ds_write_b128 v{VXS}, v[{Dacc+4*send[j]}:{Dacc+4*send[j]+3}] offset:{1024*j}")
        A("s_waitcnt lgkmcnt(0)")
        A("s_barrier")
        for j in range(2): A(f"ds_read_b128 v[{32+4*j}:{32+4*j+3}], v{VXP} offset:{1024*j}")
        A("s_waitcnt lgkmcnt(0)")
        for j in range(2):
            for r in range(4): A(f"v_add_f32 v{32+4*j+r}, v{32+4*j+r}, v{Dacc+4*keep[j]+r}")
            A(f"v_cvt_pk_f16_f32 v{44+2*j}, v{32+4*j}, v{32+4*j+1}")
            A(f"v_cvt_pk_f16_f32 v{44+2*j+1}, v{32+4*j+2}, v{32+4*j+3}")
        if mh == 0:
            A("v_cvt_pk_f16_f32 v40, v250, v250")
            A("v_mov_b32 v41, s32")
            A("ds_write_b16 v41, v40 offset:6")
            A(f"ds_write_b64 v{VTB}, v[44:45] offset:8")
            A("s_mov_b32 exec_lo, 0x7f807f80\ns_mov_b32 exec_hi, 0x7f807f80")
            A(f"ds_write_b64 v{VTB}, v[46:47] offset:264")
        else:
            A("s_mov_b32 exec_lo, 0x7f807f80\ns_mov_b32 exec_hi, 0x7f807f80")
            A(f"ds_write_b64 v{VTB}, v[44:45] offset:520")
            A(f"ds_write_b64 v{VTB}, v[46:47] offset:776")
        A("s_mov_b64 exec, -1")
        if mh == 0: A("s_branch S_join")
    A("S_join:")
    A("s_waitcnt vmcnt(0)")
    A(f"v_cmp_ne_u32 vcc, v19, v{VTOK}")
    A("s_cbranch_vccz S_fx_ok")
    poll_loop(A, "S_fx", fxload, [19], VTOK, 12)
    stamp(A, 8)
    UR = 160
    for gi in range(3):
        if gi == 2: A("s_mov_b64 exec, 3")
        A(f"buffer_load_dwordx2 v[{UR+6*gi}:{UR+6*gi+1}], v3, {W_}, s24 offen offset:{1024*gi+8} sc1")
        A(f"buffer_load_dwordx4 v[{UR+6*gi+2}:{UR+6*gi+5}], v3, {W_}, s24 offen offset:{1024*gi+16} sc1")
    A("s_mov_b64 exec, -1")
    A("s_waitcnt lgkmcnt(0)")
    A("s_barrier")
    for i in range(16):
        A(f"ds_read_u16 v{80+i}, v{GA+i}")
        if i == 11: A("s_waitcnt lgkmcnt(4)")
    for jj in range(4):
        b = 80 + 4 * jj
        A(f"s_waitcnt lgkmcnt({[4,4+2,4+4,6][jj] if jj < 3 else 6})" if False else "")
        if jj == 0: A("s_waitcnt lgkmcnt(0)")
        A(f"v_lshl_or_b32 v{96+2*jj}, v{b+2}, 16, v{b+3}")
        A(f"v_lshl_or_b32 v{96+2*jj+1}, v{b}, 16, v{b+1}")
        A(f"ds_write_b64 v{VKW}, v[{96+2*jj}:{96+2*jj+1}] offset:{1024*(3-jj)}")
        A(f"ds_write_b64 v{VKW}, v[{96+2*jj}:{96+2*jj+1}] offset:{KCOPY + 8 + 1024*(3-jj)}")
    for gi in range(3):
        A(f"s_waitcnt vmcnt({4-2*gi})")
        if gi == 2: A("s_mov_b64 exec, 3")
        r = UR + 6 * gi
        t0 = 180 + 12 * (gi & 1)
        for k_ in range(4): A(f"v_alignbyte_b32 v{t0+k_}, v{r+k_+1}, v{r+k_}, 2")
        for k_ in range(4): A(f"v_mov_b32 v{t0+4+k_}, v{r+1+k_}")
        for k_ in range(4): A(f"v_alignbyte_b32 v{t0+8+k_}, v{r+k_+2}, v{r+k_+1}, 2")
        A(f"ds_write_b128 v{VUW}, v[{r+2}:{r+5}] offset:{1024*gi + XNT_STRIDE*3}")
        for sg_ in range(3):
            A(f"ds_write_b128 v{VUW}, v[{t0+4*sg_}:{t0+4*sg_+3}] offset:{1024*gi + XNT_STRIDE*sg_}")
        if gi == 1: A("s_waitcnt lgkmcnt(4)")
    A("s_mov_b64 exec, -1")
    ACC = 32
    FR = [64, 128]
    def rd(buf, ph, i):
        m = i >> 1
        if i & 1 == 0: A(f"ds_read_b128 v[{FR[buf]+4*m}:{FR[buf]+4*m+3}], v{VF} offset:{512*m+64*ph}")
        else: A(f"ds_read_b128 v[{FR[buf]+32+4*m}:{FR[buf]+32+4*m+3}], v{VG} offset:{3584-512*m+64*ph}")
    if O.s_w2:
        srd(A, 8, P_W2, 1792 * 1024)
        A("s_lshr_b32 s17, s3, 3")
        A("s_mul_i32 s17, s17, 57344")
        A("s_mul_i32 s18, s20, 14336")
        A("s_add_u32 s17, s17, s18")
        for i in range(14):
            if i >= O.s_w2_depth: A(f"s_waitcnt vmcnt({O.s_w2_depth-1})")
            A(f"buffer_load_dwordx4 v[{104+4*(i%4)}:{104+4*(i%4)+3}], v3, s[8:11], s17 offen")
            A("s_add_u32 s17, s17, 1024")
        A("s_waitcnt vmcnt(0)")
    if O.use_hint:
        A("s_cmp_lg_u32 s20, 0")
        A("s_cbranch_scc1 S_fg_ok")
        A("s_lshr_b32 s17, s3, 4")
        A("s_lshl_b32 s17, s17, 7")
        A("s_and_b32 s18, s3, 15")
        A("s_lshl_b32 s18, s18, 2")
        A("s_add_u32 s17, s17, s18")
        A(f"s_add_u32 s17, s17, {FG}")
        poll_loop(A, "S_fg", f"buffer_load_dword v19, v{VZERO}, {W_}, s17 offen sc1", [19], VTOK, 12, sleep=8)
    A("s_waitcnt lgkmcnt(0)")
    A("s_barrier")
    stampw(A, 9)
    A(f"s_setprio {O.prio_Sc}")
    prods = sorted([(m, e) for m in range(8) for e in range(8) if m + e <= 7], key=lambda p: (max(p), p))
    for i in range(14): rd(0, 0, i)
    seen = set()
    UU = 192
    for ph in range(4):
        buf = ph & 1
        nxt = list(range(16)) if ph < 3 else []
        if ph > 0: A("s_waitcnt lgkmcnt(0)")
        if ph == 3:
            for j in range(4): A(f"ds_read_b64 v[{UU+2*j}:{UU+2*j+1}], v{VUU} offset:{512*j}")
        lasts = -1; issued0 = 14
        for n, (m, e) in enumerate(prods):
            sidx = max(m, e)
            if ph == 0 and sidx != lasts:
                if sidx == 1:
                    for i in (14, 15): rd(0, 0, i)
                    issued0 = 16
                if sidx <= 4: A(f"s_waitcnt lgkmcnt({issued0 - (2*sidx+2)})")
                elif sidx == 5: A("s_waitcnt lgkmcnt(0)")
                lasts = sidx
            c = m + e
            cc = f"v[{ACC+4*c}:{ACC+4*c+3}]" if c in seen else "0"
            seen.add(c)
            A(f"v_mfma_f32_16x16x32_f16 v[{ACC+4*c}:{ACC+4*c+3}], v[{FR[buf]+4*m}:{FR[buf]+4*m+3}], v[{FR[buf]+32+4*e}:{FR[buf]+32+4*e+3}], {cc}")
            if nxt and (ph > 0 or sidx >= 5):
                cnt = 1 if ph > 0 else 2
                if ph > 0 and n % 2 == 1: cnt = 0
                for _ in range(cnt):
                    if nxt and (16 - len(nxt)) < 15: rd(buf ^ 1, ph + 1, nxt.pop(0))
            if ph == 3:
                if n == 4:
                    A("s_waitcnt lgkmcnt(0)")
                    A("s_lshl_b32 s30, s63, 16")
                    A("s_and_b32 s31, s63, 0xffff0000")
                    A("s_cmp_eq_u32 s21, 0")
                    A("s_cselect_b32 s30, s30, s31")
                if 5 <= n < 13:
                    i = n - 5
                    A(f"v_cvt_f32_f16 v{64+2*i}, v{UU+i}")
                    A(f"v_lshrrev_b32 v{64+2*i+1}, 16, v{UU+i}")
                    A(f"v_cvt_f32_f16 v{64+2*i+1}, v{64+2*i+1}")
                if 13 <= n < 21:
                    i = n - 13
                    A(f"v_mul_f32 v{64+2*i}, s30, v{64+2*i}")
                    A(f"v_mul_f32 v{64+2*i+1}, s30, v{64+2*i+1}")
                    A(f"v_cvt_pk_bf16_f32 v{UU+i}, v{64+2*i}, v{64+2*i+1}")
                if 21 <= n < 29:
                    i = n - 21
                    A(f"v_lshlrev_b32 v{64+2*i}, 16, v{UU+i}")
                    A(f"v_and_b32 v{64+2*i+1}, s19, v{UU+i}")
        if nxt:
            A("s_waitcnt lgkmcnt(4)")
            while nxt: rd(buf ^ 1, ph + 1, nxt.pop(0))
    stamp(A, 10)
    A(f"s_setprio {O.prio_S4}")
    A("s_lshl_b32 s17, s23, 12")
    A("s_lshl_b32 s18, s22, 11")
    A("s_add_u32 s17, s17, s18")
    A(f"s_add_u32 s17, s17, {WS_ZP}")
    A("s_cmp_eq_u32 s22, 0")
    A("s_cbranch_scc0 S_e1")
    for hf in range(2):
        if hf == 1: A("S_e1:")
        keep = ACC + 16 * hf; send = ACC + 16 * (1 - hf)
        for c in range(4): A(f"ds_write_b128 v{VXW}, v[{send+4*c}:{send+4*c+3}] offset:{1024*c}")
        A("s_waitcnt lgkmcnt(0)")
        A("s_barrier")
        for c in range(4): A(f"ds_read_b128 v[{80+4*c}:{80+4*c+3}], v{VXR} offset:{1024*c}")
        for c in range(4):
            A(f"s_waitcnt lgkmcnt({3-c})")
            for i in range(4): A(f"v_add_f32 v{80+4*c+i}, v{80+4*c+i}, v{keep+4*c+i}")
        if hf == 0: A("s_branch S_e2")
    A("S_e2:")
    for i in range(16): A(f"v_mul_f32 v{80+i}, v{80+i}, v249")
    for i in range(8): A(f"v_cvt_pk_bf16_f32 v{96+i}, v{80+2*i}, v{80+2*i+1}")
    for i in range(8):
        A(f"v_lshlrev_b32 v{80+2*i}, 16, v{96+i}")
        A(f"v_and_b32 v{80+2*i+1}, s19, v{96+i}")
    for i in range(16): A(f"v_add_f32 v{80+i}, v{80+i}, v{64+i}")
    for i in range(8): A(f"v_cvt_pk_bf16_f32 v{96+i}, v{80+2*i}, v{80+2*i+1}")
    for c in range(4):
        A(f"buffer_store_dwordx2 v[{96+2*c}:{96+2*c+1}], v{VZ}, {W_}, s17 offen offset:{512*c} sc1")
    A("s_lshl_b32 s17, s3, 2")
    A(f"s_add_u32 s17, s17, {FZ}")
    A("s_waitcnt vmcnt(0)")
    A("s_barrier")
    stamp(A, 11)
    flag("S_nofz", 17, 0)
    if O.s_h:
        A("s_and_b32 s24, s3, 7")
        A("s_lshr_b32 s25, s3, 3")
        A("s_lshl_b32 s17, s24, 1")
        A("s_lshr_b32 s18, s25, 4")
        A("s_add_u32 s17, s17, s18")
        A("s_lshl_b32 s17, s17, 7")
        A("s_and_b32 s18, s25, 3")
        A("s_mul_i32 s18, s18, 7")
        A("s_lshr_b32 s18, s18, 1")
        A("s_lshl_b32 s18, s18, 2")
        A("s_add_u32 s17, s17, s18")
        A(f"s_add_u32 s17, s17, {FH}")
        A(f"v_min_u32 v24, 12, v{VFX}")
        poll_loop(A, "S_ph", f"buffer_load_dword v19, v24, {W_}, s17 offen sc1", [19], VTOK, 12, sleep=4)
        A(f"s_mul_i32 s17, s24, {896*1024}")
        A(f"s_mul_i32 s18, s25, {28*1024}")
        A("s_add_u32 s17, s17, s18")
        A(f"s_mul_i32 s18, s20, {7*1024}")
        A("s_add_u32 s17, s17, s18")
        A(f"s_add_u32 s17, s17, {WS_H}")
        for i in range(7):
            A(f"buffer_load_dwordx4 v[{104+4*i}:{104+4*i+3}], v3, {W_}, s17 offen sc1")
            A("s_add_u32 s17, s17, 1024")
    A("s_cmp_lg_u32 s20, 1")
    A("s_cbranch_scc1 S_fin")
    A("s_cmp_lg_u32 s3, 0")
    A("s_cbranch_scc1 S_fin")
    A(f"s_mov_b32 s17, {FH}")
    A("v_lshrrev_b32 v24, 2, v2")
    A("v_lshlrev_b32 v24, 7, v24")
    A("v_and_b32 v25, 3, v2")
    A("v_lshl_add_u32 v24, v25, 4, v24")
    poll_loop(A, "S_fs", f"buffer_load_dwordx4 v[20:23], v24, {W_}, s17 offen sc1", [20, 21, 22, 23], VTOK, 12, sleep=16)
    A(f"s_mov_b32 s17, {EPOCH}")
    A("s_mov_b64 exec, 1")
    A(f"buffer_store_dword v{VTOK}, v{VZERO}, {W_}, s17 offen sc1")
    A("s_mov_b64 exec, -1")
    A("S_fin:")
    stamp_out(A, 12)
    A("s_endpgm")

def gen_C(A):
    vm = VM(A); lg = LG(A)
    A("C_role:")
    if O.setprio_C: A(f"s_setprio {O.setprio_C}")
    XS_ = 16896
    XSA = [65024, 33792, 0, 16896]
    SLA = [0, 8192, 16384, 24576, 32768, 40960, 58880, 67072, 50688]
    def sl_off(sl, lo, hi):
        a_ = SLA[sl]
        return (lo, a_) if a_ + 8192 <= 65536 else (hi, a_ - 32768)
    A(f"""
v_lshrrev_b32 v1, 6, v0
v_and_b32 v2, 63, v0
v_readfirstlane_b32 s20, v1       ; w
s_and_b32 s21, s2, 7              ; xcd
s_lshr_b32 s22, s2, 3             ; idx 0..31
s_lshr_b32 s23, s21, 1
s_lshl_b32 s23, s23, 2
s_and_b32 s24, s22, 3
s_add_u32 s23, s23, s24           ; rb
s_lshl_b32 s33, s24, 1            ; 2r
s_and_b32 s24, s21, 1
s_mul_i32 s24, s24, 7
s_lshr_b32 s25, s22, 2            ; c
s_add_u32 s24, s24, s25           ; ct
s_lshr_b32 s29, s21, 2
s_add_u32 s33, s33, s29
s_and_b32 s96, s33, {7 if O.rot1 else 0}
v_lshlrev_b32 v3, 4, v2           ; lane*16
v_lshrrev_b32 v7, 4, v2
v_and_b32 v6, 15, v2
v_lshlrev_b32 v8, 2, v7
v_xor_b32 v6, v6, v8
v_lshlrev_b32 v6, 4, v6
v_mul_u32_u24 v8, 3584, v7
v_add_u32 v6, v6, v8
s_mul_i32 s27, s20, {16*3584}
s_lshl_b32 s28, s24, 8
s_add_u32 s27, s27, s28
s_lshl_b32 s28, s20, 12           ; w*4096
v_and_b32 v9, 31, v2              ; lr
v_lshrrev_b32 v7, 5, v2           ; h
s_waitcnt lgkmcnt(0)
s_add_u32 s{P_WS}, s{P_WS}, {O.wsoff}
s_addc_u32 s{P_WS+1}, s{P_WS+1}, 0
s_load_dword s{TOK}, s[{P_WS}:{P_WS+1}], {EPOCH}
""")
    srd(A, WSRD, P_WS, WS_BYTES - O.wsoff)
    srd(A, 8, P_W1, 512 * 3584)
    srd(A, 12, P_U, 2048 * 1024)
    srd(A, 16, P_W2, 1792 * 1024)
    NS = 28; RS_ = 9; HD = O.hd; NRA = O.nra
    A(f"""
s_lshl_b32 s36, s21, 2
s_and_b32 s37, s22, 3
s_add_u32 s36, s36, s37
s_lshr_b32 s37, s22, 2            ; dtb
s_mul_i32 s38, s37, 7
s_lshr_b32 s38, s38, 1
s_and_b32 s29, s22, 3
s_mul_i32 s29, s29, 7
s_add_u32 s38, s38, s29
s_sub_u32 s29, s38, 28
s_cmp_ge_u32 s38, 28
s_cmov_b32 s38, s29
s_and_b32 s38, s38, {31 if O.rot2 else 0}
v_lshrrev_b32 v4, 3, v2
v_and_b32 v5, 7, v2
v_bfe_u32 v8, v2, 4, 1
v_lshlrev_b32 v8, 2, v8
v_xor_b32 v5, v5, v8
v_lshlrev_b32 v5, 4, v5
v_lshl_add_u32 v4, v4, 10, v5
s_mul_i32 s39, s20, {28*16*1024}
s_lshl_b32 s29, s37, 7
s_add_u32 s39, s39, s29           ; w2 start
s_add_u32 s40, s39, {28*16384}    ; w2 end
s_lshl_b32 s29, s38, 14
s_add_u32 s41, s39, s29           ; w2 cur
s_lshl_b32 s30, s20, 11
""")
    A(f"""
s_lshr_b32 s29, s20, 1
s_lshl_b32 s29, s29, 5
s_lshl_b32 s34, s36, 6
s_add_u32 s34, s34, s29
s_lshl_b32 s34, s34, 10
s_lshl_b32 s29, s37, 7
s_add_u32 s34, s34, s29
s_and_b32 s29, s20, 1
s_lshl_b32 s29, s29, 6
s_add_u32 s34, s34, s29
v_lshlrev_b32 v8, 10, v9
v_lshl_add_u32 v8, v7, 3, v8
""")
    A("s_mov_b32 s98, s34")
    A("v_mov_b32 v51, v8")
    def xtile(track=True):
        for g in range(4):
            t = f"buffer_load_dwordx2 v[{18+2*g}:{18+2*g+1}], v51, s[12:15], s98 offen offset:{16*g} {O.xe_fl}"
            vm.op(t, "x") if track else A(t)
    if O.xt_at < 0: xtile()
    SL = [9, 0, 1, 2, 3, 4, 5, 6, 7, 8]
    RA = 64; ACC2 = 192; HR = 32
    class W2:
        nd = 0; nr = 0; slot = {}; free = []; pend = []; maxread = 0
    def areg(st): return RA + 8 * (st % NRA)
    def w2_dma():
        st = W2.nd
        if st >= NS: return False
        if not W2.free:
            if not W2.pend: return False
            tag, sl = W2.pend.pop(0); lg.wait(tag); W2.free.append(sl)
        sl = W2.free.pop(0); W2.slot[st] = sl
        for j in range(2):
            A(f"s_add_u32 m0, s30, {SLA[sl] + 1024*j}")
            if j: A("s_add_u32 s29, s41, 8192")
            vm.op(f"buffer_load_dwordx4 v4, s[16:19], {'s29' if j else 's41'} offen {O.w2_fl} lds", f"w{st}")
        A("s_add_u32 s41, s41, 16384")
        A("s_cmp_eq_u32 s41, s40")
        A("s_cmov_b32 s41, s39")
        W2.nd += 1
        return True
    def w2_read():
        st = W2.nr
        if st >= W2.nd or st >= W2.maxread: return False
        sl = W2.slot[st]; dst = areg(st)
        vm.wait(f"w{st}")
        for u in range(2):
            for rd in range(2):
                lg.op(f"ds_read_b64_tr_b16 v[{dst+4*u+2*rd}:{dst+4*u+2*rd+1}], v{sl_off(sl, 14, 16)[0]+u} offset:{sl_off(sl, 14, 16)[1]+1024*rd}", f"r{st}")
        W2.pend.append((f"r{st}", sl)); W2.nr += 1
        return True
    def g2_setup():
        A(f"""
s_mul_i32 s42, s36, 224
s_mul_i32 s29, s20, 28
s_add_u32 s42, s42, s29
s_lshl_b32 s42, s42, 10
s_add_u32 s42, s42, {WS_H}        ; h start
s_add_u32 s43, s42, {28*1024}     ; h end
s_lshl_b32 s29, s38, 10
s_add_u32 s48, s42, s29           ; h cur
s_lshr_b32 s29, s20, 1
s_mul_i32 s29, s29, {112*1024}
v_add_u32 v52, s29, v3
s_xor_b32 s29, s29, {112*1024}
v_add_u32 v5, s29, v3
s_and_b32 s31, s20, 1
s_lshr_b32 s32, s20, 1
s_lshl_b32 s33, s36, 6
s_lshl_b32 s34, s32, 5
s_add_u32 s33, s33, s34
s_lshl_b32 s34, s37, 6
s_lshl_b32 s35, s31, 5
s_add_u32 s34, s34, s35           ; d base
s_lshl_b32 s35, s33, 10
s_lshl_b32 s29, s34, 1
s_add_u32 s94, s35, s29
s_lshl_b32 s95, s34, 12
s_lshl_b32 s29, s33, 1
s_add_u32 s95, s95, s29
s_add_u32 s95, s95, {WS_ZP}
v_lshrrev_b32 v28, 2, v2
v_and_b32 v10, 3, v2
v_lshlrev_b32 v10, 4, v10
v_lshl_add_u32 v28, v28, 12, v10
v_bfe_u32 v10, v2, 2, 2
v_and_b32 v11, 3, v2
v_bfe_u32 v12, v2, 4, 1
v_lshl_add_u32 v13, v7, 2, v10
v_lshlrev_b32 v13, 7, v13
v_lshl_add_u32 v13, v12, 5, v13
v_lshl_add_u32 v13, v11, 3, v13
v_add_u32 v13, s30, v13
v_lshrrev_b32 v10, 1, v10
v_xor_b32 v10, s31, v10
v_lshl_add_u32 v14, v10, 6, v13
v_xor_b32 v10, 1, v10
v_lshl_add_u32 v15, v10, 6, v13
v_add_u32 v16, 0x8000, v14
v_add_u32 v17, 0x8000, v15
s_lshr_b32 s45, s36, 1
s_lshl_b32 s45, s45, 7
s_add_u32 s45, s45, {FH}
s_lshl_b32 s46, s37, 7
s_add_u32 s46, s46, {FZ}
v_lshlrev_b32 v29, 2, v9
s_mul_i32 s29, s20, 7
s_lshr_b32 s29, s29, 1
s_lshl_b32 s29, s29, 2
v_min_u32 v30, 12, v29
v_add_u32 v30, s29, v30
v_bfe_u32 v10, v2, 2, 2
v_lshl_add_u32 v10, v7, 2, v10    ; 4h + r
v_lshlrev_b32 v10, 6, v10
v_lshl_add_u32 v10, v12, 5, v10
v_lshl_add_u32 v10, v11, 3, v10
v_add_u32 v12, s30, v10
v_add_u32 v13, 0x8000, v12
v_add_u32 v10, s30, v3
v_add_u32 v11, 0x8000, v10
v_lshlrev_b32 v8, 10, v9
v_lshl_add_u32 v8, v7, 4, v8
""")
        A("v_mov_b32 v255, v52")
    def token_and_started(track):
        A("s_waitcnt lgkmcnt(0)")
        A(f"s_mul_i32 s{TOK}, s{TOK}, 0x9e3779b1")
        A(f"s_add_u32 s{TOK}, s{TOK}, 0x7f4a7c15")
        A(f"v_mov_b32 v26, s{TOK}")
        A("v_mov_b32 v27, 0")
        A("s_lshr_b32 s97, s2, 4")
        A("s_lshl_b32 s97, s97, 7")
        A("s_and_b32 s29, s2, 15")
        A("s_lshl_b32 s29, s29, 2")
        A("s_add_u32 s97, s97, s29")
        A(f"s_add_u32 s97, s97, {FG}")
        if track: return
        A("s_cmp_lg_u32 s20, 1")
        A("s_cbranch_scc1 C_noidf")
        A("s_sub_u32 s34, s22, 28")
        A("s_lshl_b32 s34, s34, 3")
        A("s_add_u32 s34, s34, s21")
        A("s_lshr_b32 s29, s34, 1")
        A("s_lshl_b32 s29, s29, 7")
        A("s_and_b32 s34, s34, 1")
        A("s_lshl_b32 s34, s34, 2")
        A("s_add_u32 s34, s34, s29")
        A(f"s_add_u32 s34, s34, {FH + 56}")
        A("s_mov_b64 exec, 1")
        A(f"buffer_store_dword v26, v27, s[{WSRD}:{WSRD+3}], s34 offen sc1")
        if O.use_hint: A(f"buffer_store_dword v26, v27, s[{WSRD}:{WSRD+3}], s97 offen sc1")
        A("s_mov_b64 exec, -1")
        A("C_noidf:")
    def warm_w2():
        A("s_sub_u32 s34, s22, 28")
        A("s_lshl_b32 s34, s34, 2")
        A("s_add_u32 s34, s34, s20")
        A(f"s_mul_i32 s34, s34, {112*1024}")
        A(f"s_add_u32 s35, s34, {112*1024}")
        A(f"s_mul_i32 s29, s21, {14*1024}")
        A("s_add_u32 s33, s34, s29")
        A("s_lshl_b32 s29, s20, 10")
        A("s_mov_b32 m0, s29")
        A("s_mov_b32 s32, 0")
        A("C_warm:")
        for i in range(2):
            A(f"s_waitcnt vmcnt({O.warm_depth-1})")
            A("buffer_load_dwordx4 v3, s[16:19], s33 offen lds")
            A("s_add_u32 s33, s33, 1024")
        A("s_cmp_eq_u32 s33, s35")
        A("s_cmov_b32 s33, s34")
        A("s_add_u32 s32, s32, 1")
        A(f"s_cmp_lt_u32 s32, {O.warm_n}")
        A("s_cbranch_scc1 C_warm")
    A("s_cmp_ge_u32 s22, 28")
    A("s_cbranch_scc1 C_idle")
    def dma_w(st):
        A(f"s_add_u32 s29, s96, {st}")
        A("s_and_b32 s29, s29, 7")
        A(f"s_mul_i32 s31, s29, {64*3584}")
        A("s_add_u32 s31, s31, s27")
        for j in range(4):
            A(f"s_add_u32 m0, s28, {(st % 3)*16384 + 1024*j}")
            if j: A(f"s_add_u32 s31, s31, {4*3584}")
            dep = O.w1depth0 if st < O.w1sw else O.w1depth
            if dep and len(vm.ops) >= dep:
                A(f"s_waitcnt vmcnt({dep-1})"); vm.ops = vm.ops[-(dep-1):]
            vm.op(f"buffer_load_dwordx4 v6, s[8:11], s31 offen {O.w1_fl} lds", f"a{st}")
    for st in range(2): dma_w(st)
    g2_setup()
    dma_w(2)
    stamp(A, 2)
    A(f"""
v_bfe_u32 v40, v2, 2, 2           ; r
v_and_b32 v41, 3, v2              ; c
v_bfe_u32 v42, v2, 4, 1           ; g16
v_lshl_add_u32 v43, v7, 3, v40
v_lshlrev_b32 v43, 8, v43
v_lshl_add_u32 v43, v42, 5, v43
v_lshl_add_u32 v43, v41, 3, v43
v_xor_b32 v248, s20, v40
v_lshl_add_u32 v248, v248, 6, v43
v_add_u32 v249, 0x10000, v248
v_xor_b32 v250, v9, v7
s_lshl_b32 s29, s96, 3
v_add_u32 v250, s29, v250
v_add_u32 v251, 32, v250
v_and_b32 v250, 63, v250
v_and_b32 v251, 63, v251
v_lshlrev_b32 v250, 4, v250
v_lshlrev_b32 v251, 4, v251
v_lshl_add_u32 v250, v7, 10, v250
v_lshl_add_u32 v251, v7, 10, v251
v_lshrrev_b32 v252, 1, v9
v_mul_u32_u24 v252, 1056, v252
v_and_b32 v254, 1, v9
v_lshl_add_u32 v252, v254, 9, v252
v_xor_b32 v254, v254, v7
v_lshl_add_u32 v252, v254, 4, v252
v_add_u32 v254, 65024, v252
s_lshl_b32 s26, s23, 17
s_lshl_b32 s29, s20, 13
s_add_u32 s26, s26, s29
s_add_u32 s26, s26, {WS_XN}
s_mul_i32 s32, s20, {4*1056}
s_lshl_b32 s35, s23, 7
s_add_u32 s35, s35, {FA}
v_and_b32 v253, 15, v2
v_lshlrev_b32 v253, 2, v253
s_mul_i32 s34, s23, 448
s_lshl_b32 s29, s24, 3
s_add_u32 s34, s34, s29
s_lshl_b32 s29, s20, 1
s_add_u32 s34, s34, s29
s_lshl_b32 s34, s34, 10
s_add_u32 s49, s34, {WS_H}
""")
    A("s_lshr_b32 s29, s23, 1")
    A("s_cmp_eq_u32 s29, s21")
    A("s_cselect_b32 s99, 1, 0")
    token_and_started(True)
    W = 64
    def tile_off(t, dst, mul, base):
        A(f"s_add_u32 s29, s25, {t}")
        A("s_and_b32 s29, s29, 3")
        A(f"s_mul_i32 s{dst}, s29, {mul}")
        A(f"s_add_u32 s{dst}, s{dst}, s{base}")
    def dma_x(sg, i):
        t, hf = sg >> 1, sg & 1
        if i == 0: tile_off(t, 31, 32768, 26)
        else: A("s_add_u32 s31, s31, 2048")
        A(f"s_add_u32 m0, s32, {XSA[sg & 3] + 1056*i}")
        vm.op(f"buffer_load_dwordx4 v{250+hf}, s[{WSRD}:{WSRD+3}], s31 offen sc1 lds", f"x{sg}")
    faload = f"buffer_load_dword v31, v253, s[{WSRD}:{WSRD+3}], s35 offen sc1"
    for st in range(8):
        vm.wait(f"a{st}")
        if st == O.fa_check:
            A("s_cmp_lg_u32 s20, 0")
            A("s_cbranch_scc1 C_fa_ok")
            poll_loop(A, "C_fa", faload, [31], 26, 29, sleep=O.fa_sleep)
            stamp(A, 5)
        if st: A("s_waitcnt lgkmcnt(0)")
        A("s_barrier")
        if st == O.fa_check:
            for i in range(4): dma_x(0, i)
        if st == 0: stampw(A, 3)
        for ks in range(4):
            for rd in range(2):
                A(f"ds_read_b64_tr_b16 v[{W+16*st+4*ks+2*rd}:{W+16*st+4*ks+2*rd+1}], v248 offset:{(st%3)*16384+4096*ks+1024*rd}")
        if st >= 1 and st + 2 < 8: dma_w(st + 2)
        if st == max(6, O.fa_check):
            for i in range(4): dma_x(1, i)
    A("s_waitcnt lgkmcnt(0)")
    stamp(A, 4)
    if O.stop == 1:
        for i in range(5, 12): stamp(A, i)
        stamp_out(A, 12); A("s_endpgm")
    AC = [192, 208]; BF = 224; OP = 240
    def epi_ops(t):
        d = AC[t & 1]
        ops = [f"v_max_f32 v{d+r}, 0, v{d+r}" for r in range(16)]
        ops += [f"v_cvt_pk_bf16_f32 v{OP+i}, v{d+2*i}, v{d+2*i+1}" for i in range(8)]
        return ops
    def epi_store(t):
        tile_off(t, 44, 112 * 1024, 49)
        for e in range(2):
            vm.op(f"buffer_store_dwordx4 v[{OP+4*e}:{OP+4*e+3}], v3, s[{WSRD}:{WSRD+3}], s44 offen offset:{1024*e} sc1", "hst")
        if O.dbl:
            lb = A.newlabel("DB")
            A("s_cmp_eq_u32 s99, 0")
            A(f"s_cbranch_scc1 {lb}")
            for e in range(2):
                A(f"buffer_store_dwordx4 v[{OP+4*e}:{OP+4*e+3}], v3, s[{WSRD}:{WSRD+3}], s44 offen offset:{1024*e} {O.dbl.replace('plain', '')}")
            A(f"{lb}:")
    PF = O.bf_dist
    def bfr(n): return (BF + 4 * (n & 3)) if (n & 4) == 0 else (32 + 4 * (n & 3))
    def rdB(n):
        sg_, i_ = n >> 4, n & 15
        lg.op(f"ds_read_b128 v[{bfr(n)}:{bfr(n)+3}], v{252 if (sg_ & 3) else 254} offset:{(XSA[sg_&3] if (sg_ & 3) else 0)+32*i_}", f"b{n}")
    vm.wait("x0")
    A("s_barrier")
    stampw(A, 6)
    for n in range(PF): rdB(n)
    side = []; dm = [(lambda s_=s_, k_=k_: dma_x(s_, k_)) for s_ in (2, 3) for k_ in range(4)]
    for _ in range(O.x_pre): dm.pop(0)()
    newslots = {O.s9_at: [8], 5: [6, 7], 6: [5], 7: [0, 1]}
    for n in range(128):
        sg, i = n >> 4, n & 15
        t, hf = sg >> 1, sg & 1
        if i == 0 and hf == 0 and t >= 1:
            side += [("v", o) for o in epi_ops(t - 1)] + [("st", t - 1)]
        if i == 16 - PF:
            if sg + 1 < 8: vm.wait(f"x{sg+1}")
            A("s_barrier")
            if sg >= 1 and sg + 3 < 8: dm += [(lambda s_=sg + 3, k_=k_: dma_x(s_, k_)) for k_ in range(4)]
            W2.free += newslots.get(sg, [])
            dm += [w2_dma] * O.w2_in_g1.get(sg, 0)
        if O.g1stamps and n in (16, 32, 64, 96):
            lg.drain(); stampw(A, {16: 2, 32: 3, 64: 4, 96: 5}[n])
        if O.use_hint and n == O.hint_at:
            A("s_cmp_lg_u32 s20, 1")
            A("s_cbranch_scc1 C_nohint")
            A("s_mov_b64 exec, 1")
            A(f"{FLAGOP()} v26, v27, s[{WSRD}:{WSRD+3}], s97 offen sc1")
            A("s_mov_b64 exec, -1")
            A("C_nohint:")
        if n == 112:
            W2.maxread = 8
            for k_ in range(O.last_rd): dm += [w2_read, w2_dma] if k_ < O.last_dma else [w2_read]
        if n + PF < 128: rdB(n + PF)
        lg.wait(f"b{n}")
        d = AC[t & 1]; wreg = W + 4 * (16 * hf + i)
        cc = "0" if (hf == 0 and i == 0) else f"v[{d}:{d+15}]"
        A(f"v_mfma_f32_32x32x16_bf16 v[{d}:{d+15}], v[{wreg}:{wreg+3}], v[{bfr(n)}:{bfr(n)+3}], {cc}")
        if dm and (n % 2 == 1 or n >= 112 or n < 13): dm.pop(0)()
        elif i >= 3 or hf == 1:
            for _ in range(3):
                if side:
                    k_, o = side.pop(0)
                    if k_ == "v": A(o)
                    else:
                        epi_store(o); break
    assert not side
    for f in dm: f()
    stamp(A, 7)
    if O.stop == 2:
        for i in range(11 if O.g1stamps else 8, 12): stamp(A, i)
        stamp_out(A, 12); A("s_endpgm")
    for o in epi_ops(3): A(o)
    epi_store(3)
    A("s_barrier")
    W2.free += [sl for sl in (0, 1, 2, 3, 4, 5) if sl not in W2.free and sl not in W2.slot.values()]
    W2.maxread = NRA
    for _ in range(O.pre_pub): w2_dma()
    A("s_lshl_b32 s29, s23, 7")
    A("s_lshl_b32 s34, s24, 2")
    A("s_add_u32 s29, s29, s34")
    A(f"s_add_u32 s50, s29, {FH}")
    vm.wait("hst")
    A("s_barrier")
    A("s_cmp_lg_u32 s20, 0")
    A("s_cbranch_scc1 C_nopub")
    A("s_mov_b64 exec, 1")
    A(f"{FLAGOP()} v26, v27, s[{WSRD}:{WSRD+3}], s50 offen sc1")
    A("s_mov_b64 exec, -1")
    A("C_nopub:")
    stamp(A, 8)
    while W2.free: w2_dma()
    g1_ops = list(vm.ops); g1_lg = list(lg.ops)
    save = (W2.nd, W2.nr, dict(W2.slot), list(W2.free), list(W2.pend))
    A("s_branch C_g2")
    A("C_idle:")
    if O.idle_exit: A("s_endpgm")
    g2_setup()
    token_and_started(False)
    if O.warm_delay:
        A("s_lshl_b32 s35, s23, 7")
        A(f"s_add_u32 s35, s35, {FA}")
        A("v_and_b32 v253, 15, v2")
        A("v_lshlrev_b32 v253, 2, v253")
        A("s_cmp_lg_u32 s20, 0")
        A("s_cbranch_scc1 C_fi_ok")
        poll_loop(A, "C_fi", f"buffer_load_dword v31, v253, s[{WSRD}:{WSRD+3}], s35 offen sc1", [31], 26, 29, sleep=O.fi_sleep)
        A("s_barrier")
        stamp(A, 2)
    if O.xt_at >= 0: xtile(False)
    if O.warm_w2:
        warm_w2()
        A("s_waitcnt vmcnt(0)")
        A("s_barrier")
    vm.ops = []; lg.ops = []; W2.nd = 0; W2.nr = 0; W2.pend = []
    busy = {}
    for st in range(save[0]):
        sl = save[2][st]
        while sl in busy and W2.nr <= busy[sl]: w2_read()
        if sl in busy: lg.wait(f"r{busy[sl]}")
        W2.free = [sl]; w2_dma(); busy[sl] = st
    while W2.nr < save[1]: w2_read()
    assert W2.nr == save[1], (W2.nr, save[1])
    A("s_waitcnt vmcnt(0) lgkmcnt(0)")
    W2.nd, W2.nr, W2.slot, W2.free, W2.pend = save
    vm.ops = g1_ops; lg.ops = g1_lg
    if O.stamps:
        for i in range(3, 9): stamp(A, i)
    A("C_g2:")
    A("v_mov_b32 v1, v255")
    srd(A, 8, P_OUT, 2048 * 1024)
    ACC = ACC2
    def hreg(st): return HR + 8 * (st % HD) if st < NS - 4 else RA + 8 * (12 + st - (NS - 4))
    def ld_h(st, t):
        vm.op(f"buffer_load_dwordx4 v[{hreg(st)+4*t}:{hreg(st)+4*t+3}], v{1 if t == 0 else 5}, s[{WSRD}:{WSRD+3}], s48 offen {O.h_fl}", f"h{st}")
        if t == 1:
            A("s_add_u32 s48, s48, 1024")
            A("s_cmp_eq_u32 s48, s43")
            A("s_cmov_b32 s48, s42")
    XR = 18
    hflag = f"buffer_load_dword v31, v30, s[{WSRD}:{WSRD+3}], s45 offen sc1"
    while W2.nr < NRA:
        st = W2.nr
        w2_read()
        if len(W2.pend) > 1: w2_dma()
        if st == O.hf_issue: vm.op(hflag, "hf")
        if st == O.hf_check:
            stamp(A, 9)
            vm.wait("hf")
            A("v_cmp_ne_u32 vcc, v31, v26")
            A("s_cbranch_vccz C_fh_ok")
            poll_loop(A, "C_fh", hflag, [31], 26, 29)
            stamp(A, 10)
            for s_ in range(HD):
                for t in range(2): ld_h(s_, t)
    while W2.pend and W2.nd < NS: w2_dma()
    zflag = f"buffer_load_dword v31, v29, s[{WSRD}:{WSRD+3}], s46 offen sc1"
    TAIL = 4
    assert HD >= TAIL
    T1 = HR; T2 = HR + 16; ZR = RA
    assert NS - NRA <= 12
    ZSL = 8
    A("s_mov_b32 s47, 0xffff0000")
    def mf(st, t, u):
        af = areg(st)
        d = ACC + 16 * (2 * t + u)
        cc = "0" if st == 0 else f"v[{d}:{d+15}]"
        A(f"v_mfma_f32_32x32x16_bf16 v[{d}:{d+15}], v[{af+4*u}:{af+4*u+3}], v[{hreg(st)+4*t}:{hreg(st)+4*t+3}], {cc}")
    hq = list(range(HD, NS))
    for st in range(NS - TAIL):
        vm.wait(f"h{st}")
        lg.wait(f"r{st}")
        if W2.pend and W2.nd < NS: w2_dma()
        n = 0
        for t in range(2):
            for u in range(2):
                mf(st, t, u); n += 1
                if n == 2 and hq: ld_h(hq[0], 0)
                if n == 4 and hq: ld_h(hq.pop(0), 1)
        if hq and hq[0] >= NS - 4 - O.h_lead and st >= 16 and hq[0] >= NS - 4:
            ld_h(hq[0], 0); ld_h(hq.pop(0), 1)
        W2.maxread = NRA + st
        w2_read()
        if O.g2stamps and st in (3, 7, 11, 15, 19, 23): stampw(A, 2 + (st >> 2))
        if st == O.zf_issue and not O.nozf: vm.op(zflag, "zf")
        if st == O.zf_check and not O.nozf:
            vm.wait("zf")
            A("v_cmp_ne_u32 vcc, v31, v26")
            A("s_cbranch_vccz C_fz_ok")
            poll_loop(A, "C_fz", zflag, [31], 26, 29)
        if st == O.zf_check:
            lg.drain()
            for j in range(2):
                A(f"s_add_u32 m0, s30, {SLA[ZSL] + 1024*j}")
                if j: A("s_add_u32 s95, s95, 65536")
                vm.op(f"buffer_load_dwordx4 v28, s[{WSRD}:{WSRD+3}], s95 offen sc1 lds", "z")
    assert W2.nd == NS and W2.nr == NS
    lg.drain()
    vm.wait(f"h{NS-1}", "z")
    for g in range(4):
        A(f"ds_read_b64_tr_b16 v[{ZR+2*g}:{ZR+2*g+1}], v{sl_off(ZSL, 12, 13)[0]} offset:{sl_off(ZSL, 12, 13)[1] + 512*g}")
    side = []
    for q in (1, 2, 3):
        side += [f"s_xor_b32 s29, s20, {q}", "s_lshl_b32 s29, s29, 11", f"v_add_u32 v{13+q}, s29, v3"]
    for i in range(8):
        side += [f"v_lshlrev_b32 v{T1+2*i}, 16, v{XR+i}", f"v_and_b32 v{T1+2*i+1}, s47, v{XR+i}"]
    side += ["s_waitcnt lgkmcnt(0)"]
    for i in range(8):
        side += [f"v_lshlrev_b32 v{T2+2*i}, 16, v{ZR+i}", f"v_and_b32 v{T2+2*i+1}, s47, v{ZR+i}"]
    side += [f"v_add_f32 v{T1+i}, v{T1+i}, v{T2+i}" for i in range(16)]
    side += [f"v_cvt_pk_bf16_f32 v{XR+i}, v{T1+2*i}, v{T1+2*i+1}" for i in range(8)]
    for i in range(8):
        side += [f"v_lshlrev_b32 v{T1+2*i}, 16, v{XR+i}", f"v_and_b32 v{T1+2*i+1}, s47, v{XR+i}"]
    def paddr(q, i): return SLA[2 * (q - 1) + (i >> 1)] + 1024 * (i & 1)
    def wr(q, i):
        d = ACC + 16 * q + 4 * i
        A(f"ds_write_b128 v10, v[{d}:{d+3}] offset:{paddr(q, i)}")
    order = [1, 2, 3, 0]
    for k_q, q in enumerate(order):
        t, u = q >> 1, q & 1
        for k_, st in enumerate(range(NS - TAIL, NS)):
            mf(st, t, u)
            nside = 7 if k_q == 0 else (6 if k_ < 2 else 3)
            for _ in range(nside):
                if side and not (k_q >= 1 and side[0].startswith("s_waitcnt")): A(side.pop(0))
            if k_q >= 1 and k_ >= 2:
                wr(order[k_q - 1], 2 * (k_ - 2)); wr(order[k_q - 1], 2 * (k_ - 2) + 1)
    stamp(A, 11)
    A("s_waitcnt lgkmcnt(0)")
    A("s_barrier")
    for q in (1, 2, 3):
        for i in range(4):
            d = ACC + 16 * q + 4 * i
            A(f"ds_read_b128 v[{d}:{d+3}], v{13+q} offset:{paddr(q, i)}")
    while side: A(side.pop(0))
    A("s_waitcnt lgkmcnt(8)")
    for i in range(0, 16, 2):
        A(f"v_pk_add_f32 v[{ACC+i}:{ACC+i+1}], v[{ACC+i}:{ACC+i+1}], v[{ACC+16+i}:{ACC+17+i}]")
    A("s_waitcnt lgkmcnt(0)")
    for i in range(0, 16, 2):
        A(f"v_pk_add_f32 v[{ACC+32+i}:{ACC+33+i}], v[{ACC+32+i}:{ACC+33+i}], v[{ACC+48+i}:{ACC+49+i}]")
    for i in range(0, 16, 2):
        A(f"v_pk_add_f32 v[{ACC+i}:{ACC+i+1}], v[{ACC+i}:{ACC+i+1}], v[{ACC+32+i}:{ACC+33+i}]")
    for i in range(8): A(f"v_cvt_pk_bf16_f32 v{ZR+i}, v{ACC+2*i}, v{ACC+2*i+1}")
    for i in range(8):
        A(f"v_lshlrev_b32 v{T2+2*i}, 16, v{ZR+i}")
        A(f"v_and_b32 v{T2+2*i+1}, s47, v{ZR+i}")
    for i in range(0, 16, 2):
        A(f"v_pk_add_f32 v[{T1+i}:{T1+i+1}], v[{T1+i}:{T1+i+1}], v[{T2+i}:{T2+i+1}]")
    OUTR = ACC
    for i in range(8): A(f"v_cvt_pk_bf16_f32 v{OUTR+i}, v{T1+2*i}, v{T1+2*i+1}")
    for p in range(2):
        A(f"v_permlane32_swap_b32 v{OUTR+4*p}, v{OUTR+4*p+2}")
        A(f"v_permlane32_swap_b32 v{OUTR+4*p+1}, v{OUTR+4*p+3}")
    for p in range(2):
        A(f"buffer_store_dwordx4 v[{OUTR+4*p}:{OUTR+4*p+3}], v8, s[8:11], s94 offen offset:{32*p} {O.out_fl}")
    stamp_out(A, 12)
    A("s_endpgm")

SCR = """s_and_b32 s3, s2, 7
s_lshl_b32 s3, s3, 3
s_lshr_b32 s4, s2, 3
s_and_b32 s4, s4, 7
s_and_b32 s2, s2, 0x1c0
s_or_b32 s2, s2, s3
s_or_b32 s2, s2, s4"""
def build(path, **opts):
    for k_, v_ in opts.items(): setattr(O, k_, v_)
    A = Asm()
    A.begin_kernel(K)
    stamp(A, 0, real=True); stamp(A, 1)
    if O.dbgtime: A("s_memrealtime s[64:65]\ns_memtime s[66:67]")
    A(f"""
s_cmp_ge_u32 s2, 512
s_cbranch_scc1 K_done
s_load_dwordx16 s[36:51], s[0:1], 0
s_load_dwordx8 s[52:59], s[0:1], 64
s_load_dwordx2 s[60:61], s[0:1], 96
{'s_xor_b32 s2, s2, 256' if O.sfirst else ''}
{SCR if O.scramble else ''}
s_cmp_ge_u32 s2, 256
s_cbranch_scc1 {'K_done' if O.only == 'C' else 'S_role'}
{'s_branch K_done' if O.only == 'S' else ''}
""")
    gen_C(A)
    gen_S(A)
    A("K_done:")
    A("s_endpgm")
    A.end_kernel(K, vgpr=256, sgpr=102, ieee=False)
    A.lines, n = hazard.fix(A.lines)
    hdr = open("cdna_kernels/" + NAME + ".s.ref").read().split("; Override launch")[0]
    txt = A.text(hdr + "; @launch grid=(512,1,1) block=(256,1,1) lds=81920\n")
    open(path, "w").write(txt)
    return n

if __name__ == "__main__":
    print("nops", build("mega.s", stamps=False))
    build("mega_st.s", stamps=True)
    build("e1.s", stamps=True, g2stamps=True)
    build("e2.s", stamps=True, g2stamps=True, zf_issue=18, zf_check=22)
```

```python
from gen import *
import hazard, sys

WS_XNT = 0x200000
XNT_STRIDE = 4160
XG = 4224
KIMG_STRIDE = 9216
KCOPY = 4640
WS_ZP = 0xA00000
WS_H = 0xC00000
WS_STAT = 0x0
WS_FLG = 0x10000
FX, FH, FZ, FS, EPOCH, FA = WS_FLG, WS_FLG + 0x1000, WS_FLG + 0x2000, WS_FLG + 0x3000, WS_FLG + 0x4000, WS_FLG + 0x5000
WS_XN = 0x1400000
FG = WS_FLG + 0x6000
WS_BYTES = 0x10000000
WS_STAMP = 0x2000000
LOG2E = 0x3fb8aa3b
INV2PI = 0x3e22f983
SPIN_MAX = 200000
K = NAME + "_kernel"

P_U, P_LAR, P_AIM, P_CRE, P_CIM, P_LDT, P_DSK = 36, 38, 40, 42, 44, 46, 48
P_W1, P_W2, P_OUT, P_DBG, P_WS = 52, 54, 56, 58, 60
TOK = 62
WSRD = 4

class Opt:
    stamps = False
    x_fl = ""
    w1_fl = ""
    w2_fl = ""
    rot1 = True
    rot2 = True
    warm_w2 = True
    hd = 4
    idle_pt = 0
    codepf = False
    s_xpf = False
    xl_at = 21
    xw_q = 0
    bf_dist = 3
    wsoff = 0
    w1depth0 = 7
    w1sw = 3
    h_lead = 0
    dbl = ''
    scramble = False
    prio_S4 = 3
    prio_Sc = 0
    plain3 = False
    fa_sleep = 12
    fa_issue = 4
    fa_check = 6
    x_pre = 0
    s9_at = 1
    last_rd = 0
    last_dma = 0
    prio_S1 = 0
    prio_Sx = 0
    s_exit = 0
    no_xn = False
    no_xnt = False
    no_xsl = False
    xt_at = -1
    fi_sleep = 16
    out_fl = 'nt'
    nozf = False
    s_w2 = False
    s_w2_depth = 4
    s_h = False
    pre_pub = 2
    pretouch = False
    w2_in_g1 = {1: 1, 5: 2, 6: 1, 7: 2}
    spin = SPIN_MAX
    g1stamps = False
    hint_at = 80
    use_hint = False
    x_nodma = False
    x_noepi = False
    x_nobar = False
    x_nord = False
    dbgtime = False
    flag_atomic = True
    warm_delay = True
    xe_fl = ''
    pub_at = 4
    hf_issue = 13
    hf_check = 15
    prio_S3 = 0
    warm_depth = 8
    warm_n = 40
    sfirst = True
    par_fl = 'nt'
    xsl_fl = 'nt'
    zf_issue = 16
    zf_check = 20
    h_fl = 'sc1'
    nojit = False
    g2stamps = False
    plain23 = True
    prio_S2 = 0
    w1depth = 7
    x8_fl = 'nt'
    stop = 0
    idle_exit = False
    nra = 16
    only = ''
    setprio_S = 3
    setprio_C = 1
O = Opt()

def FLAGOP(): return 'buffer_atomic_swap' if O.flag_atomic else 'buffer_store_dword'
def stamp(A, i, real=False):
    if O.stamps:
        A(f"{'s_memrealtime' if real else 's_memtime'} s[{64+2*i}:{65+2*i}]")
def stampw(A, i):
    if O.stamps:
        A("s_waitcnt lgkmcnt(0)"); stamp(A, i); A("s_waitcnt lgkmcnt(0)")
def stamp_out(A, n):
    if O.dbgtime:
        lb = A.newlabel("DT")
        A("s_and_b32 s72, s2, 127")
        A("s_cmp_lg_u32 s72, 5")
        A(f"s_cbranch_scc1 {lb}")
        A("s_cmp_lg_u32 s20, 0")
        A(f"s_cbranch_scc1 {lb}")
        A("s_waitcnt vmcnt(0) lgkmcnt(0)")
        A("s_memtime s[68:69]")
        A("s_memrealtime s[70:71]")
        A("s_waitcnt lgkmcnt(0)")
        A("s_sub_u32 s68, s68, s66")
        A("s_sub_u32 s73, s70, s64")
        A("s_lshr_b32 s72, s2, 7")
        A("s_lshl_b32 s72, s72, 4")
        A("s_mov_b64 exec, 1")
        A("v_mov_b32 v1, s72")
        for i, r in enumerate((64, 70, 68, 73)):
            A(f"v_mov_b32 v2, s{r}")
            A(f"global_store_dword v1, v2, s[{P_DBG}:{P_DBG+1}] offset:{4*i}")
        A("s_waitcnt vmcnt(0)")
        A(f"{lb}:")
    if not O.stamps: return
    A("s_mov_b64 exec, -1")
    A("s_waitcnt vmcnt(0) lgkmcnt(0)")
    stamp(A, n); stamp(A, n + 1, real=True)
    A("s_waitcnt lgkmcnt(0)")
    A("v_lshrrev_b32 v1, 6, v0")
    A(f"s_mul_i32 s100, s2, 256")
    A(f"s_add_u32 s100, s100, {WS_STAMP}")
    A("v_lshlrev_b32 v1, 6, v1")
    A("v_add_u32 v1, s100, v1")
    for i in range(n + 2):
        A(f"v_mov_b32 v2, s{64+2*i}")
        A(f"global_store_dword v1, v2, s[{P_WS}:{P_WS+1}] offset:{4*i}")
    A("s_waitcnt vmcnt(0)")

def srd(A, d, p, nbytes):
    A(f"s_mov_b32 s{d}, s{p}")
    A(f"s_mov_b32 s{d+1}, s{p+1}")
    A(f"s_mov_b32 s{d+2}, {nbytes}")
    A(f"s_mov_b32 s{d+3}, 0x00020000")

def dpp_sum(A, regs):
    for ctl in ("row_shr:1 row_mask:0xf", "row_shr:2 row_mask:0xf", "row_shr:4 row_mask:0xf", "row_shr:8 row_mask:0xf",
                "row_bcast:15 row_mask:0xa", "row_bcast:31 row_mask:0xc"):
        for r in regs:
            bc = " bound_ctrl:0" if "shr" in ctl else ""
            A(f"v_add_f32_dpp v{r}, v{r}, v{r} {ctl} bank_mask:0xf{bc}")

def bf16_round(A, dst, src):
    A(f"v_cvt_pk_bf16_f32 v{dst}, v{src}, v{src}")
    A(f"v_lshlrev_b32 v{dst}, 16, v{dst}")

class VM:
    def __init__(self, A): self.A = A; self.ops = []
    def op(self, txt, tag): self.A(txt); self.ops.append(tag)
    def wait(self, *tags):
        idx = max((i for i, t in enumerate(self.ops) if t in tags), default=-1)
        if idx < 0: return
        n = len(self.ops) - 1 - idx
        assert n <= 63, n
        self.A(f"s_waitcnt vmcnt({n})")
        self.ops = self.ops[idx + 1:]
    def drain(self):
        self.A("s_waitcnt vmcnt(0)"); self.ops = []

class LG:
    def __init__(self, A): self.A = A; self.ops = []
    def op(self, txt, tag): self.A(txt); self.ops.append(tag)
    def wait(self, *tags):
        idx = max((i for i, t in enumerate(self.ops) if t in tags), default=-1)
        if idx < 0: return
        n = min(len(self.ops) - 1 - idx, 15)
        self.A(f"s_waitcnt lgkmcnt({n})")
        self.ops = self.ops[len(self.ops) - n:] if n else []
    def drain(self):
        self.A("s_waitcnt lgkmcnt(0)"); self.ops = []

def poll_loop(A, name, load, cmp_regs, tokv, cnt, sleep=2):
    A(f"s_mov_b32 s{cnt}, 0")
    A(f"{name}_poll:")
    A(load)
    A(f"s_add_u32 s{cnt}, s{cnt}, 1")
    A("s_waitcnt vmcnt(0)")
    check(A, cmp_regs, tokv)
    A(f"s_cbranch_vccz {name}_ok")
    A(f"s_cmp_gt_u32 s{cnt}, {0 if (O.only == 'C' and name in ('C_fa','C_fz','C_fi')) or (O.only == 'S' and name in ('S_fs', 'S_fg', 'S_ph')) else O.spin}")
    A(f"s_cbranch_scc1 {name}_ok")
    A(f"s_sleep {sleep}")
    A(f"s_branch {name}_poll")
    A(f"{name}_ok:")

def check(A, regs, tokv, tmp=None):
    if len(regs) == 1:
        A(f"v_cmp_ne_u32 vcc, v{regs[0]}, v{tokv}")
        return
    t = tmp if tmp is not None else 255
    A(f"v_xor_b32 v{t}, v{regs[0]}, v{tokv}")
    for r in regs[1:]:
        A(f"v_xor_b32 v{t-1}, v{r}, v{tokv}")
        A(f"v_or_b32 v{t}, v{t}, v{t-1}")
    A(f"v_cmp_ne_u32 vcc, 0, v{t}")

def gen_S(A):
    UB = 0; USZ = 17408
    KB = 2 * USZ + 64
    PAR = KB + 2 * KIMG_STRIDE
    XCH = PAR + 4352
    TBL = XCH + 8192 + 64
    XSL = TBL + 2 * 1344
    assert XSL + 8192 <= 81920
    XB = PAR
    assert XB + 16384 <= 81920
    W_ = f"s[{WSRD}:{WSRD+3}]"
    vm = VM(A)
    A("S_role:")
    if O.s_exit == 2: A("s_endpgm")
    if O.setprio_S: A(f"s_setprio {O.setprio_S}")
    A(f"""
s_sub_u32 s3, s2, 256            ; b
v_lshrrev_b32 v1, 6, v0          ; wave
v_and_b32 v2, 63, v0             ; lane
v_readfirstlane_b32 s20, v1
s_lshr_b32 s21, s20, 1           ; ch
s_and_b32 s22, s20, 1
s_lshl_b32 s23, s3, 1
s_add_u32 s23, s23, s21          ; d
s_and_b32 s24, s3, 7             ; xcd
s_lshr_b32 s25, s3, 3            ; j
s_lshl_b32 s16, s24, 8
s_lshl_b32 s17, s25, 3
s_add_u32 s16, s16, s17          ; LN r0
s_lshl_b32 s17, s20, 1
s_add_u32 s16, s16, s17
s_lshl_b32 s18, s16, 10
s_lshl_b32 s26, s24, 1
s_lshr_b32 s27, s25, 4
s_add_u32 s26, s26, s27
s_and_b32 s27, s25, 15           ; sl
v_lshlrev_b32 v3, 4, v2          ; lane*16
v_lshrrev_b32 v4, 2, v2
v_and_b32 v5, 3, v2
v_lshlrev_b32 v5, 4, v5
v_lshl_add_u32 v4, v4, 10, v5
s_lshl_b32 s28, s26, 17
s_lshl_b32 s29, s20, 15
s_add_u32 s28, s28, s29
s_lshl_b32 s29, s27, 6
s_add_u32 s28, s28, s29
s_lshl_b32 s29, s20, 11
s_add_u32 s29, s29, {XSL}
s_lshl_b32 s30, s23, 8
s_lshl_b32 s31, s22, 7
s_add_u32 s30, s30, s31
v_lshlrev_b32 v6, 1, v2
v_add_u32 v6, s30, v6
s_lshl_b32 s31, s23, 1
v_mov_b32 v7, s31
s_lshl_b32 s19, s3, 2
s_waitcnt lgkmcnt(0)
s_add_u32 s{P_WS}, s{P_WS}, {O.wsoff}
s_addc_u32 s{P_WS+1}, s{P_WS+1}, 0
s_load_dword s{TOK}, s[{P_WS}:{P_WS+1}], {EPOCH}
s_load_dword s63, s[{P_DSK}:{P_DSK+1}], s19
""")
    srd(A, 8, P_U, 2048 * 1024)
    srd(A, WSRD, P_WS, WS_BYTES - O.wsoff)
    vm.op(f"buffer_load_dwordx4 v[8:11], v3, s[8:11], s18 offen {O.x8_fl}", "x8")
    vm.op(f"buffer_load_dwordx4 v[12:15], v3, s[8:11], s18 offen offset:1024 {O.x8_fl}", "x8")
    for i, p in enumerate((P_LAR, P_AIM, P_CRE, P_CIM)):
        vm.op(f"global_load_ushort v{60+i}, v6, s[{p}:{p+1}] {O.par_fl}", "par")
    vm.op(f"global_load_ushort v64, v7, s[{P_LDT}:{P_LDT+1}]", "par")
    for j in range(2):
        A(f"s_add_u32 m0, s29, {1024*j}")
        A(f"s_add_u32 s31, s28, {16384*j}")
        if not O.no_xsl: vm.op(f"buffer_load_dwordx4 v4, s[8:11], s31 offen {O.xsl_fl} lds", "xsl")
    if O.pretouch:
        A("v_lshlrev_b32 v250, 20, v2")
        A("s_mov_b32 exec_lo, 0x3fffff\ns_mov_b32 exec_hi, 0")
        vm.op(f"buffer_load_dword v251, v250, {W_}, 0 offen offset:2048 nt", "pt")
        A("s_mov_b64 exec, 3")
        vm.op(f"global_load_dword v252, v250, s[{P_OUT}:{P_OUT+1}] nt", "pt")
        vm.op(f"global_load_dword v253, v250, s[{P_W2}:{P_W2+1}] nt", "pt")
        A("s_mov_b64 exec, -1")
    VN, VKQ, VI = 204, 205, 206
    VPW, VPR, VGR, VTR, VXT = 207, 208, 209, 210, 211
    VXS, VXP, VK0, VTB, VKZ, VKW, VFX, VUW = 212, 213, 214, 215, 216, 217, 218, 219
    VF, VG, VUU, VZ, VXW, VXR, VTOK, VZERO = 220, 221, 222, 223, 224, 225, 226, 227
    ONE2 = 228
    GA = 232
    A(f"""
s_mov_b32 s19, 0xffff0000
s_mov_b32 s12, {LOG2E}
s_mov_b32 s13, {INV2PI}
s_mul_i32 s14, s20, 1088
s_add_u32 s14, s14, {PAR}
v_lshrrev_b32 v{VKQ}, 4, v2
v_and_b32 v{VI}, 15, v2
v_lshl_add_u32 v{VPW}, v{VKQ}, 4, v3
v_add_u32 v{VPW}, s14, v{VPW}
v_mul_u32_u24 v{VPR}, 272, v{VKQ}
v_add_u32 v{VPR}, s14, v{VPR}
v_add_u32 v20, 1, v{VI}
v_cvt_f32_u32 v{VN}, v20
v_lshlrev_b32 v{VGR}, 6, v{VKQ}
v_bfe_u32 v21, v2, 2, 2
v_lshl_add_u32 v21, v{VKQ}, 3, v21
v_lshlrev_b32 v21, 6, v21
v_and_b32 v22, 3, v2
v_lshl_add_u32 v21, v22, 3, v21
v_add_u32 v{VTR}, s29, v21
v_mul_u32_u24 v{VXT}, {XG}, v{VI}
v_lshl_add_u32 v{VXT}, v{VKQ}, 4, v{VXT}
s_lshl_b32 s28, s20, 11
s_add_u32 s28, s28, {XCH}
v_add_u32 v{VXS}, s28, v3
s_xor_b32 s28, s20, 1
s_lshl_b32 s28, s28, 11
s_add_u32 s28, s28, {XCH}
v_add_u32 v{VXP}, s28, v3
s_lshl_b32 s28, s20, 3
s_add_u32 s28, s28, {XCH+8192}
v_mov_b32 v{VK0}, s28
v_xor_b32 v248, 8, v{VK0}
v_and_b32 v20, 15, v20
v_lshlrev_b32 v20, 5, v20
v_lshl_add_u32 v20, v{VKQ}, 3, v20
s_mul_i32 s32, s21, 1344
s_add_u32 s32, s32, {TBL}
v_add_u32 v{VTB}, s32, v20
s_mul_i32 s33, s21, {USZ}
s_mul_i32 s34, s21, {KIMG_STRIDE}
s_add_u32 s34, s34, {KB}
v_and_b32 v27, 127, v0                ; tau
v_lshlrev_b32 v30, 3, v27
v_add_u32 v{VKZ}, s34, v30
v_sub_u32 v30, 1008, v30
v_add_u32 v{VKW}, s34, v30
v_lshlrev_b32 v{VFX}, 2, v{VI}
s_mul_i32 s35, s22, {130*16}
s_add_u32 s28, s35, s33
v_add_u32 v{VUW}, s28, v3
s_mul_i32 s24, s23, {XG}
s_add_u32 s24, s24, s35
s_add_u32 s24, s24, {WS_XNT}          ; U src
v_and_b32 v20, 3, v2
v_bfe_u32 v21, v2, 2, 2
v_mul_u32_u24 v20, {XNT_STRIDE}, v20
v_add_u32 v21, v21, v{VKQ}
v_lshl_add_u32 v20, v21, 4, v20
s_lshl_b32 s31, s22, 8
s_add_u32 s28, s33, s31
v_add_u32 v{VF}, s28, v20
v_and_b32 v21, 1, v2
v_bfe_u32 v22, v2, 1, 3
v_mul_u32_u24 v20, {KCOPY}, v21
v_lshl_add_u32 v20, v{VKQ}, 4, v20
v_lshlrev_b32 v23, 6, v22
v_sub_u32 v20, v20, v23
s_add_u32 s28, s34, s31
s_add_u32 s28, s28, 448
v_add_u32 v{VG}, s28, v20
v_lshlrev_b32 v23, 5, v22
v_lshl_add_u32 v23, v21, 2, v23
v_lshl_add_u32 v23, v{VKQ}, 3, v23    ; P0
v_lshlrev_b32 v{VZ}, 1, v23
s_lshl_b32 s28, s22, 11
s_add_u32 s28, s28, s33
s_add_u32 s28, s28, {3*XNT_STRIDE + 48}
v_add_u32 v{VUU}, s28, v{VZ}
s_lshl_b32 s28, s20, 12
s_add_u32 s28, s28, {XB}
v_add_u32 v{VXW}, s28, v3
s_xor_b32 s28, s20, 1
s_lshl_b32 s28, s28, 12
s_add_u32 s28, s28, {XB}
v_add_u32 v{VXR}, s28, v3
v_mov_b32 v{VZERO}, 0
v_mov_b32 v{ONE2}, 1.0
v_mov_b32 v{ONE2+1}, 0
v_mov_b32 v230, 0
v_mov_b32 v231, 0
v_lshlrev_b32 v4, 2, v27
s_sub_u32 s28, s32, {2*(0x4280-3)}
s_mov_b32 s31, 0xffff
""")
    AD = 66
    for jj in range(4):
        for e in range(4): A(f"v_add_u32 v{AD+4*jj+e}, {512*jj+e}, v4")
    for i in range(16): A(f"v_cvt_f32_u32 v{GA+i}, v{AD+i}")
    for i in range(0, 16, 2): A(f"v_cvt_pk_bf16_f32 v{GA+i}, v{GA+i}, v{GA+i+1}")
    for i in range(0, 16, 2):
        A(f"v_lshrrev_b32 v{GA+i+1}, 16, v{GA+i}")
        A(f"v_and_b32 v{GA+i}, s31, v{GA+i}")
    for e in range(4):
        A(f"v_min_u32 v{AD+e}, 128, v{AD+e}")
        A(f"v_add_u32 v{AD+e}, 0x4280, v{AD+e}")
        A(f"v_max_u32 v{GA+e}, v{GA+e}, v{AD+e}")
    for i in range(16): A(f"v_lshl_add_u32 v{GA+i}, v{GA+i}, 1, s28")
    A("v_cmp_gt_u32 vcc, 69, v27")
    A("s_and_saveexec_b64 s[30:31], vcc")
    A(f"ds_write_b64 v{VKZ}, v[230:231] offset:4088")
    A("s_mov_b64 exec, -1")
    A("v_cmp_gt_u32 vcc, 56, v27")
    A("s_and_saveexec_b64 s[30:31], vcc")
    A(f"ds_write_b64 v{VKZ}, v[230:231] offset:8736")
    A("s_mov_b64 exec, -1")
    A("v_mov_b32 v40, 0x3b000000")
    A("s_waitcnt lgkmcnt(0)")
    A(f"s_mul_i32 s{TOK}, s{TOK}, 0x9e3779b1")
    A(f"s_add_u32 s{TOK}, s{TOK}, 0x7f4a7c15")
    A(f"v_mov_b32 v{VTOK}, s{TOK}")
    A(f"v_mov_b32 v41, s{TOK}")
    A(f"v_mov_b32 v43, s{TOK}")
    A("s_lshl_b32 s17, s16, 3")
    A(f"s_add_u32 s17, s17, {WS_STAT}")
    A(f"s_add_u32 s18, s18, {WS_XN}")
    A("v_mov_b32 v39, 0x3b000000")
    vm.wait("x8")
    stamp(A, 2)
    X = [16, 24]; Dd = [44, 52]; S = [32, 33]; M = [34, 36]; V = [35, 37]
    def pk(op, d, a_, b_, c_=None, mods=""):
        if c_ is None: A(f"{op} v[{d}:{d+1}], v[{a_}:{a_+1}], v[{b_}:{b_+1}] {mods}")
        else: A(f"{op} v[{d}:{d+1}], v[{a_}:{a_+1}], v[{b_}:{b_+1}], v[{c_}:{c_+1}] {mods}")
    for r in range(2):
        for i in range(4):
            A(f"v_lshlrev_b32 v{X[r]+2*i}, 16, v{8+4*r+i}")
            A(f"v_and_b32 v{X[r]+2*i+1}, s19, v{8+4*r+i}")
    for r in range(2): pk("v_pk_add_f32", Dd[r], X[r], X[r] + 2)
    for r in range(2): pk("v_pk_add_f32", Dd[r] + 2, X[r] + 4, X[r] + 6)
    for r in range(2): pk("v_pk_add_f32", Dd[r], Dd[r], Dd[r] + 2)
    for r in range(2): A(f"v_add_f32 v{S[r]}, v{Dd[r]}, v{Dd[r]+1}")
    dpp_sum(A, S)
    for r in range(2): A(f"v_readlane_b32 s{30+r}, v{S[r]}, 63")
    for r in range(2): A(f"v_mul_f32 v{M[r]}, s{30+r}, v39")
    for i in range(0, 8, 2):
        for r in range(2): pk("v_pk_add_f32", Dd[r] + i, X[r] + i, M[r], mods="op_sel_hi:[1,0] neg_lo:[0,1] neg_hi:[0,1]")
    for r in range(2): pk("v_pk_mul_f32", 8 + 4 * r, Dd[r], Dd[r])
    for i in range(2, 8, 2):
        for r in range(2): pk("v_pk_fma_f32", 8 + 4 * r, Dd[r] + i, Dd[r] + i, 8 + 4 * r)
    for r in range(2): A(f"v_add_f32 v{S[r]}, v{8+4*r}, v{9+4*r}")
    dpp_sum(A, S)
    for r in range(2): A(f"v_readlane_b32 s{30+r}, v{S[r]}, 63")
    for r in range(2): bf16_round(A, M[r], M[r])
    for r in range(2): A(f"v_mul_f32 v{V[r]}, s{30+r}, v39")
    for r in range(2): bf16_round(A, V[r], V[r])
    for r in range(2): A(f"v_add_f32 v{V[r]}, 0x3727c5ac, v{V[r]}")
    for r in range(2): bf16_round(A, V[r], V[r])
    for r in range(2): A(f"v_sqrt_f32 v{V[r]}, v{V[r]}")
    for i in range(0, 8, 2):
        for r in range(2): pk("v_pk_add_f32", Dd[r] + i, X[r] + i, M[r], mods="op_sel_hi:[1,0] neg_lo:[0,1] neg_hi:[0,1]")
    for r in range(2): A(f"v_cvt_pk_bf16_f32 v{40+2*r}, v{V[r]}, v{M[r]}")
    A("s_mov_b64 exec, 1")
    vm.op(f"buffer_store_dwordx4 v[40:43], v{VZERO}, {W_}, s17 offen sc1", "stat")
    A("s_mov_b64 exec, -1")
    for r in range(2): A(f"v_lshlrev_b32 v{V[r]}, 16, v{40+2*r}")
    for r in range(2): A(f"v_rcp_f32 v{V[r]}, v{V[r]}")
    for r in range(2):
        for i in range(4): A(f"v_cvt_pk_bf16_f32 v{8+4*r+i}, v{Dd[r]+2*i}, v{Dd[r]+2*i+1}")
    for r in range(2):
        for i in range(4):
            A(f"v_lshlrev_b32 v{Dd[r]+2*i}, 16, v{8+4*r+i}")
            A(f"v_and_b32 v{Dd[r]+2*i+1}, s19, v{8+4*r+i}")
    for i in range(0, 8, 2):
        for r in range(2): pk("v_pk_mul_f32", Dd[r] + i, Dd[r] + i, M[r], mods="op_sel:[0,1] op_sel_hi:[1,1]")
    for r in range(2):
        for i in range(4): A(f"v_cvt_pk_bf16_f32 v{8+4*r+i}, v{Dd[r]+2*i}, v{Dd[r]+2*i+1}")
    if not O.no_xn:
        vm.op(f"buffer_store_dwordx4 v[8:11], v3, {W_}, s18 offen sc1", "xn")
        vm.op(f"buffer_store_dwordx4 v[12:15], v3, {W_}, s18 offen offset:1024 sc1", "xn")
    stamp(A, 3)
    if O.s_exit == 1: A("s_endpgm")
    vm.wait("par")
    for i in range(5): A(f"v_lshlrev_b32 v{60+i}, 16, v{60+i}")
    A("v_mul_f32 v60, s12, v60\nv_mul_f32 v64, s12, v64\nv_exp_f32 v60, v60\nv_exp_f32 v64, v64")
    bf16_round(A, 60, 60); bf16_round(A, 64, 64)
    A("""
v_max_f32 v21, |v62|, |v63|
v_mul_f32 v16, v60, v64
v_mul_f32 v17, v61, v64
v_mul_f32 v16, s12, v16
v_sub_f32 v16, 0, v16
v_mul_f32 v17, s13, v17
v_mov_b32 v20, v62
""")
    for ctl in ("row_shr:1 row_mask:0xf", "row_shr:2 row_mask:0xf", "row_shr:4 row_mask:0xf", "row_shr:8 row_mask:0xf",
                "row_bcast:15 row_mask:0xa", "row_bcast:31 row_mask:0xc"):
        bc = " bound_ctrl:0" if "shr" in ctl else ""
        A(f"v_max_f32_dpp v21, v21, v21 {ctl} bank_mask:0xf{bc}")
        A(f"v_add_f32_dpp v20, v20, v20 {ctl} bank_mask:0xf{bc}")
    A("v_readlane_b32 s14, v21, 63")
    A("v_readlane_b32 s15, v20, 63")
    A("v_frexp_exp_i32_f32 v22, s14")
    A("v_sub_u32 v23, 0, v22")
    A("v_ldexp_f32 v18, v62, v23")
    A("v_ldexp_f32 v19, v63, v23")
    A(f"ds_write_b128 v{VPW}, v[16:19]")
    A("v_add_f32 v200, v64, v64")
    A("v_mov_b32 v201, v22")
    A("v_mov_b32 v21, s15")
    A(f"ds_write_b64 v{VK0}, v[21:22]".replace("v[21:22]", "v[202:203]") if False else "v_mov_b32 v202, s15")
    A("v_mov_b32 v203, v22")
    A(f"ds_write_b64 v{VK0}, v[202:203]")
    A("s_waitcnt lgkmcnt(0)")
    P = 32
    for m in range(16):
        A(f"ds_read_b128 v[{P+4*m}:{P+4*m+3}], v{VPR} offset:{16*m}")
        if m == 7: A("s_waitcnt lgkmcnt(4)")
    A("s_lshr_b32 s17, s16, 7")
    A("s_lshl_b32 s17, s17, 7")
    A("s_lshr_b32 s18, s16, 3")
    A("s_and_b32 s18, s18, 15")
    A("s_lshl_b32 s18, s18, 2")
    A("s_add_u32 s17, s17, s18")
    A(f"s_add_u32 s17, s17, {FA}")
    def flag(label, sreg, wave):
        A(f"s_cmp_lg_u32 s20, {wave}")
        A(f"s_cbranch_scc1 {label}")
        A("s_mov_b64 exec, 1")
        A(f"{FLAGOP()} v{VTOK}, v{VZERO}, {W_}, s{sreg} offen sc1")
        A("s_mov_b64 exec, -1")
        A(f"{label}:")
    vm.wait("xn")
    A("s_barrier")
    flag("S_nofa", 17, 0)
    A(f"s_setprio {O.prio_S1}")
    Dacc = 96; T = 112; L = 120; H = 136; t_ = 144
    A("ds_read_b64 v[250:251], v248")
    A("s_waitcnt lgkmcnt(0)")
    A("v_max_i32 v249, v251, v201")
    A("v_add_f32 v250, v250, v202")
    A("v_sub_u32 v251, 0, v249")
    A("v_ldexp_f32 v250, v250, v251")
    A("v_sub_u32 v201, v201, v249")
    A("v_ldexp_f32 v249, v200, v249")
    A("v_mov_b32 v248, v201")
    def sq():
        for j in range(4): pk("v_pk_mul_f32", t_ + 2*j, T + 2*j, T + 2*j, mods="op_sel_hi:[1,0]")
        for j in range(4): pk("v_pk_fma_f32", T + 2*j, T + 2*j, T + 2*j, t_ + 2*j, mods="op_sel:[1,1,0] op_sel_hi:[0,1,1] neg_lo:[1,0,0]")
    def group(g):
        pj = [P + 4 * (4 * g + j) for j in range(4)]
        for j in range(4): pk("v_pk_mul_f32", t_ + 2*j, pj[j], VN, mods="op_sel_hi:[1,0]")
        for j in range(4): A(f"v_exp_f32 v{t_+2*j}, v{t_+2*j}")
        for j in range(4): A(f"v_fract_f32 v{t_+2*j+1}, v{t_+2*j+1}")
        for j in range(4): A(f"v_cos_f32 v{T+2*j}, v{t_+2*j+1}")
        for j in range(4): A(f"v_sin_f32 v{T+2*j+1}, v{t_+2*j+1}")
        for j in range(4): pk("v_pk_mul_f32", T + 2*j, T + 2*j, t_ + 2*j, mods="op_sel_hi:[1,0]")
        for sgm in range(4):
            for j in range(4): A(f"v_cvt_pk_f16_f32 v{L+4*sgm+j}, v{T+2*j}, v{T+2*j+1}")
            sq()
        A("s_mov_b32 exec_lo, 0x80008000\ns_mov_b32 exec_hi, 0x80008000")
        for j in range(4): A(f"v_mov_b64 v[{T+2*j}:{T+2*j+1}], v[{ONE2}:{ONE2+1}]")
        A("s_mov_b64 exec, -1")
        for sgm in range(4):
            Hh = H + 4 * (sgm & 1)
            for j in range(4): pk("v_pk_mul_f32", t_ + 2*j, T + 2*j, pj[j] + 2, mods="op_sel_hi:[1,0] neg_hi:[1,0]")
            for j in range(4): pk("v_pk_fma_f32", t_ + 2*j, T + 2*j, pj[j] + 2, t_ + 2*j, mods="op_sel:[1,1,0] op_sel_hi:[0,1,1] neg_lo:[1,0,0] neg_hi:[1,0,0]")
            for j in range(4): A(f"v_cvt_pk_f16_f32 v{Hh+j}, v{t_+2*j}, v{t_+2*j+1}")
            if sgm < 3: sq()
            d = Dacc + 4 * sgm
            cc = "0" if g == 0 else f"v[{d}:{d+3}]"
            A(f"v_mfma_f32_16x16x32_f16 v[{d}:{d+3}], v[{L+4*sgm}:{L+4*sgm+3}], v[{Hh}:{Hh+3}], {cc}")
    def sqp():
        for j in range(4): A(f"v_mul_f32 v{t_+2*j}, v{T+2*j+1}, v{T+2*j+1}")
        for j in range(4): A(f"v_mul_f32_e64 v{T+2*j+1}, v{T+2*j}, v{T+2*j+1} mul:2")
        for j in range(4): A(f"v_fma_f32 v{T+2*j}, v{T+2*j}, v{T+2*j}, -v{t_+2*j}")
    def groupp(g):
        pj = [P + 4 * (4 * g + j) for j in range(4)]
        for j in range(4): A(f"v_mul_f32 v{t_+2*j}, v{pj[j]}, v{VN}")
        for j in range(4): A(f"v_mul_f32 v{t_+2*j+1}, v{pj[j]+1}, v{VN}")
        for j in range(4): A(f"v_exp_f32 v{t_+2*j}, v{t_+2*j}")
        for j in range(4): A(f"v_fract_f32 v{t_+2*j+1}, v{t_+2*j+1}")
        for j in range(4): A(f"v_cos_f32 v{T+2*j}, v{t_+2*j+1}")
        for j in range(4): A(f"v_sin_f32 v{T+2*j+1}, v{t_+2*j+1}")
        for j in range(4): A(f"v_mul_f32 v{T+2*j}, v{T+2*j}, v{t_+2*j}")
        for j in range(4): A(f"v_mul_f32 v{T+2*j+1}, v{T+2*j+1}, v{t_+2*j}")
        for sgm in range(4):
            for j in range(4): A(f"v_cvt_pk_f16_f32 v{L+4*sgm+j}, v{T+2*j}, v{T+2*j+1}")
            sqp()
        A("s_mov_b32 exec_lo, 0x80008000\ns_mov_b32 exec_hi, 0x80008000")
        for j in range(4):
            A(f"v_mov_b32 v{T+2*j}, 1.0")
            A(f"v_mov_b32 v{T+2*j+1}, 0")
        A("s_mov_b64 exec, -1")
        for sgm in range(4):
            Hh = H + 4 * (sgm & 1)
            for j in range(4): A(f"v_mul_f32 v{t_+2*j}, v{pj[j]+3}, v{T+2*j+1}")
            for j in range(4): A(f"v_mul_f32 v{t_+2*j+1}, v{pj[j]+3}, v{T+2*j}")
            for j in range(4): A(f"v_fma_f32 v{t_+2*j}, v{pj[j]+2}, v{T+2*j}, -v{t_+2*j}")
            for j in range(4): A(f"v_fma_f32 v{t_+2*j+1}, -v{pj[j]+2}, v{T+2*j+1}, -v{t_+2*j+1}")
            for j in range(4): A(f"v_cvt_pk_f16_f32 v{Hh+j}, v{t_+2*j}, v{t_+2*j+1}")
            if sgm < 3: sqp()
            d = Dacc + 4 * sgm
            A(f"v_mfma_f32_16x16x32_f16 v[{d}:{d+3}], v[{L+4*sgm}:{L+4*sgm+3}], v[{Hh}:{Hh+3}], v[{d}:{d+3}]")
    G = 160
    A("s_lshl_b32 s17, s26, 10")
    A("s_lshl_b32 s18, s20, 8")
    A("s_add_u32 s17, s17, s18")
    A(f"s_add_u32 s17, s17, {WS_STAT}")
    gload = "\n".join(f"buffer_load_dwordx4 v[{G+4*i}:{G+4*i+3}], v{VGR}, {W_}, s17 offen offset:{16*i} sc1" for i in range(4))
    A(gload)
    group(0)
    stamp(A, 4)
    A(f"s_setprio {O.prio_Sx}")
    XS = 176
    for c2 in range(2):
        for rd in range(2):
            pass
    A("s_waitcnt vmcnt(0)"); vm.ops = []
    for c2 in range(2):
        for rd in range(2):
            A(f"ds_read_b64_tr_b16 v[{XS+4*c2+2*rd}:{XS+4*c2+2*rd+1}], v{VTR} offset:{32*c2+256*rd}")
    toks = [G + 1 + 2 * i for i in range(8)]
    check(A, toks, VTOK)
    A("s_cbranch_vccz S_st_ok")
    poll_loop(A, "S_st", gload, toks, VTOK, 12)
    stamp(A, 5)
    MM = 184; E = 16
    for i in range(8):
        A(f"v_and_b32 v{MM+2*i}, s19, v{G+2*i}")
        A(f"v_lshlrev_b32 v{MM+2*i+1}, 16, v{G+2*i}")
    for i in range(8): A(f"v_rcp_f32 v{MM+2*i+1}, v{MM+2*i+1}")
    A(f"s_mul_i32 s17, s27, {32*XG}")
    A("s_lshl_b32 s18, s26, 8")
    A("s_add_u32 s17, s17, s18")
    A("s_lshl_b32 s18, s20, 6")
    A("s_add_u32 s17, s17, s18")
    A(f"s_add_u32 s17, s17, {WS_XNT + 64}")
    A(f"s_add_u32 s18, s17, {16*XG}")
    A("s_waitcnt lgkmcnt(0)")
    for i in range(4):
        A(f"v_lshlrev_b32 v{E+4*i}, 16, v{XS+i}")
        A(f"v_lshlrev_b32 v{E+4*i+1}, 16, v{XS+4+i}")
        A(f"v_and_b32 v{E+4*i+2}, s19, v{XS+i}")
        A(f"v_and_b32 v{E+4*i+3}, s19, v{XS+4+i}")
    for i in range(8): pk("v_pk_add_f32", E + 2*i, E + 2*i, MM + 2*i, mods="op_sel_hi:[1,0] neg_lo:[0,1] neg_hi:[0,1]")
    for i in range(8): A(f"v_cvt_pk_bf16_f32 v{G+i}, v{E+2*i}, v{E+2*i+1}")
    for i in range(8):
        A(f"v_lshlrev_b32 v{E+2*i}, 16, v{G+i}")
        A(f"v_and_b32 v{E+2*i+1}, s19, v{G+i}")
    for i in range(8): pk("v_pk_mul_f32", E + 2*i, E + 2*i, MM + 2*i, mods="op_sel:[0,1] op_sel_hi:[1,1]")
    for c2 in range(2):
        for i in range(4): A(f"v_cvt_pk_bf16_f32 v{XS+4*c2+i}, v{E+4*i+c2}, v{E+4*i+2+c2}")
    for i in range(8):
        A(f"v_lshlrev_b32 v{E+2*i}, 16, v{XS+i}")
        A(f"v_and_b32 v{E+2*i+1}, s19, v{XS+i}")
    for i in range(8): A(f"v_cvt_pk_f16_f32 v{XS+i}, v{E+2*i}, v{E+2*i+1}")
    for c2 in range(2):
        if not O.no_xnt: A(f"buffer_store_dwordx4 v[{XS+4*c2}:{XS+4*c2+3}], v{VXT}, {W_}, s{17+c2} offen sc1")
    A("s_cmp_lg_u32 s26, 0")
    A("s_cbranch_scc1 S_nopad")
    A("s_cmp_gt_u32 s20, 1")
    A("s_cbranch_scc1 S_nopad")
    A("v_lshrrev_b32 v19, 2, v2")
    A(f"v_mul_u32_u24 v19, {XG}, v19")
    A("v_and_b32 v18, 3, v2")
    A("v_lshl_add_u32 v19, v18, 4, v19")
    A("s_lshl_b32 s17, s27, 1")
    A("s_add_u32 s17, s17, s20")
    A(f"s_mul_i32 s17, s17, {16*XG}")
    A(f"s_add_u32 s17, s17, {WS_XNT}")
    for i in range(4): A(f"v_mov_b32 v{20+i}, 0")
    A(f"buffer_store_dwordx4 v[20:23], v19, {W_}, s17 offen sc1")
    A("S_nopad:")
    A(f"s_setprio {O.prio_S1}")
    group(1)
    A("s_lshl_b32 s17, s27, 7")
    A("s_lshl_b32 s18, s26, 2")
    A("s_add_u32 s17, s17, s18")
    A(f"s_add_u32 s17, s17, {FX}")
    A("s_waitcnt vmcnt(0)")
    A("s_barrier")
    flag("S_nofx", 17, 1)
    stamp(A, 6)
    A(f"s_setprio {O.prio_S2}")
    (groupp if O.plain23 else group)(2)
    A("s_lshr_b32 s17, s3, 4")
    A("s_lshl_b32 s17, s17, 7")
    A(f"s_add_u32 s17, s17, {FX}")
    fxload = f"buffer_load_dword v19, v{VFX}, {W_}, s17 offen sc1"
    (groupp if (O.plain23 or O.plain3) else group)(3)
    stamp(A, 7)
    A(f"s_setprio {O.prio_S3}")
    A(fxload)
    for r in range(16): A(f"v_ldexp_f32 v{Dacc+r}, v{Dacc+r}, v248")
    A("s_cmp_eq_u32 s22, 0")
    A("s_cbranch_scc0 S_mh1")
    for mh in range(2):
        if mh == 1: A("S_mh1:")
        keep = [2*mh, 2*mh+1]; send = [2-2*mh, 3-2*mh]
        for j in range(2):
            A(f"ds_write_b128 v{VXS}, v[{Dacc+4*send[j]}:{Dacc+4*send[j]+3}] offset:{1024*j}")
        A("s_waitcnt lgkmcnt(0)")
        A("s_barrier")
        for j in range(2): A(f"ds_read_b128 v[{32+4*j}:{32+4*j+3}], v{VXP} offset:{1024*j}")
        A("s_waitcnt lgkmcnt(0)")
        for j in range(2):
            for r in range(4): A(f"v_add_f32 v{32+4*j+r}, v{32+4*j+r}, v{Dacc+4*keep[j]+r}")
            A(f"v_cvt_pk_f16_f32 v{44+2*j}, v{32+4*j}, v{32+4*j+1}")
            A(f"v_cvt_pk_f16_f32 v{44+2*j+1}, v{32+4*j+2}, v{32+4*j+3}")
        if mh == 0:
            A("v_cvt_pk_f16_f32 v40, v250, v250")
            A("v_mov_b32 v41, s32")
            A("ds_write_b16 v41, v40 offset:6")
            A(f"ds_write_b64 v{VTB}, v[44:45] offset:8")
            A("s_mov_b32 exec_lo, 0x7f807f80\ns_mov_b32 exec_hi, 0x7f807f80")
            A(f"ds_write_b64 v{VTB}, v[46:47] offset:264")
        else:
            A("s_mov_b32 exec_lo, 0x7f807f80\ns_mov_b32 exec_hi, 0x7f807f80")
            A(f"ds_write_b64 v{VTB}, v[44:45] offset:520")
            A(f"ds_write_b64 v{VTB}, v[46:47] offset:776")
        A("s_mov_b64 exec, -1")
        if mh == 0: A("s_branch S_join")
    A("S_join:")
    A("s_waitcnt vmcnt(0)")
    A(f"v_cmp_ne_u32 vcc, v19, v{VTOK}")
    A("s_cbranch_vccz S_fx_ok")
    poll_loop(A, "S_fx", fxload, [19], VTOK, 12)
    stamp(A, 8)
    UR = 160
    for gi in range(3):
        if gi == 2: A("s_mov_b64 exec, 3")
        A(f"buffer_load_dwordx2 v[{UR+6*gi}:{UR+6*gi+1}], v3, {W_}, s24 offen offset:{1024*gi+8} sc1")
        A(f"buffer_load_dwordx4 v[{UR+6*gi+2}:{UR+6*gi+5}], v3, {W_}, s24 offen offset:{1024*gi+16} sc1")
    A("s_mov_b64 exec, -1")
    A("s_waitcnt lgkmcnt(0)")
    A("s_barrier")
    for i in range(16):
        A(f"ds_read_u16 v{80+i}, v{GA+i}")
        if i == 11: A("s_waitcnt lgkmcnt(4)")
    for jj in range(4):
        b = 80 + 4 * jj
        A(f"s_waitcnt lgkmcnt({[4,4+2,4+4,6][jj] if jj < 3 else 6})" if False else "")
        if jj == 0: A("s_waitcnt lgkmcnt(0)")
        A(f"v_lshl_or_b32 v{96+2*jj}, v{b+2}, 16, v{b+3}")
        A(f"v_lshl_or_b32 v{96+2*jj+1}, v{b}, 16, v{b+1}")
        A(f"ds_write_b64 v{VKW}, v[{96+2*jj}:{96+2*jj+1}] offset:{1024*(3-jj)}")
        A(f"ds_write_b64 v{VKW}, v[{96+2*jj}:{96+2*jj+1}] offset:{KCOPY + 8 + 1024*(3-jj)}")
    for gi in range(3):
        A(f"s_waitcnt vmcnt({4-2*gi})")
        if gi == 2: A("s_mov_b64 exec, 3")
        r = UR + 6 * gi
        t0 = 180 + 12 * (gi & 1)
        for k_ in range(4): A(f"v_alignbyte_b32 v{t0+k_}, v{r+k_+1}, v{r+k_}, 2")
        for k_ in range(4): A(f"v_mov_b32 v{t0+4+k_}, v{r+1+k_}")
        for k_ in range(4): A(f"v_alignbyte_b32 v{t0+8+k_}, v{r+k_+2}, v{r+k_+1}, 2")
        A(f"ds_write_b128 v{VUW}, v[{r+2}:{r+5}] offset:{1024*gi + XNT_STRIDE*3}")
        for sg_ in range(3):
            A(f"ds_write_b128 v{VUW}, v[{t0+4*sg_}:{t0+4*sg_+3}] offset:{1024*gi + XNT_STRIDE*sg_}")
        if gi == 1: A("s_waitcnt lgkmcnt(4)")
    A("s_mov_b64 exec, -1")
    if O.s_xpf:
        A("s_lshl_b32 s17, s16, 10")
        A("buffer_load_dwordx4 v[24:27], v3, s[8:11], s17 offen")
        A("buffer_load_dwordx4 v[28:31], v3, s[8:11], s17 offen offset:1024")
    ACC = 32
    FR = [64, 128]
    def rd(buf, ph, i):
        m = i >> 1
        if i & 1 == 0: A(f"ds_read_b128 v[{FR[buf]+4*m}:{FR[buf]+4*m+3}], v{VF} offset:{512*m+64*ph}")
        else: A(f"ds_read_b128 v[{FR[buf]+32+4*m}:{FR[buf]+32+4*m+3}], v{VG} offset:{3584-512*m+64*ph}")
    if O.s_w2:
        srd(A, 8, P_W2, 1792 * 1024)
        A("s_lshr_b32 s17, s3, 3")
        A("s_mul_i32 s17, s17, 57344")
        A("s_mul_i32 s18, s20, 14336")
        A("s_add_u32 s17, s17, s18")
        for i in range(14):
            if i >= O.s_w2_depth: A(f"s_waitcnt vmcnt({O.s_w2_depth-1})")
            A(f"buffer_load_dwordx4 v[{104+4*(i%4)}:{104+4*(i%4)+3}], v3, s[8:11], s17 offen")
            A("s_add_u32 s17, s17, 1024")
        A("s_waitcnt vmcnt(0)")
    if O.use_hint:
        A("s_cmp_lg_u32 s20, 0")
        A("s_cbranch_scc1 S_fg_ok")
        A("s_lshr_b32 s17, s3, 4")
        A("s_lshl_b32 s17, s17, 7")
        A("s_and_b32 s18, s3, 15")
        A("s_lshl_b32 s18, s18, 2")
        A("s_add_u32 s17, s17, s18")
        A(f"s_add_u32 s17, s17, {FG}")
        poll_loop(A, "S_fg", f"buffer_load_dword v19, v{VZERO}, {W_}, s17 offen sc1", [19], VTOK, 12, sleep=8)
    A("s_waitcnt lgkmcnt(0)")
    A("s_barrier")
    stampw(A, 9)
    A(f"s_setprio {O.prio_Sc}")
    prods = sorted([(m, e) for m in range(8) for e in range(8) if m + e <= 7], key=lambda p: (max(p), p))
    for i in range(14): rd(0, 0, i)
    seen = set()
    UU = 192
    for ph in range(4):
        buf = ph & 1
        nxt = list(range(16)) if ph < 3 else []
        if ph > 0: A("s_waitcnt lgkmcnt(0)")
        if ph == 3:
            for j in range(4): A(f"ds_read_b64 v[{UU+2*j}:{UU+2*j+1}], v{VUU} offset:{512*j}")
        lasts = -1; issued0 = 14
        for n, (m, e) in enumerate(prods):
            sidx = max(m, e)
            if ph == 0 and sidx != lasts:
                if sidx == 1:
                    for i in (14, 15): rd(0, 0, i)
                    issued0 = 16
                if sidx <= 4: A(f"s_waitcnt lgkmcnt({issued0 - (2*sidx+2)})")
                elif sidx == 5: A("s_waitcnt lgkmcnt(0)")
                lasts = sidx
            c = m + e
            cc = f"v[{ACC+4*c}:{ACC+4*c+3}]" if c in seen else "0"
            seen.add(c)
            A(f"v_mfma_f32_16x16x32_f16 v[{ACC+4*c}:{ACC+4*c+3}], v[{FR[buf]+4*m}:{FR[buf]+4*m+3}], v[{FR[buf]+32+4*e}:{FR[buf]+32+4*e+3}], {cc}")
            if nxt and (ph > 0 or sidx >= 5):
                cnt = 1 if ph > 0 else 2
                if ph > 0 and n % 2 == 1: cnt = 0
                for _ in range(cnt):
                    if nxt and (16 - len(nxt)) < 15: rd(buf ^ 1, ph + 1, nxt.pop(0))
            if ph == 3:
                if n == 4:
                    A("s_waitcnt lgkmcnt(0)")
                    A("s_lshl_b32 s30, s63, 16")
                    A("s_and_b32 s31, s63, 0xffff0000")
                    A("s_cmp_eq_u32 s21, 0")
                    A("s_cselect_b32 s30, s30, s31")
                if 5 <= n < 13:
                    i = n - 5
                    A(f"v_cvt_f32_f16 v{64+2*i}, v{UU+i}")
                    A(f"v_lshrrev_b32 v{64+2*i+1}, 16, v{UU+i}")
                    A(f"v_cvt_f32_f16 v{64+2*i+1}, v{64+2*i+1}")
                if 13 <= n < 21:
                    i = n - 13
                    A(f"v_mul_f32 v{64+2*i}, s30, v{64+2*i}")
                    A(f"v_mul_f32 v{64+2*i+1}, s30, v{64+2*i+1}")
                    A(f"v_cvt_pk_bf16_f32 v{UU+i}, v{64+2*i}, v{64+2*i+1}")
                if 21 <= n < 29:
                    i = n - 21
                    A(f"v_lshlrev_b32 v{64+2*i}, 16, v{UU+i}")
                    A(f"v_and_b32 v{64+2*i+1}, s19, v{UU+i}")
        if nxt:
            A("s_waitcnt lgkmcnt(4)")
            while nxt: rd(buf ^ 1, ph + 1, nxt.pop(0))
    stamp(A, 10)
    A(f"s_setprio {O.prio_S4}")
    A("s_lshl_b32 s17, s23, 12")
    A("s_lshl_b32 s18, s22, 11")
    A("s_add_u32 s17, s17, s18")
    A(f"s_add_u32 s17, s17, {WS_ZP}")
    A("s_cmp_eq_u32 s22, 0")
    A("s_cbranch_scc0 S_e1")
    for hf in range(2):
        if hf == 1: A("S_e1:")
        keep = ACC + 16 * hf; send = ACC + 16 * (1 - hf)
        for c in range(4): A(f"ds_write_b128 v{VXW}, v[{send+4*c}:{send+4*c+3}] offset:{1024*c}")
        A("s_waitcnt lgkmcnt(0)")
        A("s_barrier")
        for c in range(4): A(f"ds_read_b128 v[{80+4*c}:{80+4*c+3}], v{VXR} offset:{1024*c}")
        for c in range(4):
            A(f"s_waitcnt lgkmcnt({3-c})")
            for i in range(4): A(f"v_add_f32 v{80+4*c+i}, v{80+4*c+i}, v{keep+4*c+i}")
        if hf == 0: A("s_branch S_e2")
    A("S_e2:")
    for i in range(16): A(f"v_mul_f32 v{80+i}, v{80+i}, v249")
    for i in range(8): A(f"v_cvt_pk_bf16_f32 v{96+i}, v{80+2*i}, v{80+2*i+1}")
    for i in range(8):
        A(f"v_lshlrev_b32 v{80+2*i}, 16, v{96+i}")
        A(f"v_and_b32 v{80+2*i+1}, s19, v{96+i}")
    for i in range(16): A(f"v_add_f32 v{80+i}, v{80+i}, v{64+i}")
    for i in range(8): A(f"v_cvt_pk_bf16_f32 v{96+i}, v{80+2*i}, v{80+2*i+1}")
    for c in range(4):
        A(f"buffer_store_dwordx2 v[{96+2*c}:{96+2*c+1}], v{VZ}, {W_}, s17 offen offset:{512*c} sc1")
    A("s_lshl_b32 s17, s3, 2")
    A(f"s_add_u32 s17, s17, {FZ}")
    A("s_waitcnt vmcnt(0)")
    A("s_barrier")
    stamp(A, 11)
    flag("S_nofz", 17, 0)
    if O.s_h:
        A("s_and_b32 s24, s3, 7")
        A("s_lshr_b32 s25, s3, 3")
        A("s_lshl_b32 s17, s24, 1")
        A("s_lshr_b32 s18, s25, 4")
        A("s_add_u32 s17, s17, s18")
        A("s_lshl_b32 s17, s17, 7")
        A("s_and_b32 s18, s25, 3")
        A("s_mul_i32 s18, s18, 7")
        A("s_lshr_b32 s18, s18, 1")
        A("s_lshl_b32 s18, s18, 2")
        A("s_add_u32 s17, s17, s18")
        A(f"s_add_u32 s17, s17, {FH}")
        A(f"v_min_u32 v24, 12, v{VFX}")
        poll_loop(A, "S_ph", f"buffer_load_dword v19, v24, {W_}, s17 offen sc1", [19], VTOK, 12, sleep=4)
        A(f"s_mul_i32 s17, s24, {896*1024}")
        A(f"s_mul_i32 s18, s25, {28*1024}")
        A("s_add_u32 s17, s17, s18")
        A(f"s_mul_i32 s18, s20, {7*1024}")
        A("s_add_u32 s17, s17, s18")
        A(f"s_add_u32 s17, s17, {WS_H}")
        for i in range(7):
            A(f"buffer_load_dwordx4 v[{104+4*i}:{104+4*i+3}], v3, {W_}, s17 offen sc1")
            A("s_add_u32 s17, s17, 1024")
    A("s_cmp_lg_u32 s20, 1")
    A("s_cbranch_scc1 S_fin")
    A("s_cmp_lg_u32 s3, 0")
    A("s_cbranch_scc1 S_fin")
    A(f"s_mov_b32 s17, {FH}")
    A("v_lshrrev_b32 v24, 2, v2")
    A("v_lshlrev_b32 v24, 7, v24")
    A("v_and_b32 v25, 3, v2")
    A("v_lshl_add_u32 v24, v25, 4, v24")
    poll_loop(A, "S_fs", f"buffer_load_dwordx4 v[20:23], v24, {W_}, s17 offen sc1", [20, 21, 22, 23], VTOK, 12, sleep=16)
    A(f"s_mov_b32 s17, {EPOCH}")
    A("s_mov_b64 exec, 1")
    A(f"buffer_store_dword v{VTOK}, v{VZERO}, {W_}, s17 offen sc1")
    A("s_mov_b64 exec, -1")
    A("S_fin:")
    stamp_out(A, 12)
    A("s_endpgm")

def gen_C(A):
    vm = VM(A); lg = LG(A)
    A("C_role:")
    if O.setprio_C: A(f"s_setprio {O.setprio_C}")
    XS_ = 16896
    XSA = [65024, 33792, 0, 16896]
    SLA = [0, 8192, 16384, 24576, 32768, 40960, 58880, 67072, 50688]
    def sl_off(sl, lo, hi):
        a_ = SLA[sl]
        return (lo, a_) if a_ + 8192 <= 65536 else (hi, a_ - 32768)
    A(f"""
v_lshrrev_b32 v1, 6, v0
v_and_b32 v2, 63, v0
v_readfirstlane_b32 s20, v1       ; w
s_and_b32 s21, s2, 7              ; xcd
s_lshr_b32 s22, s2, 3             ; idx 0..31
s_lshr_b32 s23, s21, 1
s_lshl_b32 s23, s23, 2
s_and_b32 s24, s22, 3
s_add_u32 s23, s23, s24           ; rb
s_lshl_b32 s33, s24, 1            ; 2r
s_and_b32 s24, s21, 1
s_mul_i32 s24, s24, 7
s_lshr_b32 s25, s22, 2            ; c
s_add_u32 s24, s24, s25           ; ct
s_lshr_b32 s29, s21, 2
s_add_u32 s33, s33, s29
s_and_b32 s96, s33, {7 if O.rot1 else 0}
v_lshlrev_b32 v3, 4, v2           ; lane*16
v_lshrrev_b32 v7, 4, v2
v_and_b32 v6, 15, v2
v_lshlrev_b32 v8, 2, v7
v_xor_b32 v6, v6, v8
v_lshlrev_b32 v6, 4, v6
v_mul_u32_u24 v8, 3584, v7
v_add_u32 v6, v6, v8
s_mul_i32 s27, s20, {16*3584}
s_lshl_b32 s28, s24, 8
s_add_u32 s27, s27, s28
s_lshl_b32 s28, s20, 12           ; w*4096
v_and_b32 v9, 31, v2              ; lr
v_lshrrev_b32 v7, 5, v2           ; h
s_waitcnt lgkmcnt(0)
s_add_u32 s{P_WS}, s{P_WS}, {O.wsoff}
s_addc_u32 s{P_WS+1}, s{P_WS+1}, 0
s_load_dword s{TOK}, s[{P_WS}:{P_WS+1}], {EPOCH}
""")
    srd(A, WSRD, P_WS, WS_BYTES - O.wsoff)
    srd(A, 8, P_W1, 512 * 3584)
    srd(A, 12, P_U, 2048 * 1024)
    srd(A, 16, P_W2, 1792 * 1024)
    NS = 28; RS_ = 9; HD = O.hd; NRA = O.nra
    A(f"""
s_lshl_b32 s36, s21, 2
s_and_b32 s37, s22, 3
s_add_u32 s36, s36, s37
s_lshr_b32 s37, s22, 2            ; dtb
s_mul_i32 s38, s37, 7
s_lshr_b32 s38, s38, 1
s_and_b32 s29, s22, 3
s_mul_i32 s29, s29, 7
s_add_u32 s38, s38, s29
s_sub_u32 s29, s38, 28
s_cmp_ge_u32 s38, 28
s_cmov_b32 s38, s29
s_and_b32 s38, s38, {31 if O.rot2 else 0}
v_lshrrev_b32 v4, 3, v2
v_and_b32 v5, 7, v2
v_bfe_u32 v8, v2, 4, 1
v_lshlrev_b32 v8, 2, v8
v_xor_b32 v5, v5, v8
v_lshlrev_b32 v5, 4, v5
v_lshl_add_u32 v4, v4, 10, v5
s_mul_i32 s39, s20, {28*16*1024}
s_lshl_b32 s29, s37, 7
s_add_u32 s39, s39, s29           ; w2 start
s_add_u32 s40, s39, {28*16384}    ; w2 end
s_lshl_b32 s29, s38, 14
s_add_u32 s41, s39, s29           ; w2 cur
s_lshl_b32 s30, s20, 11
""")
    A(f"""
s_lshr_b32 s29, s20, 1
s_lshl_b32 s29, s29, 5
s_lshl_b32 s34, s36, 6
s_add_u32 s34, s34, s29
s_lshl_b32 s34, s34, 10
s_lshl_b32 s29, s37, 7
s_add_u32 s34, s34, s29
s_and_b32 s29, s20, 1
s_lshl_b32 s29, s29, 6
s_add_u32 s34, s34, s29
v_lshlrev_b32 v8, 10, v9
v_lshl_add_u32 v8, v7, 3, v8
""")
    A("s_mov_b32 s98, s34")
    A("v_mov_b32 v51, v8")
    def xtile(track=True, xa=51):
        for g in range(4):
            t = f"buffer_load_dwordx2 v[{18+2*g}:{18+2*g+1}], v{xa}, s[12:15], s98 offen offset:{16*g} {O.xe_fl}"
            vm.op(t, "x") if track else A(t)
    if O.xt_at == -1: xtile()
    SL = [9, 0, 1, 2, 3, 4, 5, 6, 7, 8]
    RA = 64; ACC2 = 192; HR = 32
    class W2:
        nd = 0; nr = 0; slot = {}; free = []; pend = []; maxread = 0
    def areg(st): return RA + 8 * (st % NRA)
    def w2_dma():
        st = W2.nd
        if st >= NS: return False
        if not W2.free:
            if not W2.pend: return False
            tag, sl = W2.pend.pop(0); lg.wait(tag); W2.free.append(sl)
        sl = W2.free.pop(0); W2.slot[st] = sl
        for j in range(2):
            A(f"s_add_u32 m0, s30, {SLA[sl] + 1024*j}")
            if j: A("s_add_u32 s29, s41, 8192")
            vm.op(f"buffer_load_dwordx4 v4, s[16:19], {'s29' if j else 's41'} offen {O.w2_fl} lds", f"w{st}")
        A("s_add_u32 s41, s41, 16384")
        A("s_cmp_eq_u32 s41, s40")
        A("s_cmov_b32 s41, s39")
        W2.nd += 1
        return True
    def w2_read():
        st = W2.nr
        if st >= W2.nd or st >= W2.maxread: return False
        sl = W2.slot[st]; dst = areg(st)
        vm.wait(f"w{st}")
        for u in range(2):
            for rd in range(2):
                lg.op(f"ds_read_b64_tr_b16 v[{dst+4*u+2*rd}:{dst+4*u+2*rd+1}], v{sl_off(sl, 14, 16)[0]+u} offset:{sl_off(sl, 14, 16)[1]+1024*rd}", f"r{st}")
        W2.pend.append((f"r{st}", sl)); W2.nr += 1
        return True
    def g2_setup():
        A(f"""
s_mul_i32 s42, s36, 224
s_mul_i32 s29, s20, 28
s_add_u32 s42, s42, s29
s_lshl_b32 s42, s42, 10
s_add_u32 s42, s42, {WS_H}        ; h start
s_add_u32 s43, s42, {28*1024}     ; h end
s_lshl_b32 s29, s38, 10
s_add_u32 s48, s42, s29           ; h cur
s_lshr_b32 s29, s20, 1
s_mul_i32 s29, s29, {112*1024}
v_add_u32 v52, s29, v3
s_xor_b32 s29, s29, {112*1024}
v_add_u32 v5, s29, v3
s_and_b32 s31, s20, 1
s_lshr_b32 s32, s20, 1
s_lshl_b32 s33, s36, 6
s_lshl_b32 s34, s32, 5
s_add_u32 s33, s33, s34
s_lshl_b32 s34, s37, 6
s_lshl_b32 s35, s31, 5
s_add_u32 s34, s34, s35           ; d base
s_lshl_b32 s35, s33, 10
s_lshl_b32 s29, s34, 1
s_add_u32 s94, s35, s29
s_lshl_b32 s95, s34, 12
s_lshl_b32 s29, s33, 1
s_add_u32 s95, s95, s29
s_add_u32 s95, s95, {WS_ZP}
v_lshrrev_b32 v28, 2, v2
v_and_b32 v10, 3, v2
v_lshlrev_b32 v10, 4, v10
v_lshl_add_u32 v28, v28, 12, v10
v_bfe_u32 v10, v2, 2, 2
v_and_b32 v11, 3, v2
v_bfe_u32 v12, v2, 4, 1
v_lshl_add_u32 v13, v7, 2, v10
v_lshlrev_b32 v13, 7, v13
v_lshl_add_u32 v13, v12, 5, v13
v_lshl_add_u32 v13, v11, 3, v13
v_add_u32 v13, s30, v13
v_lshrrev_b32 v10, 1, v10
v_xor_b32 v10, s31, v10
v_lshl_add_u32 v14, v10, 6, v13
v_xor_b32 v10, 1, v10
v_lshl_add_u32 v15, v10, 6, v13
v_add_u32 v16, 0x8000, v14
v_add_u32 v17, 0x8000, v15
s_lshr_b32 s45, s36, 1
s_lshl_b32 s45, s45, 7
s_add_u32 s45, s45, {FH}
s_lshl_b32 s46, s37, 7
s_add_u32 s46, s46, {FZ}
v_lshlrev_b32 v29, 2, v9
s_mul_i32 s29, s20, 7
s_lshr_b32 s29, s29, 1
s_lshl_b32 s29, s29, 2
v_min_u32 v30, 12, v29
v_add_u32 v30, s29, v30
v_bfe_u32 v10, v2, 2, 2
v_lshl_add_u32 v10, v7, 2, v10    ; 4h + r
v_lshlrev_b32 v10, 6, v10
v_lshl_add_u32 v10, v12, 5, v10
v_lshl_add_u32 v10, v11, 3, v10
v_add_u32 v12, s30, v10
v_add_u32 v13, 0x8000, v12
v_add_u32 v10, s30, v3
v_add_u32 v11, 0x8000, v10
v_lshlrev_b32 v8, 10, v9
v_lshl_add_u32 v8, v7, 4, v8
""")
        A("v_mov_b32 v255, v52")
    def token_and_started(track):
        A("s_waitcnt lgkmcnt(0)")
        A(f"s_mul_i32 s{TOK}, s{TOK}, 0x9e3779b1")
        A(f"s_add_u32 s{TOK}, s{TOK}, 0x7f4a7c15")
        A(f"v_mov_b32 v26, s{TOK}")
        A("v_mov_b32 v27, 0")
        A("s_lshr_b32 s97, s2, 4")
        A("s_lshl_b32 s97, s97, 7")
        A("s_and_b32 s29, s2, 15")
        A("s_lshl_b32 s29, s29, 2")
        A("s_add_u32 s97, s97, s29")
        A(f"s_add_u32 s97, s97, {FG}")
        if track: return
        A("s_cmp_lg_u32 s20, 1")
        A("s_cbranch_scc1 C_noidf")
        A("s_sub_u32 s34, s22, 28")
        A("s_lshl_b32 s34, s34, 3")
        A("s_add_u32 s34, s34, s21")
        A("s_lshr_b32 s29, s34, 1")
        A("s_lshl_b32 s29, s29, 7")
        A("s_and_b32 s34, s34, 1")
        A("s_lshl_b32 s34, s34, 2")
        A("s_add_u32 s34, s34, s29")
        A(f"s_add_u32 s34, s34, {FH + 56}")
        A("s_mov_b64 exec, 1")
        A(f"buffer_store_dword v26, v27, s[{WSRD}:{WSRD+3}], s34 offen sc1")
        if O.use_hint: A(f"buffer_store_dword v26, v27, s[{WSRD}:{WSRD+3}], s97 offen sc1")
        A("s_mov_b64 exec, -1")
        A("C_noidf:")
    def warm_w2():
        A("s_sub_u32 s34, s22, 28")
        A("s_lshl_b32 s34, s34, 2")
        A("s_add_u32 s34, s34, s20")
        A(f"s_mul_i32 s34, s34, {112*1024}")
        A(f"s_add_u32 s35, s34, {112*1024}")
        A(f"s_mul_i32 s29, s21, {14*1024}")
        A("s_add_u32 s33, s34, s29")
        A("s_lshl_b32 s29, s20, 10")
        A("s_mov_b32 m0, s29")
        A("s_mov_b32 s32, 0")
        A("C_warm:")
        for i in range(2):
            A(f"s_waitcnt vmcnt({O.warm_depth-1})")
            A("buffer_load_dwordx4 v3, s[16:19], s33 offen lds")
            A("s_add_u32 s33, s33, 1024")
        A("s_cmp_eq_u32 s33, s35")
        A("s_cmov_b32 s33, s34")
        A("s_add_u32 s32, s32, 1")
        A(f"s_cmp_lt_u32 s32, {O.warm_n}")
        A("s_cbranch_scc1 C_warm")
    A("s_cmp_ge_u32 s22, 28")
    A("s_cbranch_scc1 C_idle")
    def dma_w(st):
        A(f"s_add_u32 s29, s96, {st}")
        A("s_and_b32 s29, s29, 7")
        A(f"s_mul_i32 s31, s29, {64*3584}")
        A("s_add_u32 s31, s31, s27")
        for j in range(4):
            A(f"s_add_u32 m0, s28, {(st % 3)*16384 + 1024*j}")
            if j: A(f"s_add_u32 s31, s31, {4*3584}")
            dep = O.w1depth0 if st < O.w1sw else O.w1depth
            if dep and len(vm.ops) >= dep:
                A(f"s_waitcnt vmcnt({dep-1})"); vm.ops = vm.ops[-(dep-1):]
            vm.op(f"buffer_load_dwordx4 v6, s[8:11], s31 offen {O.w1_fl} lds", f"a{st}")
    for st in range(2): dma_w(st)
    g2_setup()
    dma_w(2)
    stamp(A, 2)
    A(f"""
v_bfe_u32 v40, v2, 2, 2           ; r
v_and_b32 v41, 3, v2              ; c
v_bfe_u32 v42, v2, 4, 1           ; g16
v_lshl_add_u32 v43, v7, 3, v40
v_lshlrev_b32 v43, 8, v43
v_lshl_add_u32 v43, v42, 5, v43
v_lshl_add_u32 v43, v41, 3, v43
v_xor_b32 v248, s20, v40
v_lshl_add_u32 v248, v248, 6, v43
v_add_u32 v249, 0x10000, v248
v_xor_b32 v250, v9, v7
s_lshl_b32 s29, s96, 3
v_add_u32 v250, s29, v250
v_add_u32 v251, 32, v250
v_and_b32 v250, 63, v250
v_and_b32 v251, 63, v251
v_lshlrev_b32 v250, 4, v250
v_lshlrev_b32 v251, 4, v251
v_lshl_add_u32 v250, v7, 10, v250
v_lshl_add_u32 v251, v7, 10, v251
v_lshrrev_b32 v252, 1, v9
v_mul_u32_u24 v252, 1056, v252
v_and_b32 v254, 1, v9
v_lshl_add_u32 v252, v254, 9, v252
v_xor_b32 v254, v254, v7
v_lshl_add_u32 v252, v254, 4, v252
v_add_u32 v254, 65024, v252
s_lshl_b32 s26, s23, 17
s_lshl_b32 s29, s20, 13
s_add_u32 s26, s26, s29
s_add_u32 s26, s26, {WS_XN}
s_mul_i32 s32, s20, {4*1056}
s_lshl_b32 s35, s23, 7
s_add_u32 s35, s35, {FA}
v_and_b32 v253, 15, v2
v_lshlrev_b32 v253, 2, v253
s_mul_i32 s34, s23, 448
s_lshl_b32 s29, s24, 3
s_add_u32 s34, s34, s29
s_lshl_b32 s29, s20, 1
s_add_u32 s34, s34, s29
s_lshl_b32 s34, s34, 10
s_add_u32 s49, s34, {WS_H}
""")
    A("s_lshr_b32 s29, s23, 1")
    A("s_cmp_eq_u32 s29, s21")
    A("s_cselect_b32 s99, 1, 0")
    token_and_started(True)
    W = 64
    def tile_off(t, dst, mul, base):
        A(f"s_add_u32 s29, s25, {t}")
        A("s_and_b32 s29, s29, 3")
        A(f"s_mul_i32 s{dst}, s29, {mul}")
        A(f"s_add_u32 s{dst}, s{dst}, s{base}")
    def dma_x(sg, i):
        t, hf = sg >> 1, sg & 1
        if i == 0: tile_off(t, 31, 32768, 26)
        else: A("s_add_u32 s31, s31, 2048")
        A(f"s_add_u32 m0, s32, {XSA[sg & 3] + 1056*i}")
        vm.op(f"buffer_load_dwordx4 v{250+hf}, s[{WSRD}:{WSRD+3}], s31 offen sc1 lds", f"x{sg}")
    faload = f"buffer_load_dword v31, v253, s[{WSRD}:{WSRD+3}], s35 offen sc1"
    for st in range(8):
        vm.wait(f"a{st}")
        if st == O.fa_check:
            A("s_cmp_lg_u32 s20, 0")
            A("s_cbranch_scc1 C_fa_ok")
            poll_loop(A, "C_fa", faload, [31], 26, 29, sleep=O.fa_sleep)
            stamp(A, 5)
        if st: A("s_waitcnt lgkmcnt(0)")
        A("s_barrier")
        if st == O.fa_check:
            for i in range(4): dma_x(0, i)
        if st == 0: stampw(A, 3)
        for ks in range(4):
            for rd in range(2):
                A(f"ds_read_b64_tr_b16 v[{W+16*st+4*ks+2*rd}:{W+16*st+4*ks+2*rd+1}], v248 offset:{(st%3)*16384+4096*ks+1024*rd}")
        if st >= 1 and st + 2 < 8: dma_w(st + 2)
        if st == max(6, O.fa_check):
            for i in range(4): dma_x(1, i)
    A("s_waitcnt lgkmcnt(0)")
    stamp(A, 4)
    if O.stop == 1:
        for i in range(5, 12): stamp(A, i)
        stamp_out(A, 12); A("s_endpgm")
    AC = [192, 208]; BF = 224; OP = 240
    def epi_ops(t):
        d = AC[t & 1]
        ops = [f"v_max_f32 v{d+r}, 0, v{d+r}" for r in range(16)]
        ops += [f"v_cvt_pk_bf16_f32 v{OP+i}, v{d+2*i}, v{d+2*i+1}" for i in range(8)]
        return ops
    def epi_store(t):
        tile_off(t, 44, 112 * 1024, 49)
        for e in range(2):
            vm.op(f"buffer_store_dwordx4 v[{OP+4*e}:{OP+4*e+3}], v3, s[{WSRD}:{WSRD+3}], s44 offen offset:{1024*e} sc1", "hst")
        if O.dbl:
            lb = A.newlabel("DB")
            A("s_cmp_eq_u32 s99, 0")
            A(f"s_cbranch_scc1 {lb}")
            for e in range(2):
                A(f"buffer_store_dwordx4 v[{OP+4*e}:{OP+4*e+3}], v3, s[{WSRD}:{WSRD+3}], s44 offen offset:{1024*e} {O.dbl.replace('plain', '')}")
            A(f"{lb}:")
    PF = O.bf_dist
    def bfr(n): return (BF + 4 * (n & 3)) if (n & 4) == 0 else (32 + 4 * (n & 3))
    def rdB(n):
        sg_, i_ = n >> 4, n & 15
        lg.op(f"ds_read_b128 v[{bfr(n)}:{bfr(n)+3}], v{252 if (sg_ & 3) else 254} offset:{(XSA[sg_&3] if (sg_ & 3) else 0)+32*i_}", f"b{n}")
    vm.wait("x0")
    A("s_barrier")
    stampw(A, 6)
    for n in range(PF): rdB(n)
    side = []; dm = [(lambda s_=s_, k_=k_: dma_x(s_, k_)) for s_ in (2, 3) for k_ in range(4)]
    for _ in range(O.x_pre): dm.pop(0)()
    newslots = {O.s9_at: [8], 5: [6, 7], 6: [5], 7: [0, 1]}
    for n in range(128):
        sg, i = n >> 4, n & 15
        t, hf = sg >> 1, sg & 1
        if i == 0 and hf == 0 and t >= 1:
            side += [("v", o) for o in epi_ops(t - 1)] + [("st", t - 1)]
        if i == 16 - PF:
            if sg + 1 < 8: vm.wait(f"x{sg+1}")
            A("s_barrier")
            if sg >= 1 and sg + 3 < 8: dm += [(lambda s_=sg + 3, k_=k_: dma_x(s_, k_)) for k_ in range(4)]
            W2.free += newslots.get(sg, [])
            dm += [w2_dma] * O.w2_in_g1.get(sg, 0)
        if O.g1stamps and n in (16, 32, 64, 96):
            lg.drain(); stampw(A, {16: 2, 32: 3, 64: 4, 96: 5}[n])
        if O.use_hint and n == O.hint_at:
            A("s_cmp_lg_u32 s20, 1")
            A("s_cbranch_scc1 C_nohint")
            A("s_mov_b64 exec, 1")
            A(f"{FLAGOP()} v26, v27, s[{WSRD}:{WSRD+3}], s97 offen sc1")
            A("s_mov_b64 exec, -1")
            A("C_nohint:")
        if n == 112:
            W2.maxread = 8
            for k_ in range(O.last_rd): dm += [w2_read, w2_dma] if k_ < O.last_dma else [w2_read]
        if n + PF < 128: rdB(n + PF)
        lg.wait(f"b{n}")
        d = AC[t & 1]; wreg = W + 4 * (16 * hf + i)
        cc = "0" if (hf == 0 and i == 0) else f"v[{d}:{d+15}]"
        A(f"v_mfma_f32_32x32x16_bf16 v[{d}:{d+15}], v[{wreg}:{wreg+3}], v[{bfr(n)}:{bfr(n)+3}], {cc}")
        if dm and (n % 2 == 1 or n >= 112 or n < 13): dm.pop(0)()
        elif i >= 3 or hf == 1:
            for _ in range(3):
                if side:
                    k_, o = side.pop(0)
                    if k_ == "v": A(o)
                    else:
                        epi_store(o); break
    assert not side
    for f in dm: f()
    stamp(A, 7)
    if O.stop == 2:
        for i in range(11 if O.g1stamps else 8, 12): stamp(A, i)
        stamp_out(A, 12); A("s_endpgm")
    for o in epi_ops(3): A(o)
    epi_store(3)
    A("s_barrier")
    W2.free += [sl for sl in (0, 1, 2, 3, 4, 5) if sl not in W2.free and sl not in W2.slot.values()]
    W2.maxread = NRA
    for _ in range(O.pre_pub): w2_dma()
    A("s_lshl_b32 s29, s23, 7")
    A("s_lshl_b32 s34, s24, 2")
    A("s_add_u32 s29, s29, s34")
    A(f"s_add_u32 s50, s29, {FH}")
    vm.wait("hst")
    A("s_barrier")
    A("s_cmp_lg_u32 s20, 0")
    A("s_cbranch_scc1 C_nopub")
    A("s_mov_b64 exec, 1")
    A(f"{FLAGOP()} v26, v27, s[{WSRD}:{WSRD+3}], s50 offen sc1")
    A("s_mov_b64 exec, -1")
    A("C_nopub:")
    stamp(A, 8)
    if O.xt_at == -3: xtile()
    while W2.free: w2_dma()
    g1_ops = list(vm.ops); g1_lg = list(lg.ops)
    save = (W2.nd, W2.nr, dict(W2.slot), list(W2.free), list(W2.pend))
    A("s_branch C_g2")
    A("C_idle:")
    if O.idle_exit: A("s_endpgm")
    if O.idle_pt:
        n_ = (0x1600000 // O.idle_pt + 255) // 256
        A(f"s_mov_b32 s29, {O.idle_pt}")
        A("v_mul_lo_u32 v200, v0, s29")
        A("s_lshl_b32 s29, s2, 7")
        A("v_add_u32 v200, s29, v200")
        for i in range(n_):
            A(f"s_mov_b32 s29, {i * 256 * O.idle_pt}")
            A(f"v_cmp_gt_u32 vcc, {0x1600000 - i * 256 * O.idle_pt}, v200")
            A("s_and_saveexec_b64 s[34:35], vcc")
            A(f"buffer_load_dword v{201}, v200, s[{WSRD}:{WSRD+3}], s29 offen nt")
            A("s_mov_b64 exec, -1")
        srd(A, 8, P_OUT, 2048 * 1024)
        A("buffer_load_dword v202, v200, s[8:11], 0 offen nt")
        A("buffer_load_dword v203, v200, s[16:19], 0 offen")
    g2_setup()
    token_and_started(False)
    if O.warm_delay:
        A("s_lshl_b32 s35, s23, 7")
        A(f"s_add_u32 s35, s35, {FA}")
        A("v_and_b32 v253, 15, v2")
        A("v_lshlrev_b32 v253, 2, v253")
        A("s_cmp_lg_u32 s20, 0")
        A("s_cbranch_scc1 C_fi_ok")
        poll_loop(A, "C_fi", f"buffer_load_dword v31, v253, s[{WSRD}:{WSRD+3}], s35 offen sc1", [31], 26, 29, sleep=O.fi_sleep)
        A("s_barrier")
        stamp(A, 2)
    if O.xt_at >= 0 or O.xt_at == -3: xtile(False)
    if O.warm_w2:
        warm_w2()
        A("s_waitcnt vmcnt(0)")
        A("s_barrier")
    vm.ops = []; lg.ops = []; W2.nd = 0; W2.nr = 0; W2.pend = []
    busy = {}
    for st in range(save[0]):
        sl = save[2][st]
        while sl in busy and W2.nr <= busy[sl]: w2_read()
        if sl in busy: lg.wait(f"r{busy[sl]}")
        W2.free = [sl]; w2_dma(); busy[sl] = st
    while W2.nr < save[1]: w2_read()
    assert W2.nr == save[1], (W2.nr, save[1])
    A("s_waitcnt vmcnt(0) lgkmcnt(0)")
    W2.nd, W2.nr, W2.slot, W2.free, W2.pend = save
    vm.ops = g1_ops; lg.ops = g1_lg
    if O.stamps:
        for i in range(3, 9): stamp(A, i)
    A("C_g2:")
    A("v_mov_b32 v1, v255")
    srd(A, 8, P_OUT, 2048 * 1024)
    ACC = ACC2
    def hreg(st): return HR + 8 * (st % HD) if st < NS - 4 else RA + 8 * (12 + st - (NS - 4))
    def ld_h(st, t):
        vm.op(f"buffer_load_dwordx4 v[{hreg(st)+4*t}:{hreg(st)+4*t+3}], v{1 if t == 0 else 5}, s[{WSRD}:{WSRD+3}], s48 offen {O.h_fl}", f"h{st}")
        if t == 1:
            A("s_add_u32 s48, s48, 1024")
            A("s_cmp_eq_u32 s48, s43")
            A("s_cmov_b32 s48, s42")
    XR = 18
    hflag = f"buffer_load_dword v31, v30, s[{WSRD}:{WSRD+3}], s45 offen sc1"
    while W2.nr < NRA:
        st = W2.nr
        w2_read()
        if len(W2.pend) > 1: w2_dma()
        if st == O.hf_issue: vm.op(hflag, "hf")
        if st == O.hf_check:
            stamp(A, 9)
            vm.wait("hf")
            A("v_cmp_ne_u32 vcc, v31, v26")
            A("s_cbranch_vccz C_fh_ok")
            poll_loop(A, "C_fh", hflag, [31], 26, 29)
            stamp(A, 10)
            for s_ in range(HD):
                for t in range(2): ld_h(s_, t)
    while W2.pend and W2.nd < NS: w2_dma()
    zflag = f"buffer_load_dword v31, v29, s[{WSRD}:{WSRD+3}], s46 offen sc1"
    TAIL = 4
    assert HD >= TAIL
    T1 = HR; T2 = HR + 16; ZR = RA
    assert NS - NRA <= 12
    ZSL = 8
    A("s_mov_b32 s47, 0xffff0000")
    def mf(st, t, u):
        af = areg(st)
        d = ACC + 16 * (2 * t + u)
        cc = "0" if st == 0 else f"v[{d}:{d+15}]"
        A(f"v_mfma_f32_32x32x16_bf16 v[{d}:{d+15}], v[{af+4*u}:{af+4*u+3}], v[{hreg(st)+4*t}:{hreg(st)+4*t+3}], {cc}")
    hq = list(range(HD, NS))
    for st in range(NS - TAIL):
        vm.wait(f"h{st}")
        lg.wait(f"r{st}")
        if W2.pend and W2.nd < NS: w2_dma()
        n = 0
        for t in range(2):
            for u in range(2):
                mf(st, t, u); n += 1
                if n == 2 and hq: ld_h(hq[0], 0)
                if n == 4 and hq: ld_h(hq.pop(0), 1)
        if hq and hq[0] >= NS - 4 - O.h_lead and st >= 16 and hq[0] >= NS - 4:
            ld_h(hq[0], 0); ld_h(hq.pop(0), 1)
        W2.maxread = NRA + st
        w2_read()
        if O.g2stamps and st in (3, 7, 11, 15, 19, 23): stampw(A, 2 + (st >> 2))
        if O.xt_at == -2 and st == O.xl_at:
            A("v_lshlrev_b32 v6, 10, v9")
            A("v_lshl_add_u32 v6, v7, 3, v6")
            xtile(True, 6)
        if st == O.zf_issue and not O.nozf: vm.op(zflag, "zf")
        if st == O.zf_check and not O.nozf:
            vm.wait("zf")
            A("v_cmp_ne_u32 vcc, v31, v26")
            A("s_cbranch_vccz C_fz_ok")
            poll_loop(A, "C_fz", zflag, [31], 26, 29)
        if st == O.zf_check:
            lg.drain()
            for j in range(2):
                A(f"s_add_u32 m0, s30, {SLA[ZSL] + 1024*j}")
                if j: A("s_add_u32 s95, s95, 65536")
                vm.op(f"buffer_load_dwordx4 v28, s[{WSRD}:{WSRD+3}], s95 offen sc1 lds", "z")
    assert W2.nd == NS and W2.nr == NS
    lg.drain()
    vm.wait(f"h{NS-1}", "z")
    for g in range(4):
        A(f"ds_read_b64_tr_b16 v[{ZR+2*g}:{ZR+2*g+1}], v{sl_off(ZSL, 12, 13)[0]} offset:{sl_off(ZSL, 12, 13)[1] + 512*g}")
    side = []
    for q in (1, 2, 3):
        side += [f"s_xor_b32 s29, s20, {q}", "s_lshl_b32 s29, s29, 11", f"v_add_u32 v{13+q}, s29, v3"]
    side += ["s_waitcnt lgkmcnt(0)"]
    for i in range(8):
        side += [f"v_lshlrev_b32 v{T2+2*i}, 16, v{ZR+i}", f"v_and_b32 v{T2+2*i+1}, s47, v{ZR+i}"]
    side += ["s_waitcnt vmcnt(0)"]
    for i in range(8):
        side += [f"v_lshlrev_b32 v{T1+2*i}, 16, v{XR+i}", f"v_and_b32 v{T1+2*i+1}, s47, v{XR+i}"]
    side += [f"v_add_f32 v{T1+i}, v{T1+i}, v{T2+i}" for i in range(16)]
    side += [f"v_cvt_pk_bf16_f32 v{XR+i}, v{T1+2*i}, v{T1+2*i+1}" for i in range(8)]
    for i in range(8):
        side += [f"v_lshlrev_b32 v{T1+2*i}, 16, v{XR+i}", f"v_and_b32 v{T1+2*i+1}, s47, v{XR+i}"]
    def paddr(q, i): return SLA[2 * (q - 1) + (i >> 1)] + 1024 * (i & 1)
    def wr(q, i):
        d = ACC + 16 * q + 4 * i
        A(f"ds_write_b128 v10, v[{d}:{d+3}] offset:{paddr(q, i)}")
    order = [1, 2, 3, 0]
    for k_q, q in enumerate(order):
        t, u = q >> 1, q & 1
        for k_, st in enumerate(range(NS - TAIL, NS)):
            mf(st, t, u)
            nside = 7 if k_q == 0 else (6 if k_ < 2 else 3)
            for _ in range(nside):
                if side and not (k_q >= 1 and side[0].startswith("s_waitcnt lgkm")) and not (k_q < O.xw_q and side[0].startswith("s_waitcnt vm")): A(side.pop(0))
            if k_q >= 1 and k_ >= 2:
                wr(order[k_q - 1], 2 * (k_ - 2)); wr(order[k_q - 1], 2 * (k_ - 2) + 1)
    stamp(A, 11)
    A("s_waitcnt lgkmcnt(0)")
    A("s_barrier")
    for q in (1, 2, 3):
        for i in range(4):
            d = ACC + 16 * q + 4 * i
            A(f"ds_read_b128 v[{d}:{d+3}], v{13+q} offset:{paddr(q, i)}")
    while side: A(side.pop(0))
    A("s_waitcnt lgkmcnt(8)")
    for i in range(0, 16, 2):
        A(f"v_pk_add_f32 v[{ACC+i}:{ACC+i+1}], v[{ACC+i}:{ACC+i+1}], v[{ACC+16+i}:{ACC+17+i}]")
    A("s_waitcnt lgkmcnt(0)")
    for i in range(0, 16, 2):
        A(f"v_pk_add_f32 v[{ACC+32+i}:{ACC+33+i}], v[{ACC+32+i}:{ACC+33+i}], v[{ACC+48+i}:{ACC+49+i}]")
    for i in range(0, 16, 2):
        A(f"v_pk_add_f32 v[{ACC+i}:{ACC+i+1}], v[{ACC+i}:{ACC+i+1}], v[{ACC+32+i}:{ACC+33+i}]")
    for i in range(8): A(f"v_cvt_pk_bf16_f32 v{ZR+i}, v{ACC+2*i}, v{ACC+2*i+1}")
    for i in range(8):
        A(f"v_lshlrev_b32 v{T2+2*i}, 16, v{ZR+i}")
        A(f"v_and_b32 v{T2+2*i+1}, s47, v{ZR+i}")
    for i in range(0, 16, 2):
        A(f"v_pk_add_f32 v[{T1+i}:{T1+i+1}], v[{T1+i}:{T1+i+1}], v[{T2+i}:{T2+i+1}]")
    OUTR = ACC
    for i in range(8): A(f"v_cvt_pk_bf16_f32 v{OUTR+i}, v{T1+2*i}, v{T1+2*i+1}")
    for p in range(2):
        A(f"v_permlane32_swap_b32 v{OUTR+4*p}, v{OUTR+4*p+2}")
        A(f"v_permlane32_swap_b32 v{OUTR+4*p+1}, v{OUTR+4*p+3}")
    for p in range(2):
        A(f"buffer_store_dwordx4 v[{OUTR+4*p}:{OUTR+4*p+3}], v8, s[8:11], s94 offen offset:{32*p} {O.out_fl}")
    stamp_out(A, 12)
    A("s_endpgm")

SCR = """s_and_b32 s3, s2, 7
s_lshl_b32 s3, s3, 3
s_lshr_b32 s4, s2, 3
s_and_b32 s4, s4, 7
s_and_b32 s2, s2, 0x1c0
s_or_b32 s2, s2, s3
s_or_b32 s2, s2, s4"""
CPF = """s_getpc_b64 s[4:5]
s_lshr_b32 s6, s2, 3
s_and_b32 s6, s6, 31
s_min_u32 s6, s6, NPIECES
s_lshl_b32 s6, s6, 10
s_add_u32 s4, s4, s6
s_addc_u32 s5, s5, 0
v_lshlrev_b32 v254, 2, v0
v_mov_b32 v255, s5
v_add_co_u32 v254, vcc, s4, v254
v_addc_co_u32 v255, vcc, 0, v255, vcc
global_load_dword v203, v[254:255], off"""
def build(path, **opts):
    for k_, v_ in opts.items(): setattr(O, k_, v_)
    A = Asm()
    A.begin_kernel(K)
    stamp(A, 0, real=True); stamp(A, 1)
    if O.dbgtime: A("s_memrealtime s[64:65]\ns_memtime s[66:67]")
    A(f"""
s_cmp_ge_u32 s2, 512
s_cbranch_scc1 K_done
s_load_dwordx16 s[36:51], s[0:1], 0
s_load_dwordx8 s[52:59], s[0:1], 64
s_load_dwordx2 s[60:61], s[0:1], 96
{CPF if O.codepf else ''}
{'s_xor_b32 s2, s2, 256' if O.sfirst else ''}
{SCR if O.scramble else ''}
s_cmp_ge_u32 s2, 256
s_cbranch_scc1 {'K_done' if O.only == 'C' else 'S_role'}
{'s_branch K_done' if O.only == 'S' else ''}
""")
    gen_C(A)
    gen_S(A)
    A("K_done:")
    A("s_endpgm")
    A.end_kernel(K, vgpr=256, sgpr=102, ieee=False)
    A.lines, n = hazard.fix(A.lines)
    hdr = open("cdna_kernels/" + NAME + ".s.ref").read().split("; Override launch")[0]
    import subprocess, re
    def size(lines):
        t = A.text(hdr + "; @launch grid=(512,1,1) block=(256,1,1) lds=81920\n").replace("NPIECES", "0")
        open("_sz.s", "w").write(t)
        subprocess.run(["clang", "-x", "assembler", "-target", "amdgcn-amd-amdhsa", "-mcpu=gfx950", "-c", "_sz.s", "-o", "_sz.o"], check=True)
        o = subprocess.run(["llvm-objdump", "-h", "_sz.o"], capture_output=True, text=True).stdout
        return int(re.search(r"\.text\s+([0-9a-f]+)", o).group(1), 16)
    if O.codepf:
        sz = size(A.lines)
        npc = (sz - 64 - 1024) // 1024
        A.lines = [ln.replace("NPIECES", str(npc)) for ln in A.lines]
        print("code bytes", sz, "pieces", npc + 1)
    txt = A.text(hdr + "; @launch grid=(512,1,1) block=(256,1,1) lds=81920\n")
    open(path, "w").write(txt)
    return n

if __name__ == "__main__":
    print("nops", build("mega.s", stamps=False))
    build("mega_st.s", stamps=True)
    build("e1.s", stamps=True, g2stamps=True)
    build("e2.s", stamps=True, g2stamps=True, zf_issue=18, zf_check=22)
```
